```python
import torch

def _softmax(x, axis=-1):
    return torch.softmax(x, dim=axis)
def _gelu(x):
    return torch.nn.functional.gelu(x, approximate="tanh")
def _silu(x):
    return torch.nn.functional.silu(x)
def _sigmoid(x):
    return torch.sigmoid(x)
def _layernorm(x, axis=-1, eps=1e-5):
    m = x.mean(dim=axis, keepdim=True)
    v = x.var(dim=axis, keepdim=True, unbiased=False)
    return (x - m) / torch.sqrt(v + eps)
def _scatter_add(tgt, idx, src, axis=0):
    return tgt.clone().index_add_(axis, idx, src)
def _segment_sum(src, seg, n):
    out = torch.zeros((n,) + src.shape[1:], dtype=src.dtype)
    return out.index_add_(0, seg, src)
def _pad(x, pw):
    flat = tuple(v for pair in reversed(pw) for v in pair)
    return torch.nn.functional.pad(x, flat)

kernel_name = 'standalone__gqa_block_cached__near_ridge'

def setup_inputs():

    _w = (lambda a: (lambda t: t.to(torch.bfloat16) if t.is_floating_point() else t)(torch.as_tensor(a)))
    B, Sq, D = 8, 64, 576
    Hq, Hkv, Sk, Dh = 32, 16, 1024, 128
    assert Hq % Hkv == 0, (Hq, Hkv)
    return {
        "x": _w((lambda *s: torch.randn(*s, dtype=torch.bfloat16) * 0.8)(B, Sq, D)),
        "k_cache": _w((lambda *s: torch.randn(*s, dtype=torch.bfloat16) * 0.8)(B, Hkv, Sk, Dh)),
        "v_cache": _w((lambda *s: torch.randn(*s, dtype=torch.bfloat16) * 0.05)(B, Hkv, Sk, Dh)),
        "wq": _w((lambda *s: torch.randn(*s, dtype=torch.bfloat16) * 0.8)(D, Hq * Dh) * (D ** -0.5)),
        "wo": _w((lambda *s: torch.randn(*s, dtype=torch.bfloat16) * 0.05)(Hq * Dh, D) * ((Hq * Dh) ** -0.5)),
    }

def reference(x, k_cache, v_cache, wq, wo):
    B, Sq, D = x.shape
    Hq, Dh = 32, 128
    Hkv = k_cache.shape[1]
    rep = Hq // Hkv
    q = (lambda x, *d: x.permute(*d))((x @ wq).reshape(B, Sq, Hq, Dh), 0, 2, 1, 3)
    k = (lambda x, n, axis: torch.repeat_interleave(x, n, dim=axis))(k_cache, rep, axis=1)
    v = (lambda x, n, axis: torch.repeat_interleave(x, n, dim=axis))(v_cache, rep, axis=1)
    scores = torch.einsum("bhqd,bhkd->bhqk", q, k) * (Dh ** -0.5)
    p = _softmax(scores, axis=-1)
    o = torch.einsum("bhqk,bhkd->bhqd", p, v)
    return (lambda x, *d: x.permute(*d))(o, 0, 2, 1, 3).reshape(B, Sq, Hq * Dh) @ wo
```

```python
import sys, math

KNAME = "standalone__gqa_block_cached__near_ridge_kernel"

SLOT = 32768
NSLOT = 5
LDS_BYTES = 163840
STATS_OFF = 157696
WS_FLAG1 = 0
WS_FLAG2 = 32768
WS_O = 0x100000
WS_P = 0x800000
WS_TS = 0x2000000
PSTRIDE = 20480
C_SCALE = math.log2(math.e) / math.sqrt(128.0)
T_RESCALE = 8.0


def f32bits(x):
    import struct
    return struct.unpack("<I", struct.pack("<f", x))[0]


class Asm:
    def __init__(self):
        self.L = []
        self.vm = []
        self.nlabel = 0

    def __call__(self, s):
        self.L.append("    " + s)

    def label(self, name):
        self.L.append(name + ":")

    def c(self, s):
        self.L.append("    ; " + s)

    def newlabel(self, p="L"):
        self.nlabel += 1
        return f"{p}_{self.nlabel}"

    def vmop(self, s, tag):
        self(s)
        self.vm.append(tag)

    def wait_tag(self, tag, extra=""):
        idx = max(i for i, t in enumerate(self.vm) if t == tag)
        n = len(self.vm) - 1 - idx
        assert n <= 63, n
        self(f"s_waitcnt vmcnt({n}){extra}")

    def text(self):
        return "\n".join(self.L) + "\n"


S_X, S_K, S_V, S_WQ, S_WO, S_OUT, S_DBG, S_WS = 4, 6, 8, 10, 12, 14, 16, 18
SRD_X, SRD_WQ, SRD_K, SRD_V, SRD_WO, SRD_WS, SRD_OUT, SRD_DBG = 20, 24, 28, 32, 36, 40, 44, 48
S_WAVE = 52
S_B = 53
S_J = 54
S_HH = 55
S_IDX = 56
S_T0, S_T1, S_T2, S_T3 = 57, 58, 59, 60
S_WQOFF = 61
S_XOFF = 62
S_KVOFF = 63
S_LDSW = 64
S_LDSX = 65
S_C = 66
S_THR = 67
S_SPIN = 68
S_QB = 69
S_KS = 70
S_SAVE = 72
S_PC = 74
S_TS = 76
V_TID, V_LANE = 0, 1
V_KOFF = 2
V_VOFF = 6
V_WQOFF = 7
V_XOFF = 8
V_QA = 10
V_QB = 13
V_KA = 25
V_VA = 49
V_TMAX = 61
V_T = 62
V_MC = 78
V_L = 79
V_S = 80
V_P = 112
V_E = 120
V_O = 136
V_WOOFF = 200
V_WOA = 209
V_ACC = 212
V_PF = 250
A_Q = 0
A_K = 32
A_V = 64
A_OB = 96
A_W = 160


def vr(b, n=1):
    return f"v{b}" if n == 1 else f"v[{b}:{b+n-1}]"


def ar(b, n=1):
    return f"a{b}" if n == 1 else f"a[{b}:{b+n-1}]"


def sr(b, n=1):
    return f"s{b}" if n == 1 else f"s[{b}:{b+n-1}]"


def slot_base(n):
    return (n % NSLOT) * SLOT


def set_imm(addr):
    return addr // 65536, addr % 65536


class Gen:
    def __init__(self, ts=False, stop_after=None, kvaux="", dbg=None, nofuse=False):
        self.a = Asm()
        self.ts = ts
        self.nts = 0
        self.stop_after = stop_after
        self.kvaux = kvaux
        self.dbg = dbg

    def stamp(self):
        if not self.ts:
            return
        a = self.a
        r = S_TS + 2 * self.nts
        assert r + 1 <= 101
        a(f"s_memrealtime {sr(r,2)}")
        self.nts += 1

    def prologue(self):
        a = self.a
        a("s_cmp_ge_u32 s2, 256")
        a("s_cbranch_scc1 L_end")
        self.stamp()
        a("s_load_dwordx16 s[4:19], s[0:1], 0")
        a(f"s_getpc_b64 {sr(S_PC,2)}")
        a.label("L_pcbase")
        a(f"v_lshlrev_b32 v{V_T}, 7, v0")
        for k in range(2):
            lab = a.newlabel("L_pf")
            a(f"s_mov_b32 s{S_T0}, L_codeend-L_pcbase")
            a(f"v_cmp_gt_u32 vcc, s{S_T0}, v{V_T}")
            a(f"s_and_saveexec_b64 {sr(S_SAVE,2)}, vcc")
            a(f"s_cbranch_execz {lab}")
            a(f"global_load_dword v{V_PF}, v{V_T}, {sr(S_PC,2)}")
            a.label(lab)
            a(f"s_mov_b64 exec, {sr(S_SAVE,2)}")
            if k == 0:
                a(f"v_add_u32 v{V_T}, 0x8000, v{V_T}")
        a(f"v_lshrrev_b32 v{V_T+1}, 6, v0")
        a(f"v_and_b32 v{V_LANE}, 63, v0")
        a(f"v_readfirstlane_b32 s{S_WAVE}, v{V_T+1}")
        a(f"s_and_b32 s{S_J}, s2, 7")
        a(f"s_lshr_b32 s{S_T0}, s2, 3")
        a(f"s_lshr_b32 s{S_B}, s{S_T0}, 2")
        a(f"s_and_b32 s{S_HH}, s{S_T0}, 3")
        a(f"s_lshl_b32 s{S_IDX}, s{S_B}, 5")
        a(f"s_lshl_b32 s{S_T1}, s{S_J}, 2")
        a(f"s_add_u32 s{S_IDX}, s{S_IDX}, s{S_T1}")
        a(f"s_add_u32 s{S_IDX}, s{S_IDX}, s{S_HH}")
        a(f"s_lshl_b32 s{S_LDSW}, s{S_WAVE}, 12")
        a(f"s_lshl_b32 s{S_LDSX}, s{S_WAVE}, 11")
        a(f"s_lshl_b32 s{S_KVOFF}, s{S_WAVE}, 12")
        a(f"s_lshl_b32 s{S_WQOFF}, s{S_WAVE}, 17")
        a(f"s_mul_i32 s{S_XOFF}, s{S_WAVE}, 18432")
        a(f"s_and_b32 s{S_QB}, s{S_WAVE}, 1")
        a(f"s_lshr_b32 s{S_KS}, s{S_WAVE}, 1")
        a(f"s_mov_b32 s{S_C}, {f32bits(C_SCALE):#x}")
        a(f"s_mov_b32 s{S_THR}, {f32bits(T_RESCALE):#x}")
        L = V_LANE
        T = V_T
        a(f"v_lshrrev_b32 v{T}, 4, v{L}")
        a(f"v_and_b32 v{T+1}, 15, v{L}")
        for jj in range(4):
            a(f"v_add_u32 v{T+2}, {4*jj}, v{T}")
            a(f"v_xor_b32 v{T+2}, v{T+2}, v{T+1}")
            a(f"v_lshlrev_b32 v{T+2}, 4, v{T+2}")
            a(f"v_lshl_add_u32 v{V_KOFF+jj}, v{T}, 8, v{T+2}")
        a(f"v_lshlrev_b32 v{T+2}, 2, v{T}")
        a(f"v_xor_b32 v{T+2}, v{T+2}, v{T+1}")
        a(f"v_lshlrev_b32 v{T+2}, 4, v{T+2}")
        a(f"v_lshl_add_u32 v{V_VOFF}, v{T}, 8, v{T+2}")
        a(f"v_lshl_add_u32 v{V_WQOFF}, v{T}, 13, v{T+2}")
        a(f"v_lshrrev_b32 v{T+3}, 3, v{L}")
        a(f"v_and_b32 v{T+4}, 7, v{L}")
        a(f"v_mul_u32_u24 v{T+3}, 1152, v{T+3}")
        for e in range(2):
            a(f"v_add_u32 v{T+2}, {4*e}, v{T}")
            a(f"v_xor_b32 v{T+2}, v{T+2}, v{T+4}")
            a(f"v_lshl_add_u32 v{V_XOFF+e}, v{T+2}, 4, v{T+3}")
        a("s_waitcnt lgkmcnt(0)")
        a(f"s_mul_i32 s{S_T0}, s{S_B}, 73728")
        a(f"s_add_u32 s{SRD_X}, s{S_X}, s{S_T0}")
        a(f"s_addc_u32 s{SRD_X+1}, s{S_X+1}, 0")
        a(f"s_mov_b32 s{SRD_X+2}, 73728")
        a(f"s_mov_b32 s{SRD_X+3}, 0x20000")
        a(f"s_lshl_b32 s{S_T0}, s{S_J}, 2")
        a(f"s_add_u32 s{S_T0}, s{S_T0}, s{S_HH}")
        a(f"s_lshl_b32 s{S_T0}, s{S_T0}, 8")
        a(f"s_add_u32 s{SRD_WQ}, s{S_WQ}, s{S_T0}")
        a(f"s_addc_u32 s{SRD_WQ+1}, s{S_WQ+1}, 0")
        a(f"s_sub_u32 s{SRD_WQ+2}, 4718592, s{S_T0}")
        a(f"s_mov_b32 s{SRD_WQ+3}, 0x20000")
        a(f"s_lshl_b32 s{S_T0}, s{S_B}, 4")
        a(f"s_lshl_b32 s{S_T1}, s{S_J}, 1")
        a(f"s_add_u32 s{S_T0}, s{S_T0}, s{S_T1}")
        a(f"s_lshr_b32 s{S_T1}, s{S_HH}, 1")
        a(f"s_add_u32 s{S_T0}, s{S_T0}, s{S_T1}")
        a(f"s_lshl_b32 s{S_T0}, s{S_T0}, 18")
        a(f"s_add_u32 s{SRD_K}, s{S_K}, s{S_T0}")
        a(f"s_addc_u32 s{SRD_K+1}, s{S_K+1}, 0")
        a(f"s_mov_b32 s{SRD_K+2}, 262144")
        a(f"s_mov_b32 s{SRD_K+3}, 0x20000")
        a(f"s_add_u32 s{SRD_V}, s{S_V}, s{S_T0}")
        a(f"s_addc_u32 s{SRD_V+1}, s{S_V+1}, 0")
        a(f"s_mov_b32 s{SRD_V+2}, 262144")
        a(f"s_mov_b32 s{SRD_V+3}, 0x20000")
        for n in range(5):
            self.issue_item(n)
        a(f"s_mul_i32 s{S_T0}, s{S_J}, 589824")
        a(f"s_mul_i32 s{S_T1}, s{S_HH}, 288")
        a(f"s_add_u32 s{S_T0}, s{S_T0}, s{S_T1}")
        a(f"s_add_u32 s{SRD_WO}, s{S_WO}, s{S_T0}")
        a(f"s_addc_u32 s{SRD_WO+1}, s{S_WO+1}, 0")
        a(f"s_sub_u32 s{SRD_WO+2}, 4718592, s{S_T0}")
        a(f"s_mov_b32 s{SRD_WO+3}, 0x20000")
        a(f"s_mov_b32 s{SRD_WS}, s{S_WS}")
        a(f"s_mov_b32 s{SRD_WS+1}, s{S_WS+1}")
        a(f"s_mov_b32 s{SRD_WS+2}, 0x10000000")
        a(f"s_mov_b32 s{SRD_WS+3}, 0x20000")
        a(f"s_mov_b32 s{SRD_OUT}, s{S_OUT}")
        a(f"s_mov_b32 s{SRD_OUT+1}, s{S_OUT+1}")
        a(f"s_mov_b32 s{SRD_OUT+2}, 589824")
        a(f"s_mov_b32 s{SRD_OUT+3}, 0x20000")
        a(f"s_mov_b32 s{SRD_DBG}, s{S_DBG}")
        a(f"s_mov_b32 s{SRD_DBG+1}, s{S_DBG+1}")
        a(f"s_mov_b32 s{SRD_DBG+2}, 256")
        a(f"s_mov_b32 s{SRD_DBG+3}, 0x20000")
        a(f"s_lshl_b32 s{S_T0}, s{S_IDX}, 7")
        a(f"v_lshlrev_b32 v{T}, 15, v0")
        a(f"v_add_u32 v{T}, s{S_T0}, v{T}")
        a(f"v_mov_b32 v{T+1}, 0")
        a(f"v_cmp_gt_u32 vcc, 2, v0")
        a(f"s_and_saveexec_b64 {sr(S_SAVE,2)}, vcc")
        a("s_cbranch_execz L_noreset")
        a(f"buffer_store_dword v{T+1}, v{T}, {sr(SRD_WS,4)}, 0 offen sc1")
        a.label("L_noreset")
        a(f"s_mov_b64 exec, {sr(S_SAVE,2)}")
        a(f"v_lshrrev_b32 v{T}, 4, v{L}")
        a(f"v_and_b32 v{T+1}, 15, v{L}")
        a(f"v_lshrrev_b32 v{T+2}, 2, v{T+1}")
        a(f"v_and_b32 v{T+3}, 3, v{L}")
        a(f"v_and_b32 v{T+4}, 1, v{T}")
        a(f"v_lshrrev_b32 v{T+5}, 1, v{T}")
        a(f"v_lshl_add_u32 v{T+6}, v{T+5}, 3, v{T+2}")
        a(f"v_lshlrev_b32 v{T+6}, 8, v{T+6}")
        a(f"v_xor_b32 v{T+7}, s{S_WAVE}, v{T+2}")
        a(f"v_lshl_add_u32 v{T+6}, v{T+7}, 6, v{T+6}")
        a(f"v_lshl_add_u32 v{T+6}, v{T+4}, 5, v{T+6}")
        a(f"v_and_b32 v{T+7}, 1, v{T+3}")
        a(f"v_lshl_add_u32 v{T+6}, v{T+7}, 4, v{T+6}")
        a(f"v_lshrrev_b32 v{T+7}, 1, v{T+3}")
        a(f"v_lshl_add_u32 v{V_QA}, v{T+7}, 3, v{T+6}")
        a(f"v_add_u32 v{V_QA+1}, 0x10000, v{V_QA}")
        a(f"v_add_u32 v{V_QA+2}, 0x20000, v{V_QA}")
        a(f"v_lshl_add_u32 v{T+6}, v{T+5}, 2, v{T+2}")
        a(f"v_lshlrev_b32 v{T+6}, 8, v{T+6}")
        a(f"v_lshl_add_u32 v{T+6}, v{T+4}, 5, v{T+6}")
        a(f"v_lshl_add_u32 v{T+6}, v{T+3}, 3, v{T+6}")
        a(f"s_lshl_b32 s{S_T0}, s{S_KS}, 13")
        a(f"s_add_u32 s{S_T0}, s{S_T0}, 16384")
        a(f"v_add_u32 v{T+6}, s{S_T0}, v{T+6}")
        a(f"s_lshl_b32 s{S_T1}, s{S_KS}, 1")
        for g in range(4):
            a(f"s_xor_b32 s{S_T2}, s{S_T1}, {g}")
            a(f"v_xor_b32 v{T+7}, s{S_T2}, v{T+2}")
            a(f"v_lshl_add_u32 v{V_VA+g}, v{T+7}, 6, v{T+6}")
            a(f"v_add_u32 v{V_VA+4+g}, 0x10000, v{V_VA+g}")
            a(f"v_add_u32 v{V_VA+8+g}, 0x20000, v{V_VA+g}")
        a(f"v_and_b32 v{T+8}, 31, v{L}")
        a(f"v_lshrrev_b32 v{T+9}, 5, v{L}")
        a(f"v_lshrrev_b32 v{T+10}, 1, v{T+8}")
        a(f"v_and_b32 v{T+10}, 7, v{T+10}")
        a(f"v_xor_b32 v{T+10}, v{T+10}, v{T+9}")
        a(f"v_lshlrev_b32 v{T+11}, 7, v{T+8}")
        a(f"v_add_u32 v{T+11}, 16384, v{T+11}")
        for s in range(4):
            a(f"v_xor_b32 v{T+12}, {2*s}, v{T+10}")
            a(f"v_lshl_add_u32 v{V_QB+s}, v{T+12}, 4, v{T+11}")
            a(f"v_add_u32 v{V_QB+4+s}, 0x10000, v{V_QB+s}")
            a(f"v_add_u32 v{V_QB+8+s}, 0x20000, v{V_QB+s}")
        a(f"v_and_b32 v{T+10}, 15, v{T+8}")
        a(f"v_xor_b32 v{T+10}, v{T+10}, v{T+9}")
        a(f"v_lshlrev_b32 v{T+11}, 8, v{T+8}")
        a(f"s_lshl_b32 s{S_T0}, s{S_KS}, 13")
        a(f"v_add_u32 v{T+11}, s{S_T0}, v{T+11}")
        for s in range(8):
            a(f"v_xor_b32 v{T+12}, {2*s}, v{T+10}")
            a(f"v_lshl_add_u32 v{V_KA+s}, v{T+12}, 4, v{T+11}")
            a(f"v_add_u32 v{V_KA+8+s}, 0x10000, v{V_KA+s}")
            a(f"v_add_u32 v{V_KA+16+s}, 0x20000, v{V_KA+s}")

    def item_ops(self, n):
        base = slot_base(n)
        g = []
        if n <= 8:
            for jj in range(4):
                pre = []
                if jj == 0:
                    pre.append(f"s_add_u32 m0, s{S_LDSW}, {base}")
                pre.append(f"s_add_u32 s{S_T3}, s{S_WQOFF}, {n*64*8192 + jj*(32768-1024)}")
                pre.append(f"buffer_load_dwordx4 v{V_WQOFF}, {sr(SRD_WQ,4)}, s{S_T3} offen offset:{jj*1024} lds")
                g.append(pre)
            for e in range(2):
                pre = []
                if e == 0:
                    pre.append(f"s_add_u32 m0, s{S_LDSX}, {base+16384}")
                pre.append(f"s_add_u32 s{S_T3}, s{S_XOFF}, {128*n + e*(9216-1024)}")
                pre.append(f"buffer_load_dwordx4 v{V_XOFF+e}, {sr(SRD_X,4)}, s{S_T3} offen offset:{e*1024} lds")
                g.append(pre)
        elif 10 <= n <= 26:
            i = n - 10
            aux = self.kvaux
            if i <= 15:
                for jj in range(4):
                    pre = []
                    if jj == 0:
                        pre.append(f"s_add_u32 m0, s{S_LDSW}, {base}")
                        pre.append(f"s_add_u32 s{S_T3}, s{S_KVOFF}, {i*16384}")
                    pre.append(f"buffer_load_dwordx4 v{V_KOFF+jj}, {sr(SRD_K,4)}, s{S_T3} offen offset:{jj*1024} {aux} lds")
                    g.append(pre)
            if i >= 1:
                for jj in range(4):
                    pre = []
                    if jj == 0:
                        pre.append(f"s_add_u32 m0, s{S_LDSW}, {base+16384}")
                        pre.append(f"s_add_u32 s{S_T3}, s{S_KVOFF}, {(i-1)*16384}")
                    pre.append(f"buffer_load_dwordx4 v{V_VOFF}, {sr(SRD_V,4)}, s{S_T3} offen offset:{jj*1024} {aux} lds")
                    g.append(pre)
        return g

    def issue_group(self, grp, tag):
        a = self.a
        for s in grp[:-1]:
            a(s)
        a.vmop(grp[-1], tag)

    def issue_item(self, n):
        for grp in self.item_ops(n):
            self.issue_group(grp, f"item{n}")

    @staticmethod
    def wo_lds(t):
        return 65536 + 9216 * t if t < 10 else 9216 * (t - 10)

    def wo_unit_ops(self, U):
        g = []
        for u in range(9):
            pre = []
            if u == 0:
                pre.append(f"s_add_u32 s{S_T1}, s{S_WAVE}, {4*U}")
                pre.append(f"s_mul_i32 s{S_T2}, s{S_T1}, 9216")
                pre.append(f"s_add_u32 s{S_T0}, s{S_T2}, 65536")
                pre.append(f"s_sub_u32 s{S_T2}, s{S_T2}, 92160")
                pre.append(f"s_cmp_lt_u32 s{S_T1}, 10")
                pre.append(f"s_cselect_b32 s{S_T2}, s{S_T0}, s{S_T2}")
                pre.append(f"s_mul_i32 s{S_T3}, s{S_T1}, 36864")
            if u % 4 == 0:
                pre.append(f"s_add_u32 m0, s{S_T2}, {u*1024}")
                pre.append("s_nop 0")
            pre.append(f"buffer_load_dwordx4 v{V_WOOFF+u}, {sr(SRD_WO,4)}, s{S_T3} offen offset:{(u%4)*1024} lds")
            g.append(pre)
        return g

    def issue_wo_unit(self, U):
        for grp in self.wo_unit_ops(U):
            self.issue_group(grp, f"wo{U}")

    def q_step(self, n):
        a = self.a
        base = slot_base(n)
        a.c(f"---- Q step {n}")
        a.wait_tag(f"item{n}")
        if n == 5:
            a(f"v_mov_b32 v{V_T}, 1")
            a(f"v_mov_b32 v{V_T+1}, s{S_B}")
            a(f"v_lshlrev_b32 v{V_T+1}, 2, v{V_T+1}")
            a(f"v_cmp_eq_u32 vcc, 0, v0")
            a(f"s_and_saveexec_b64 {sr(S_SAVE,2)}, vcc")
            a("s_cbranch_execz L_noready")
            a(f"buffer_atomic_add v{V_T}, v{V_T+1}, {sr(SRD_DBG,4)}, 0 offen sc1")
            a.label("L_noready")
            a(f"s_mov_b64 exec, {sr(S_SAVE,2)}")
        a("s_barrier")
        dma = self.item_ops(n + 4) if n >= 1 else []
        rs, imm = set_imm(base)
        for s in range(4):
            a(f"ds_read_b64_tr_b16 {ar(A_K+4*s,2)}, v{V_QA+rs} offset:{imm+s*4096}")
            a(f"ds_read_b64_tr_b16 {ar(A_K+4*s+2,2)}, v{V_QA+rs} offset:{imm+s*4096+1024}")
            for qb in range(2):
                a(f"ds_read_b128 {ar(A_V+8*s+4*qb,4)}, v{V_QB+4*rs+s} offset:{imm+qb*4096}")
        di = 0
        for s in range(4):
            remaining = 16 - 4 * (s + 1)
            a(f"s_waitcnt lgkmcnt({min(remaining,15)})")
            for qb in range(2):
                src_c = vr(V_S+16*qb,16) if not (n == 0 and s == 0) else "0"
                a(f"v_mfma_f32_32x32x16_bf16 {vr(V_S+16*qb,16)}, {ar(A_K+4*s,4)}, {ar(A_V+8*s+4*qb,4)}, {src_c}")
                if di < len(dma):
                    self.issue_group(dma[di], f"item{n+4}")
                    di += 1
        while di < len(dma):
            self.issue_group(dma[di], f"item{n+4}")
            di += 1

    def qx_step(self):
        a = self.a
        n = 9
        base = slot_base(n)
        a.c("---- QX: convert Q^T accumulators to bf16 and exchange through LDS")
        dma = self.item_ops(n + 4)
        a("s_barrier")
        for grp in dma:
            self.issue_group(grp, f"item{n+4}")
        a("s_nop 7")
        a("s_nop 7")
        T = V_T
        a(f"v_lshlrev_b32 v{T}, 4, v{V_LANE}")
        a(f"s_lshl_b32 s{S_T0}, s{S_WAVE}, 11")
        a(f"s_add_u32 s{S_T0}, s{S_T0}, {base}")
        a(f"v_add_u32 v{T}, s{S_T0}, v{T}")
        for qb in range(2):
            for half in range(2):
                for d in range(4):
                    src = V_S + 16 * qb + 8 * half + 2 * d
                    a(f"v_cvt_pk_bf16_f32 v{V_E+4*(2*qb+half)+d}, v{src}, v{src+1}")
        for qb in range(2):
            for half in range(2):
                a(f"ds_write_b128 v{T}, {vr(V_E+4*(2*qb+half),4)} offset:{qb*8192+half*1024}")
        if self.dbg == "q":
            pass
        a("s_waitcnt lgkmcnt(0)")
        a("s_barrier")
        a(f"v_lshlrev_b32 v{T}, 4, v{V_LANE}")
        a(f"s_lshl_b32 s{S_T0}, s{S_QB}, 13")
        a(f"s_add_u32 s{S_T0}, s{S_T0}, {base}")
        a(f"v_add_u32 v{T}, s{S_T0}, v{T}")
        for s in range(8):
            a(f"ds_read_b128 {ar(A_Q+4*s,4)}, v{T} offset:{s*1024}")
        a("s_waitcnt lgkmcnt(0)")

    def att_step(self, i):
        a = self.a
        n = 10 + i
        base = slot_base(n)
        rs, imm = set_imm(base)
        a.c(f"---- attention step {i}")
        a.wait_tag(f"item{n}")
        a("s_barrier")
        if n + 4 <= 26:
            dma = [(g, f"item{n+4}") for g in self.item_ops(n + 4)]
        elif n == 24:
            dma = [(g, "wo0") for g in self.wo_unit_ops(0)]
        elif n == 25:
            dma = [(g, "wo1") for g in self.wo_unit_ops(1)]
        elif n == 26:
            dma = [(g, "wo2") for g in self.wo_unit_ops(2)]
        else:
            dma = []
        has_s = i <= 15
        has_pv = i >= 1
        Sc = V_S + 16 * (i & 1)
        Sp = V_S + 16 * ((i - 1) & 1)
        nreads = 0
        if has_s:
            for s in range(8):
                a(f"ds_read_b128 {ar(A_K+4*s,4)}, v{V_KA+8*rs+s} offset:{imm}")
                nreads += 1
        vreads = []
        if has_pv:
            for s2 in range(2):
                for g in range(4):
                    for x in range(2):
                        vreads.append(f"ds_read_b64_tr_b16 {ar(A_V+16*s2+4*g+2*x,2)}, v{V_VA+4*rs+g} offset:{imm+s2*4096+x*2048}")
        valu = []
        if has_pv:
            for k in range(16):
                valu.append(f"v_fma_f32 v{V_E+k}, v{Sp+k}, s{S_C}, -v{V_MC}")
            ex = [f"v_exp_f32 v{V_E+k}, v{V_E+k}" for k in range(16)]
            seq = []
            seq += valu[0:4]
            for k in range(16):
                seq.append(ex[k])
                if k + 4 < 16:
                    seq.append(valu[k + 4])
                if k >= 1:
                    kk = k - 1
                    if i == 1 and kk == 0:
                        seq.append(f"v_mov_b32 v{V_L}, v{V_E+0}")
                    else:
                        seq.append(f"v_add_f32 v{V_L}, v{V_L}, v{V_E+kk}")
                    if kk & 1:
                        seq.append(f"v_cvt_pk_bf16_f32 v{V_P+kk//2}, v{V_E+kk-1}, v{V_E+kk}")
            seq.append("s_nop 0")
            seq.append(f"v_add_f32 v{V_L}, v{V_L}, v{V_E+15}")
            seq.append(f"v_cvt_pk_bf16_f32 v{V_P+7}, v{V_E+14}, v{V_E+15}")
            valu = seq
        vi = 0
        di = 0
        nmf = 8 if has_s else 0
        per = (len(valu) + 7) // 8 if has_s else len(valu)
        vr_issued = 0
        def issue_vreads(k):
            nonlocal vr_issued
            for _ in range(k):
                if vr_issued < len(vreads):
                    a(vreads[vr_issued]); vr_issued += 1
        if has_s:
            issue_vreads(7)
            younger = vr_issued
            for s in range(8):
                allowed = (7 - s) + vr_issued
                a(f"s_waitcnt lgkmcnt({min(allowed,15)})")
                srcc = "0" if s == 0 else vr(Sc,16)
                a(f"v_mfma_f32_32x32x16_bf16 {vr(Sc,16)}, {ar(A_K+4*s,4)}, {ar(A_Q+4*s,4)}, {srcc}")
                if s >= 1:
                    issue_vreads(1)
                for _ in range(per):
                    if vi < len(valu):
                        a(valu[vi]); vi += 1
                if di < len(dma) and (s & 1):
                    self.issue_group(dma[di][0], dma[di][1]); di += 1
        issue_vreads(16)
        while vi < len(valu):
            a(valu[vi]); vi += 1
        mx = []
        if has_s:
            TM = V_TMAX
            mx.append(f"v_max3_f32 v{TM}, v{Sc}, v{Sc+1}, v{Sc+2}")
            for k in range(3, 15, 2):
                mx.append(f"v_max3_f32 v{TM}, v{TM}, v{Sc+k}, v{Sc+k+1}")
            mx.append(f"v_max_f32 v{TM}, v{TM}, v{Sc+15}")
            mx.append(f"v_mov_b32 v{V_T}, v{TM}")
            mx.append("s_nop 1")
            mx.append(f"v_permlane32_swap_b32 v{TM}, v{V_T}")
            mx.append("s_nop 1")
            mx.append(f"v_max_f32 v{TM}, v{TM}, v{V_T}")
            mx.append(f"v_mul_f32 v{TM}, s{S_C}, v{TM}")
        if has_pv:
            a("s_waitcnt lgkmcnt(0)")
            a("s_nop 1")
            mi = 0
            cnt = 0
            for s2 in range(2):
                for g in range(4):
                    srcc = "0" if (i == 1 and s2 == 0) else vr(V_O+16*g,16)
                    a(f"v_mfma_f32_32x32x16_bf16 {vr(V_O+16*g,16)}, {ar(A_V+16*s2+4*g,4)}, {vr(V_P+4*s2,4)}, {srcc}")
                    cnt += 1
                    if di < len(dma):
                        self.issue_group(dma[di][0], dma[di][1]); di += 1
                    if cnt >= 5:
                        for _ in range(4):
                            if mi < len(mx):
                                a(mx[mi]); mi += 1
            while di < len(dma):
                self.issue_group(dma[di][0], dma[di][1]); di += 1
            while mi < len(mx):
                a(mx[mi]); mi += 1
        else:
            while di < len(dma):
                self.issue_group(dma[di][0], dma[di][1]); di += 1
            a("s_nop 7"); a("s_nop 7")
            for s_ in mx:
                a(s_)
        if has_s:
            if i == 0:
                a(f"v_mov_b32 v{V_MC}, v{V_TMAX}")
            else:
                lab = a.newlabel("L_nors")
                a(f"v_sub_f32 v{V_T}, v{V_TMAX}, v{V_MC}")
                a(f"v_cmp_lt_f32 vcc, s{S_THR}, v{V_T}")
                a(f"s_cbranch_vccz {lab}")
                a("s_nop 7"); a("s_nop 7")
                a(f"v_max_f32 v{V_T}, v{V_TMAX}, v{V_MC}")
                a(f"v_sub_f32 v{V_T+1}, v{V_MC}, v{V_T}")
                a(f"v_exp_f32 v{V_T+1}, v{V_T+1}")
                a(f"v_mov_b32 v{V_MC}, v{V_T}")
                a(f"v_mul_f32 v{V_L}, v{V_L}, v{V_T+1}")
                for k in range(64):
                    a(f"v_mul_f32 v{V_O+k}, v{V_O+k}, v{V_T+1}")
                a("s_nop 1")
                a.label(lab)

    def combine(self):
        a = self.a
        T = V_T
        a.c("---- combine the two key halves, publish O")
        a(f"v_mov_b32 v{T}, v{V_L}")
        a("s_nop 1")
        a(f"v_permlane32_swap_b32 v{V_L}, v{T}")
        a("s_nop 1")
        a(f"v_add_f32 v{V_L}, v{V_L}, v{T}")
        a("s_barrier")
        a(f"v_lshlrev_b32 v{T}, 3, v{V_LANE}")
        a(f"s_lshl_b32 s{S_T0}, s{S_WAVE}, 9")
        a(f"s_add_u32 s{S_T0}, s{S_T0}, {STATS_OFF}")
        a(f"v_add_u32 v{T}, s{S_T0}, v{T}")
        a(f"v_mov_b32 v{T+2}, v{V_MC}")
        a(f"v_mov_b32 v{T+3}, v{V_L}")
        a(f"ds_write_b64 v{T}, {vr(T+2,2)}")
        a(f"v_lshlrev_b32 v{T+1}, 4, v{V_LANE}")
        a(f"s_lshl_b32 s{S_T0}, s{S_WAVE}, 13")
        a(f"s_add_u32 s{S_T0}, s{S_T0}, 32768")
        a(f"v_add_u32 v{T+1}, s{S_T0}, v{T+1}")
        a("s_nop 7")
        for u in range(8):
            a(f"ds_write_b128 v{T+1}, {vr(V_O+32+4*u,4)} offset:{u*1024}")
        a("s_waitcnt lgkmcnt(0)")
        a("s_barrier")
        a(f"s_xor_b32 s{S_T1}, s{S_WAVE}, 2")
        a(f"v_lshlrev_b32 v{T}, 3, v{V_LANE}")
        a(f"s_lshl_b32 s{S_T0}, s{S_T1}, 9")
        a(f"s_add_u32 s{S_T0}, s{S_T0}, {STATS_OFF}")
        a(f"v_add_u32 v{T}, s{S_T0}, v{T}")
        a(f"ds_read_b64 {vr(T+2,2)}, v{T}")
        a(f"v_lshlrev_b32 v{T+1}, 4, v{V_LANE}")
        a(f"s_lshl_b32 s{S_T0}, s{S_T1}, 13")
        a(f"s_add_u32 s{S_T0}, s{S_T0}, 32768")
        a(f"v_add_u32 v{T+1}, s{S_T0}, v{T+1}")
        for u in range(8):
            a(f"ds_read_b128 {vr(V_O+32+4*u,4)}, v{T+1} offset:{u*1024}")
        a("s_waitcnt lgkmcnt(8)")
        a(f"v_max_f32 v{T+4}, v{V_MC}, v{T+2}")
        a(f"v_sub_f32 v{T+5}, v{V_MC}, v{T+4}")
        a(f"v_sub_f32 v{T+6}, v{T+2}, v{T+4}")
        a(f"v_exp_f32 v{T+5}, v{T+5}")
        a(f"v_exp_f32 v{T+6}, v{T+6}")
        a("s_nop 0")
        a(f"v_mul_f32 v{T+7}, v{T+5}, v{V_L}")
        a(f"v_fma_f32 v{T+7}, v{T+6}, v{T+3}, v{T+7}")
        a(f"v_rcp_f32 v{T+7}, v{T+7}")
        a("s_nop 0")
        a(f"v_mul_f32 v{T+5}, v{T+5}, v{T+7}")
        a(f"v_mul_f32 v{T+6}, v{T+6}, v{T+7}")
        for k in range(32):
            a(f"v_mul_f32 v{V_O+k}, v{V_O+k}, v{T+5}")
        a("s_waitcnt lgkmcnt(0)")
        a("s_barrier")
        self.issue_wo_unit(3)
        for k in range(32):
            a(f"v_fma_f32 v{V_O+k}, v{V_O+32+k}, v{T+6}, v{V_O+k}")
        for k in range(16):
            a(f"v_cvt_pk_bf16_f32 v{V_E+k}, v{V_O+2*k}, v{V_O+2*k+1}")
        a(f"v_and_b32 v{T}, 31, v{V_LANE}")
        a(f"v_lshrrev_b32 v{T+1}, 4, v{T}")
        a(f"v_lshlrev_b32 v{T+1}, 12, v{T+1}")
        a(f"v_and_b32 v{T+2}, 15, v{T}")
        a(f"v_lshl_add_u32 v{T+1}, v{T+2}, 4, v{T+1}")
        a(f"v_lshrrev_b32 v{T+2}, 5, v{V_LANE}")
        a(f"v_lshl_add_u32 v{T+1}, v{T+2}, 8, v{T+1}")
        a(f"s_lshl_b32 s{S_T0}, s{S_IDX}, 14")
        a(f"s_lshl_b32 s{S_T1}, s{S_QB}, 13")
        a(f"s_add_u32 s{S_T0}, s{S_T0}, s{S_T1}")
        a(f"s_lshl_b32 s{S_T1}, s{S_KS}, 11")
        a(f"s_add_u32 s{S_T0}, s{S_T0}, s{S_T1}")
        a(f"s_add_u32 s{S_T0}, s{S_T0}, {WS_O}")
        for g in range(2):
            for u in range(2):
                a.vmop(f"buffer_store_dwordx4 {vr(V_E+8*g+4*u,4)}, v{T+1}, {sr(SRD_WS,4)}, s{S_T0} offen offset:{g*1024+u*512} sc1", "ostore")

    def wo_consts(self):
        a = self.a
        T = V_T
        a.c("wo constants")
        for u in range(9):
            a(f"v_add_u32 v{T}, {64*u}, v{V_LANE}")
            a(f"v_mul_u32_u24 v{T+1}, 3641, v{T}")
            a(f"v_lshrrev_b32 v{T+1}, 16, v{T+1}")
            a(f"v_mul_u32_u24 v{T+2}, 18, v{T+1}")
            a(f"v_sub_u32 v{T+2}, v{T}, v{T+2}")
            a(f"v_mul_u32_u24 v{T+1}, 1152, v{T+1}")
            a(f"v_lshl_add_u32 v{T+1}, v{T+2}, 4, v{T+1}")
            a(f"v_subrev_u32 v{V_WOOFF+u}, {1024*(u%4)}, v{T+1}")
        a(f"v_lshrrev_b32 v{T}, 4, v{V_LANE}")
        a(f"v_lshrrev_b32 v{T+1}, 1, v{T}")
        a(f"v_lshlrev_b32 v{T+1}, 4, v{T+1}")
        a(f"v_and_b32 v{T+2}, 1, v{T}")
        a(f"v_lshl_add_u32 v{T+1}, v{T+2}, 2, v{T+1}")
        a(f"v_and_b32 v{T+2}, 15, v{V_LANE}")
        a(f"v_lshrrev_b32 v{T+2}, 2, v{T+2}")
        a(f"v_add_u32 v{T+1}, v{T+1}, v{T+2}")
        a(f"v_mul_u32_u24 v{T+1}, 288, v{T+1}")
        a(f"v_and_b32 v{T+2}, 3, v{V_LANE}")
        a(f"v_lshl_add_u32 v{V_WOA}, v{T+2}, 3, v{T+1}")
        a(f"v_add_u32 v{V_WOA+1}, 0x10000, v{V_WOA}")
        a(f"v_add_u32 v{V_WOA+2}, 0x20000, v{V_WOA}")

    def signal(self, region):
        a = self.a
        T = V_T
        lab = a.newlabel("L_sig")
        a(f"s_cmp_lg_u32 s{S_WAVE}, 0")
        a(f"s_cbranch_scc1 {lab}")
        a(f"s_lshl_b32 s{S_T0}, s{S_IDX}, 7")
        a(f"s_add_u32 s{S_T0}, s{S_T0}, {region}")
        a(f"v_mov_b32 v{T}, s{S_T0}")
        a(f"v_mov_b32 v{T+1}, 1")
        a("s_mov_b64 exec, 1")
        a(f"buffer_store_dword v{T+1}, v{T}, {sr(SRD_WS,4)}, 0 offen sc1")
        a("s_mov_b64 exec, -1")
        a.label(lab)

    def poll(self, srd, vaddr, nl, want_expr):
        a = self.a
        T = V_T
        lab = a.newlabel("L_poll")
        done = a.newlabel("L_pdone")
        a(f"s_mov_b64 exec, {(1<<nl)-1:#x}")
        a(f"s_mov_b32 s{S_SPIN}, 0")
        a.label(lab)
        a(f"buffer_load_dword v{T+2}, v{vaddr}, {sr(srd,4)}, 0 offen sc1")
        a("s_waitcnt vmcnt(0)")
        a(f"v_cmp_le_u32 vcc, {want_expr}, v{T+2}")
        a(f"s_add_u32 s{S_SPIN}, s{S_SPIN}, 1")
        a("s_nop 2")
        a("s_cmp_eq_u64 vcc, exec")
        a(f"s_cbranch_scc1 {done}")
        a("s_sleep 1")
        a(f"s_cmp_lt_u32 s{S_SPIN}, 0x8000")
        a(f"s_cbranch_scc1 {lab}")
        a.label(done)
        a("s_mov_b64 exec, -1")

    def check_ready(self):
        a = self.a
        T = V_T
        lab = a.newlabel("L_rdy")
        a(f"s_cmp_lg_u32 s{S_WAVE}, 0")
        a(f"s_cbranch_scc1 {lab}")
        a(f"s_lshl_b32 s{S_T0}, s{S_B}, 2")
        a(f"v_mov_b32 v{T}, s{S_T0}")
        self.poll(SRD_DBG, T, 1, 32)
        a.label(lab)

    def exchange1(self):
        a = self.a
        T = V_T
        a.c("---- exchange 1")
        a("s_waitcnt vmcnt(0)")
        self.check_ready()
        a("s_barrier")
        self.signal(WS_FLAG1)
        lab = a.newlabel("L_x1")
        a(f"s_cmp_lg_u32 s{S_WAVE}, 0")
        a(f"s_cbranch_scc1 {lab}")
        a(f"s_and_b32 s{S_T0}, s{S_IDX}, 0xfc")
        a(f"v_add_u32 v{T}, s{S_T0}, v{V_LANE}")
        a(f"v_lshlrev_b32 v{T}, 7, v{T}")
        a(f"v_add_u32 v{T}, {WS_FLAG1}, v{T}") if WS_FLAG1 else None
        self.poll(SRD_WS, T, 4, 1)
        a.label(lab)
        a("s_barrier")

    def oproj(self):
        a = self.a
        T = V_T
        a.c("---- O projection")
        a(f"v_lshlrev_b32 v{T}, 4, v{V_LANE}")
        a(f"s_and_b32 s{S_T0}, s{S_IDX}, 0xfc")
        a(f"s_lshl_b32 s{S_T0}, s{S_T0}, 14")
        a(f"s_lshl_b32 s{S_T1}, s{S_WAVE}, 12")
        a(f"s_add_u32 s{S_T0}, s{S_T0}, s{S_T1}")
        a(f"s_add_u32 s{S_T0}, s{S_T0}, {WS_O}")
        for hd in range(4):
            for tp in range(4):
                t = 4 * hd + tp
                a.vmop(f"buffer_load_dwordx4 {ar(A_OB+4*t,4)}, v{T}, {sr(SRD_WS,4)}, s{S_T0} offen offset:{tp*1024} sc1", f"ob{t}")
            if hd < 3:
                a(f"s_add_u32 s{S_T0}, s{S_T0}, 16384")
        def reads(t):
            rs, imm = set_imm(self.wo_lds(t))
            out = []
            for nb in range(9):
                for x in range(2):
                    off = imm + nb * 32 + x * 2304
                    r2, off2 = rs, off
                    if off2 >= 65536:
                        r2 += 1; off2 -= 65536
                    out.append(f"ds_read_b64_tr_b16 {ar(A_W+36*(t&1)+4*nb+2*x,2)}, v{V_WOA+r2} offset:{off2}")
            return out
        for s_ in reads(0):
            a(s_)
        for t in range(16):
            nxt = reads(t + 1) if t < 15 else []
            a.wait_tag(f"ob{t}")
            a("s_waitcnt lgkmcnt(0)")
            for nb in range(9):
                srcc = "0" if t == 0 else vr(V_ACC+4*nb,4)
                a(f"v_mfma_f32_16x16x32_bf16 {vr(V_ACC+4*nb,4)}, {ar(A_W+36*(t&1)+4*nb,4)}, {ar(A_OB+4*t,4)}, {srcc}")
                for s_ in nxt[2*nb:2*nb+2]:
                    a(s_)
        a("s_nop 7")
        for p in range(5):
            for h in range(2):
                nb = 2 * p + h
                if nb < 9:
                    a(f"v_cvt_pk_bf16_f32 v{V_E+4*p+2*h}, v{V_ACC+4*nb}, v{V_ACC+4*nb+1}")
                    a(f"v_cvt_pk_bf16_f32 v{V_E+4*p+2*h+1}, v{V_ACC+4*nb+2}, v{V_ACC+4*nb+3}")
                else:
                    a(f"v_mov_b32 v{V_E+4*p+2*h}, 0")
                    a(f"v_mov_b32 v{V_E+4*p+2*h+1}, 0")
        a(f"s_lshl_b32 s{S_T0}, s{S_B}, 2")
        a(f"s_add_u32 s{S_T0}, s{S_T0}, s{S_HH}")
        a(f"s_lshl_b32 s{S_T0}, s{S_T0}, 3")
        a(f"s_add_u32 s{S_T0}, s{S_T0}, s{S_J}")
        a(f"s_mul_i32 s{S_T0}, s{S_T0}, {PSTRIDE}")
        a(f"s_mul_i32 s{S_T1}, s{S_WAVE}, 5120")
        a(f"s_add_u32 s{S_T0}, s{S_T0}, s{S_T1}")
        a(f"s_add_u32 s{S_T0}, s{S_T0}, {WS_P}")
        for p in range(5):
            if p == 4:
                a(f"s_add_u32 s{S_T0}, s{S_T0}, 4096")
            a.vmop(f"buffer_store_dwordx4 {vr(V_E+4*p,4)}, v{T}, {sr(SRD_WS,4)}, s{S_T0} offen offset:{(p%4)*1024} sc1", "pstore")

    def exchange2(self):
        a = self.a
        T = V_T
        a.c("---- exchange 2")
        a("s_waitcnt vmcnt(0)")
        a("s_barrier")
        self.signal(WS_FLAG2)
        lab = a.newlabel("L_x2")
        a(f"s_cmp_lg_u32 s{S_WAVE}, 0")
        a(f"s_cbranch_scc1 {lab}")
        a(f"s_lshl_b32 s{S_T0}, s{S_B}, 5")
        a(f"s_add_u32 s{S_T0}, s{S_T0}, s{S_HH}")
        a(f"v_lshlrev_b32 v{T}, 2, v{V_LANE}")
        a(f"v_add_u32 v{T}, s{S_T0}, v{T}")
        a(f"v_lshlrev_b32 v{T}, 7, v{T}")
        a(f"v_add_u32 v{T}, {WS_FLAG2}, v{T}")
        self.poll(SRD_WS, T, 8, 1)
        a.label(lab)
        a("s_barrier")

    def final(self):
        a = self.a
        T = V_T
        a.c("---- final reduce")
        a(f"v_cmp_gt_u32 vcc, 160, v0")
        a(f"s_and_saveexec_b64 {sr(S_SAVE,2)}, vcc")
        a("s_cbranch_execz L_end")
        a(f"s_mul_i32 s{S_T0}, s{S_J}, 160")
        a(f"v_add_u32 v{T}, s{S_T0}, v0")
        a(f"v_lshlrev_b32 v{T+1}, 4, v{T}")
        a(f"s_lshl_b32 s{S_T0}, s{S_B}, 2")
        a(f"s_add_u32 s{S_T0}, s{S_T0}, s{S_HH}")
        a(f"s_mul_i32 s{S_T0}, s{S_T0}, {8*PSTRIDE}")
        a(f"s_add_u32 s{S_T0}, s{S_T0}, {WS_P}")
        for jj in range(8):
            a(f"buffer_load_dwordx4 {vr(V_O+4*jj,4)}, v{T+1}, {sr(SRD_WS,4)}, s{S_T0} offen sc1")
            if jj < 7:
                a(f"s_add_u32 s{S_T0}, s{S_T0}, {PSTRIDE}")
        a(f"v_mul_u32_u24 v{T+2}, 3277, v{T}")
        a(f"v_lshrrev_b32 v{T+2}, 20, v{T+2}")
        a(f"v_mul_u32_u24 v{T+3}, 320, v{T+2}")
        a(f"v_sub_u32 v{T+3}, v{T}, v{T+3}")
        a(f"v_lshrrev_b32 v{T+4}, 6, v{T+3}")
        a(f"v_and_b32 v{T+5}, 63, v{T}")
        a(f"v_and_b32 v{T+6}, 15, v{T+5}")
        a(f"v_lshl_add_u32 v{T+6}, v{T+2}, 4, v{T+6}")
        a(f"v_mul_u32_u24 v{T+6}, 1152, v{T+6}")
        a(f"v_lshrrev_b32 v{T+7}, 4, v{T+5}")
        a(f"v_lshlrev_b32 v{T+7}, 3, v{T+7}")
        a(f"v_lshl_add_u32 v{T+7}, v{T+4}, 6, v{T+7}")
        a(f"v_add_u32 v{T+6}, v{T+6}, v{T+7}")
        a(f"s_mul_i32 s{S_T0}, s{S_B}, 73728")
        a(f"s_mul_i32 s{S_T1}, s{S_HH}, 288")
        a(f"s_add_u32 s{S_T0}, s{S_T0}, s{S_T1}")
        a(f"s_mov_b32 s{S_T1}, 0xffff0000")
        acc = V_E
        for jj in range(8):
            a(f"s_waitcnt vmcnt({7-jj})")
            for d in range(4):
                src = V_O + 4 * jj + d
                if jj == 0:
                    a(f"v_lshlrev_b32 v{acc+2*d}, 16, v{src}")
                    a(f"v_and_b32 v{acc+2*d+1}, s{S_T1}, v{src}")
                else:
                    a(f"v_lshlrev_b32 v{T+8}, 16, v{src}")
                    a(f"v_and_b32 v{T+9}, s{S_T1}, v{src}")
                    a(f"v_add_f32 v{acc+2*d}, v{acc+2*d}, v{T+8}")
                    a(f"v_add_f32 v{acc+2*d+1}, v{acc+2*d+1}, v{T+9}")
        for d in range(4):
            a(f"v_cvt_pk_bf16_f32 v{T+10+d}, v{acc+2*d}, v{acc+2*d+1}")
        a(f"buffer_store_dwordx2 {vr(T+10,2)}, v{T+6}, {sr(SRD_OUT,4)}, s{S_T0} offen")
        a(f"v_cmp_gt_u32 vcc, 4, v{T+4}")
        a(f"s_and_b64 exec, exec, vcc")
        a("s_cbranch_execz L_end")
        a(f"buffer_store_dwordx2 {vr(T+12,2)}, v{T+6}, {sr(SRD_OUT,4)}, s{S_T0} offen offset:32")

    def write_stamps(self):
        if not self.ts:
            return
        a = self.a
        T = V_T
        self.stamp()
        a("s_mov_b64 exec, -1")
        a("s_waitcnt lgkmcnt(0)")
        lab = a.newlabel("L_ts")
        a(f"s_lshl_b32 s{S_T0}, s2, 2")
        a(f"s_add_u32 s{S_T0}, s{S_T0}, s{S_WAVE}")
        a(f"s_lshl_b32 s{S_T0}, s{S_T0}, 6")
        a(f"s_add_u32 s{S_T0}, s{S_T0}, {WS_TS}")
        a(f"v_mov_b32 v{T}, s{S_T0}")
        a("s_mov_b64 exec, 1")
        for k in range(self.nts):
            a(f"v_mov_b32 v{T+1}, s{S_TS+2*k}")
            a(f"buffer_store_dword v{T+1}, v{T}, {sr(SRD_WS,4)}, 0 offen offset:{4*k}")
            a("s_nop 1")

    def build(self):
        a = self.a
        self.prologue()
        for n in range(9):
            self.q_step(n)
        self.stamp()
        self.qx_step()
        self.stamp()
        for i in range(17):
            if i == 12:
                self.wo_consts()
            self.att_step(i)
        self.stamp()
        self.combine()
        self.stamp()
        self.exchange1()
        self.stamp()
        self.oproj()
        self.stamp()
        self.exchange2()
        self.stamp()
        if self.ts:
            self.final_ts()
        else:
            self.final()
        a.label("L_end")
        a("s_endpgm")
        a.label("L_codeend")
        a("s_endpgm")
        hdr = [
            "; fused GQA block: Q projection + attention + output projection (generated by gen.py)",
            f"; @launch grid=(256,1,1) block=(256,1,1) lds={LDS_BYTES}",
            '.amdgcn_target "amdgcn-amd-amdhsa--gfx950"',
            ".text",
            f".globl {KNAME}",
            ".p2align 8",
            f".type {KNAME},@function",
            f"{KNAME}:",
        ]
        ftr = [
            '.section .rodata,"a"',
            ".p2align 6",
            f".amdhsa_kernel {KNAME}",
            "  .amdhsa_next_free_vgpr 512",
            "  .amdhsa_next_free_sgpr 102",
            "  .amdhsa_accum_offset 256",
            "  .amdhsa_group_segment_fixed_size 0",
            "  .amdhsa_kernarg_size 64",
            "  .amdhsa_user_sgpr_count 2",
            "  .amdhsa_user_sgpr_kernarg_segment_ptr 1",
            "  .amdhsa_system_sgpr_workgroup_id_x 1",
            ".end_amdhsa_kernel",
        ]
        return "\n".join(hdr) + "\n" + a.text() + "\n".join(ftr) + "\n"

    def final_ts(self):
        a = self.a
        n0 = len(a.L)
        self.final()
        for k in range(n0, len(a.L)):
            a.L[k] = a.L[k].replace("L_end", "L_fin")
        a.label("L_fin")
        self.write_stamps()


if __name__ == "__main__":
    import argparse
    p = argparse.ArgumentParser()
    p.add_argument("-o", default="standalone__gqa_block_cached__near_ridge.s")
    p.add_argument("--ts", action="store_true")
    p.add_argument("--kvaux", default="")
    args = p.parse_args()
    g = Gen(ts=args.ts, kvaux=args.kvaux)
    open(args.o, "w").write(g.build())
    print("written", args.o, len(g.a.L), "lines")
```

```python
import sys, math

KNAME = "standalone__gqa_block_cached__near_ridge_kernel"

SLOT = 32768
NSLOT = 5
LDS_BYTES = 163840
STATS_OFF = 157696
WS_FLAG1 = 0
WS_FLAG2 = 32768
WS_O = 0x100000
WS_P = 0x800000
WS_TS = 0x2000000
PSTRIDE = 20480
C_SCALE = math.log2(math.e) / math.sqrt(128.0)
T_RESCALE = 8.0


def f32bits(x):
    import struct
    return struct.unpack("<I", struct.pack("<f", x))[0]


class Asm:
    def __init__(self):
        self.L = []
        self.vm = []
        self.nlabel = 0

    def __call__(self, s):
        self.L.append("    " + s)

    def label(self, name):
        self.L.append(name + ":")

    def c(self, s):
        self.L.append("    ; " + s)

    def newlabel(self, p="L"):
        self.nlabel += 1
        return f"{p}_{self.nlabel}"

    def vmop(self, s, tag):
        self(s)
        self.vm.append(tag)

    def wait_tag(self, tag, extra=""):
        idx = max(i for i, t in enumerate(self.vm) if t == tag)
        n = len(self.vm) - 1 - idx
        assert n <= 63, n
        self(f"s_waitcnt vmcnt({n}){extra}")

    def text(self):
        return "\n".join(self.L) + "\n"


S_X, S_K, S_V, S_WQ, S_WO, S_OUT, S_DBG, S_WS = 4, 6, 8, 10, 12, 14, 16, 18
SRD_X, SRD_WQ, SRD_K, SRD_V, SRD_WO, SRD_WS, SRD_OUT, SRD_DBG = 20, 24, 28, 32, 36, 40, 44, 48
S_WAVE = 52
S_B = 53
S_J = 54
S_HH = 55
S_IDX = 56
S_T0, S_T1, S_T2, S_T3 = 57, 58, 59, 60
S_WQOFF = 61
S_XOFF = 62
S_KVOFF = 63
S_LDSW = 64
S_LDSX = 65
S_C = 66
S_THR = 67
S_SPIN = 68
S_QB = 69
S_KS = 70
S_SAVE = 72
S_PC = 74
S_TS = 76
V_TID, V_LANE = 0, 1
V_KOFF = 2
V_VOFF = 6
V_WQOFF = 7
V_XOFF = 8
V_QA = 10
V_QB = 13
V_KA = 25
V_VA = 49
V_TMAX = 61
V_T = 62
V_MC = 78
V_L = 79
V_S = 80
V_P = 112
V_E = 120
V_O = 136
V_WOOFF = 200
V_WOA = 209
V_ACC = 212
V_PF = 250
A_Q = 0
A_K = 32
A_V = 64
A_OB = 96
A_W = 160


def vr(b, n=1):
    return f"v{b}" if n == 1 else f"v[{b}:{b+n-1}]"


def ar(b, n=1):
    return f"a{b}" if n == 1 else f"a[{b}:{b+n-1}]"


def sr(b, n=1):
    return f"s{b}" if n == 1 else f"s[{b}:{b+n-1}]"


def slot_base(n):
    return (n % NSLOT) * SLOT


def set_imm(addr):
    return addr // 65536, addr % 65536


class Gen:
    def __init__(self, ts=False, stop_after=None, kvaux="", dbg=None, nofuse=False):
        self.a = Asm()
        self.ts = ts
        self.nts = 0
        self.stop_after = stop_after
        self.kvaux = kvaux
        self.dbg = dbg
        self.dbgsel = [0, 1, 2, 3, 4, 5, 6, 8]

    def stamp(self):
        if not self.ts:
            return
        a = self.a
        r = S_TS + 2 * self.nts
        assert r + 1 <= 101
        a(f"s_memrealtime {sr(r,2)}")
        self.nts += 1

    def prologue(self):
        a = self.a
        a("s_cmp_ge_u32 s2, 256")
        a("s_cbranch_scc1 L_end")
        self.stamp()
        a("s_load_dwordx16 s[4:19], s[0:1], 0")
        a(f"s_getpc_b64 {sr(S_PC,2)}")
        a.label("L_pcbase")
        a(f"v_lshlrev_b32 v{V_T}, 7, v0")
        for k in range(2):
            lab = a.newlabel("L_pf")
            a(f"s_mov_b32 s{S_T0}, L_codeend-L_pcbase")
            a(f"v_cmp_gt_u32 vcc, s{S_T0}, v{V_T}")
            a(f"s_and_saveexec_b64 {sr(S_SAVE,2)}, vcc")
            a(f"s_cbranch_execz {lab}")
            a(f"global_load_dword v{V_PF}, v{V_T}, {sr(S_PC,2)}")
            a.label(lab)
            a(f"s_mov_b64 exec, {sr(S_SAVE,2)}")
            if k == 0:
                a(f"v_add_u32 v{V_T}, 0x8000, v{V_T}")
        a(f"v_lshrrev_b32 v{V_T+1}, 6, v0")
        a(f"v_and_b32 v{V_LANE}, 63, v0")
        a(f"v_readfirstlane_b32 s{S_WAVE}, v{V_T+1}")
        a(f"s_and_b32 s{S_J}, s2, 7")
        a(f"s_lshr_b32 s{S_T0}, s2, 3")
        a(f"s_lshr_b32 s{S_B}, s{S_T0}, 2")
        a(f"s_and_b32 s{S_HH}, s{S_T0}, 3")
        a(f"s_lshl_b32 s{S_IDX}, s{S_B}, 5")
        a(f"s_lshl_b32 s{S_T1}, s{S_J}, 2")
        a(f"s_add_u32 s{S_IDX}, s{S_IDX}, s{S_T1}")
        a(f"s_add_u32 s{S_IDX}, s{S_IDX}, s{S_HH}")
        a(f"s_lshl_b32 s{S_LDSW}, s{S_WAVE}, 12")
        a(f"s_lshl_b32 s{S_LDSX}, s{S_WAVE}, 11")
        a(f"s_lshl_b32 s{S_KVOFF}, s{S_WAVE}, 12")
        a(f"s_lshl_b32 s{S_WQOFF}, s{S_WAVE}, 17")
        a(f"s_mul_i32 s{S_XOFF}, s{S_WAVE}, 18432")
        a(f"s_and_b32 s{S_QB}, s{S_WAVE}, 1")
        a(f"s_lshr_b32 s{S_KS}, s{S_WAVE}, 1")
        a(f"s_mov_b32 s{S_C}, {f32bits(C_SCALE):#x}")
        a(f"s_mov_b32 s{S_THR}, {f32bits(T_RESCALE):#x}")
        L = V_LANE
        T = V_T
        a(f"v_lshrrev_b32 v{T}, 4, v{L}")
        a(f"v_and_b32 v{T+1}, 15, v{L}")
        for jj in range(4):
            a(f"v_add_u32 v{T+2}, {4*jj}, v{T}")
            a(f"v_xor_b32 v{T+2}, v{T+2}, v{T+1}")
            a(f"v_lshlrev_b32 v{T+2}, 4, v{T+2}")
            a(f"v_lshl_add_u32 v{V_KOFF+jj}, v{T}, 8, v{T+2}")
        a(f"v_lshlrev_b32 v{T+2}, 2, v{T}")
        a(f"v_xor_b32 v{T+2}, v{T+2}, v{T+1}")
        a(f"v_lshlrev_b32 v{T+2}, 4, v{T+2}")
        a(f"v_lshl_add_u32 v{V_VOFF}, v{T}, 8, v{T+2}")
        a(f"v_lshl_add_u32 v{V_WQOFF}, v{T}, 13, v{T+2}")
        a(f"v_lshrrev_b32 v{T+3}, 3, v{L}")
        a(f"v_and_b32 v{T+4}, 7, v{L}")
        a(f"v_mul_u32_u24 v{T+3}, 1152, v{T+3}")
        for e in range(2):
            a(f"v_add_u32 v{T+2}, {4*e}, v{T}")
            a(f"v_xor_b32 v{T+2}, v{T+2}, v{T+4}")
            a(f"v_lshl_add_u32 v{V_XOFF+e}, v{T+2}, 4, v{T+3}")
        a("s_waitcnt lgkmcnt(0)")
        a(f"s_mul_i32 s{S_T0}, s{S_B}, 73728")
        a(f"s_add_u32 s{SRD_X}, s{S_X}, s{S_T0}")
        a(f"s_addc_u32 s{SRD_X+1}, s{S_X+1}, 0")
        a(f"s_mov_b32 s{SRD_X+2}, 73728")
        a(f"s_mov_b32 s{SRD_X+3}, 0x20000")
        a(f"s_lshl_b32 s{S_T0}, s{S_J}, 2")
        a(f"s_add_u32 s{S_T0}, s{S_T0}, s{S_HH}")
        a(f"s_lshl_b32 s{S_T0}, s{S_T0}, 8")
        a(f"s_add_u32 s{SRD_WQ}, s{S_WQ}, s{S_T0}")
        a(f"s_addc_u32 s{SRD_WQ+1}, s{S_WQ+1}, 0")
        a(f"s_sub_u32 s{SRD_WQ+2}, 4718592, s{S_T0}")
        a(f"s_mov_b32 s{SRD_WQ+3}, 0x20000")
        a(f"s_lshl_b32 s{S_T0}, s{S_B}, 4")
        a(f"s_lshl_b32 s{S_T1}, s{S_J}, 1")
        a(f"s_add_u32 s{S_T0}, s{S_T0}, s{S_T1}")
        a(f"s_lshr_b32 s{S_T1}, s{S_HH}, 1")
        a(f"s_add_u32 s{S_T0}, s{S_T0}, s{S_T1}")
        a(f"s_lshl_b32 s{S_T0}, s{S_T0}, 18")
        a(f"s_add_u32 s{SRD_K}, s{S_K}, s{S_T0}")
        a(f"s_addc_u32 s{SRD_K+1}, s{S_K+1}, 0")
        a(f"s_mov_b32 s{SRD_K+2}, 262144")
        a(f"s_mov_b32 s{SRD_K+3}, 0x20000")
        a(f"s_add_u32 s{SRD_V}, s{S_V}, s{S_T0}")
        a(f"s_addc_u32 s{SRD_V+1}, s{S_V+1}, 0")
        a(f"s_mov_b32 s{SRD_V+2}, 262144")
        a(f"s_mov_b32 s{SRD_V+3}, 0x20000")
        for n in range(5):
            self.issue_item(n)
        a(f"s_mul_i32 s{S_T0}, s{S_J}, 589824")
        a(f"s_mul_i32 s{S_T1}, s{S_HH}, 288")
        a(f"s_add_u32 s{S_T0}, s{S_T0}, s{S_T1}")
        a(f"s_add_u32 s{SRD_WO}, s{S_WO}, s{S_T0}")
        a(f"s_addc_u32 s{SRD_WO+1}, s{S_WO+1}, 0")
        a(f"s_sub_u32 s{SRD_WO+2}, 4718592, s{S_T0}")
        a(f"s_mov_b32 s{SRD_WO+3}, 0x20000")
        a(f"s_mov_b32 s{SRD_WS}, s{S_WS}")
        a(f"s_mov_b32 s{SRD_WS+1}, s{S_WS+1}")
        a(f"s_mov_b32 s{SRD_WS+2}, 0x10000000")
        a(f"s_mov_b32 s{SRD_WS+3}, 0x20000")
        a(f"s_mov_b32 s{SRD_OUT}, s{S_OUT}")
        a(f"s_mov_b32 s{SRD_OUT+1}, s{S_OUT+1}")
        a(f"s_mov_b32 s{SRD_OUT+2}, 589824")
        a(f"s_mov_b32 s{SRD_OUT+3}, 0x20000")
        a(f"s_mov_b32 s{SRD_DBG}, s{S_DBG}")
        a(f"s_mov_b32 s{SRD_DBG+1}, s{S_DBG+1}")
        a(f"s_mov_b32 s{SRD_DBG+2}, 256")
        a(f"s_mov_b32 s{SRD_DBG+3}, 0x20000")
        a(f"s_lshl_b32 s{S_T0}, s{S_IDX}, 7")
        a(f"v_lshlrev_b32 v{T}, 15, v0")
        a(f"v_add_u32 v{T}, s{S_T0}, v{T}")
        a(f"v_mov_b32 v{T+1}, 0")
        a(f"v_cmp_gt_u32 vcc, 2, v0")
        a(f"s_and_saveexec_b64 {sr(S_SAVE,2)}, vcc")
        a("s_cbranch_execz L_noreset")
        a(f"buffer_store_dword v{T+1}, v{T}, {sr(SRD_WS,4)}, 0 offen sc1")
        a.label("L_noreset")
        a(f"s_mov_b64 exec, {sr(S_SAVE,2)}")
        a(f"v_lshrrev_b32 v{T}, 4, v{L}")
        a(f"v_and_b32 v{T+1}, 15, v{L}")
        a(f"v_lshrrev_b32 v{T+2}, 2, v{T+1}")
        a(f"v_and_b32 v{T+3}, 3, v{L}")
        a(f"v_and_b32 v{T+4}, 1, v{T}")
        a(f"v_lshrrev_b32 v{T+5}, 1, v{T}")
        a(f"v_lshl_add_u32 v{T+6}, v{T+5}, 3, v{T+2}")
        a(f"v_lshlrev_b32 v{T+6}, 8, v{T+6}")
        a(f"v_xor_b32 v{T+7}, s{S_WAVE}, v{T+2}")
        a(f"v_lshl_add_u32 v{T+6}, v{T+7}, 6, v{T+6}")
        a(f"v_lshl_add_u32 v{T+6}, v{T+4}, 5, v{T+6}")
        a(f"v_and_b32 v{T+7}, 1, v{T+3}")
        a(f"v_lshl_add_u32 v{T+6}, v{T+7}, 4, v{T+6}")
        a(f"v_lshrrev_b32 v{T+7}, 1, v{T+3}")
        a(f"v_lshl_add_u32 v{V_QA}, v{T+7}, 3, v{T+6}")
        a(f"v_add_u32 v{V_QA+1}, 0x10000, v{V_QA}")
        a(f"v_add_u32 v{V_QA+2}, 0x20000, v{V_QA}")
        a(f"v_lshl_add_u32 v{T+6}, v{T+5}, 2, v{T+2}")
        a(f"v_lshlrev_b32 v{T+6}, 8, v{T+6}")
        a(f"v_lshl_add_u32 v{T+6}, v{T+4}, 5, v{T+6}")
        a(f"v_lshl_add_u32 v{T+6}, v{T+3}, 3, v{T+6}")
        a(f"s_lshl_b32 s{S_T0}, s{S_KS}, 13")
        a(f"s_add_u32 s{S_T0}, s{S_T0}, 16384")
        a(f"v_add_u32 v{T+6}, s{S_T0}, v{T+6}")
        a(f"s_lshl_b32 s{S_T1}, s{S_KS}, 1")
        for g in range(4):
            a(f"s_xor_b32 s{S_T2}, s{S_T1}, {g}")
            a(f"v_xor_b32 v{T+7}, s{S_T2}, v{T+2}")
            a(f"v_lshl_add_u32 v{V_VA+g}, v{T+7}, 6, v{T+6}")
            a(f"v_add_u32 v{V_VA+4+g}, 0x10000, v{V_VA+g}")
            a(f"v_add_u32 v{V_VA+8+g}, 0x20000, v{V_VA+g}")
        a(f"v_and_b32 v{T+8}, 31, v{L}")
        a(f"v_lshrrev_b32 v{T+9}, 5, v{L}")
        a(f"v_lshrrev_b32 v{T+10}, 1, v{T+8}")
        a(f"v_and_b32 v{T+10}, 7, v{T+10}")
        a(f"v_xor_b32 v{T+10}, v{T+10}, v{T+9}")
        a(f"v_lshlrev_b32 v{T+11}, 7, v{T+8}")
        a(f"v_add_u32 v{T+11}, 16384, v{T+11}")
        for s in range(4):
            a(f"v_xor_b32 v{T+12}, {2*s}, v{T+10}")
            a(f"v_lshl_add_u32 v{V_QB+s}, v{T+12}, 4, v{T+11}")
            a(f"v_add_u32 v{V_QB+4+s}, 0x10000, v{V_QB+s}")
            a(f"v_add_u32 v{V_QB+8+s}, 0x20000, v{V_QB+s}")
        a(f"v_and_b32 v{T+10}, 15, v{T+8}")
        a(f"v_xor_b32 v{T+10}, v{T+10}, v{T+9}")
        a(f"v_lshlrev_b32 v{T+11}, 8, v{T+8}")
        a(f"s_lshl_b32 s{S_T0}, s{S_KS}, 13")
        a(f"v_add_u32 v{T+11}, s{S_T0}, v{T+11}")
        for s in range(8):
            a(f"v_xor_b32 v{T+12}, {2*s}, v{T+10}")
            a(f"v_lshl_add_u32 v{V_KA+s}, v{T+12}, 4, v{T+11}")
            a(f"v_add_u32 v{V_KA+8+s}, 0x10000, v{V_KA+s}")
            a(f"v_add_u32 v{V_KA+16+s}, 0x20000, v{V_KA+s}")

    def item_ops(self, n):
        base = slot_base(n)
        g = []
        if n <= 8:
            for jj in range(4):
                pre = []
                if jj == 0:
                    pre.append(f"s_add_u32 m0, s{S_LDSW}, {base}")
                pre.append(f"s_add_u32 s{S_T3}, s{S_WQOFF}, {n*64*8192 + jj*(32768-1024)}")
                pre.append(f"buffer_load_dwordx4 v{V_WQOFF}, {sr(SRD_WQ,4)}, s{S_T3} offen offset:{jj*1024} lds")
                g.append(pre)
            for e in range(2):
                pre = []
                if e == 0:
                    pre.append(f"s_add_u32 m0, s{S_LDSX}, {base+16384}")
                pre.append(f"s_add_u32 s{S_T3}, s{S_XOFF}, {128*n + e*(9216-1024)}")
                pre.append(f"buffer_load_dwordx4 v{V_XOFF+e}, {sr(SRD_X,4)}, s{S_T3} offen offset:{e*1024} lds")
                g.append(pre)
        elif 10 <= n <= 26:
            i = n - 10
            aux = self.kvaux
            if i <= 15:
                for jj in range(4):
                    pre = []
                    if jj == 0:
                        pre.append(f"s_add_u32 m0, s{S_LDSW}, {base}")
                        pre.append(f"s_add_u32 s{S_T3}, s{S_KVOFF}, {i*16384}")
                    pre.append(f"buffer_load_dwordx4 v{V_KOFF+jj}, {sr(SRD_K,4)}, s{S_T3} offen offset:{jj*1024} {aux} lds")
                    g.append(pre)
            if i >= 1:
                for jj in range(4):
                    pre = []
                    if jj == 0:
                        pre.append(f"s_add_u32 m0, s{S_LDSW}, {base+16384}")
                        pre.append(f"s_add_u32 s{S_T3}, s{S_KVOFF}, {(i-1)*16384}")
                    pre.append(f"buffer_load_dwordx4 v{V_VOFF}, {sr(SRD_V,4)}, s{S_T3} offen offset:{jj*1024} {aux} lds")
                    g.append(pre)
        return g

    def issue_group(self, grp, tag):
        a = self.a
        for s in grp[:-1]:
            a(s)
        a.vmop(grp[-1], tag)

    def issue_item(self, n):
        for grp in self.item_ops(n):
            self.issue_group(grp, f"item{n}")

    @staticmethod
    def wo_lds(t):
        return 65536 + 9216 * t if t < 10 else 9216 * (t - 10)

    def wo_unit_ops(self, U):
        g = []
        for u in range(9):
            pre = []
            if u == 0:
                pre.append(f"s_add_u32 s{S_T1}, s{S_WAVE}, {4*U}")
                pre.append(f"s_mul_i32 s{S_T2}, s{S_T1}, 9216")
                pre.append(f"s_add_u32 s{S_T0}, s{S_T2}, 65536")
                pre.append(f"s_sub_u32 s{S_T2}, s{S_T2}, 92160")
                pre.append(f"s_cmp_lt_u32 s{S_T1}, 10")
                pre.append(f"s_cselect_b32 s{S_T2}, s{S_T0}, s{S_T2}")
                pre.append(f"s_mul_i32 s{S_T3}, s{S_T1}, 36864")
            if u % 4 == 0:
                pre.append(f"s_add_u32 m0, s{S_T2}, {u*1024}")
                pre.append("s_nop 0")
            pre.append(f"buffer_load_dwordx4 v{V_WOOFF+u}, {sr(SRD_WO,4)}, s{S_T3} offen offset:{(u%4)*1024} lds")
            g.append(pre)
        return g

    def issue_wo_unit(self, U):
        for grp in self.wo_unit_ops(U):
            self.issue_group(grp, f"wo{U}")

    def q_step(self, n):
        a = self.a
        base = slot_base(n)
        a.c(f"---- Q step {n}")
        a.wait_tag(f"item{n}")
        if n == 5:
            a(f"v_mov_b32 v{V_T}, 1")
            a(f"v_mov_b32 v{V_T+1}, s{S_B}")
            a(f"v_lshlrev_b32 v{V_T+1}, 2, v{V_T+1}")
            a(f"v_cmp_eq_u32 vcc, 0, v0")
            a(f"s_and_saveexec_b64 {sr(S_SAVE,2)}, vcc")
            a("s_cbranch_execz L_noready")
            a(f"buffer_atomic_add v{V_T}, v{V_T+1}, {sr(SRD_DBG,4)}, 0 offen sc1")
            a.label("L_noready")
            a(f"s_mov_b64 exec, {sr(S_SAVE,2)}")
        a("s_barrier")
        dma = self.item_ops(n + 4) if n >= 1 else []
        rs, imm = set_imm(base)
        for s in range(4):
            a(f"ds_read_b64_tr_b16 {ar(A_K+4*s,2)}, v{V_QA+rs} offset:{imm+s*4096}")
            a(f"ds_read_b64_tr_b16 {ar(A_K+4*s+2,2)}, v{V_QA+rs} offset:{imm+s*4096+1024}")
            for qb in range(2):
                a(f"ds_read_b128 {ar(A_V+8*s+4*qb,4)}, v{V_QB+4*rs+s} offset:{imm+qb*4096}")
        di = 0
        for s in range(4):
            remaining = 16 - 4 * (s + 1)
            a(f"s_waitcnt lgkmcnt({min(remaining,15)})")
            for qb in range(2):
                src_c = vr(V_S+16*qb,16) if not (n == 0 and s == 0) else "0"
                a(f"v_mfma_f32_32x32x16_bf16 {vr(V_S+16*qb,16)}, {ar(A_K+4*s,4)}, {ar(A_V+8*s+4*qb,4)}, {src_c}")
                if di < len(dma):
                    self.issue_group(dma[di], f"item{n+4}")
                    di += 1
        while di < len(dma):
            self.issue_group(dma[di], f"item{n+4}")
            di += 1

    def qx_step(self):
        a = self.a
        n = 9
        base = slot_base(n)
        a.c("---- QX: convert Q^T accumulators to bf16 and exchange through LDS")
        dma = self.item_ops(n + 4)
        a("s_barrier")
        for grp in dma:
            self.issue_group(grp, f"item{n+4}")
        a("s_nop 7")
        a("s_nop 7")
        T = V_T
        a(f"v_lshlrev_b32 v{T}, 4, v{V_LANE}")
        a(f"s_lshl_b32 s{S_T0}, s{S_WAVE}, 11")
        a(f"s_add_u32 s{S_T0}, s{S_T0}, {base}")
        a(f"v_add_u32 v{T}, s{S_T0}, v{T}")
        for qb in range(2):
            for half in range(2):
                for d in range(4):
                    src = V_S + 16 * qb + 8 * half + 2 * d
                    a(f"v_cvt_pk_bf16_f32 v{V_E+4*(2*qb+half)+d}, v{src}, v{src+1}")
        for qb in range(2):
            for half in range(2):
                a(f"ds_write_b128 v{T}, {vr(V_E+4*(2*qb+half),4)} offset:{qb*8192+half*1024}")
        if self.dbg == "q":
            pass
        a("s_waitcnt lgkmcnt(0)")
        a("s_barrier")
        a(f"v_lshlrev_b32 v{T}, 4, v{V_LANE}")
        a(f"s_lshl_b32 s{S_T0}, s{S_QB}, 13")
        a(f"s_add_u32 s{S_T0}, s{S_T0}, {base}")
        a(f"v_add_u32 v{T}, s{S_T0}, v{T}")
        for s in range(8):
            a(f"ds_read_b128 {ar(A_Q+4*s,4)}, v{T} offset:{s*1024}")
        a("s_waitcnt lgkmcnt(0)")

    def att_step(self, i):
        a = self.a
        n = 10 + i
        base = slot_base(n)
        rs, imm = set_imm(base)
        a.c(f"---- attention step {i}")
        a.wait_tag(f"item{n}")
        a("s_barrier")
        if n + 4 <= 26:
            dma = [(g, f"item{n+4}") for g in self.item_ops(n + 4)]
        elif n == 24:
            dma = [(g, "wo0") for g in self.wo_unit_ops(0)]
        elif n == 25:
            dma = [(g, "wo1") for g in self.wo_unit_ops(1)]
        elif n == 26:
            dma = [(g, "wo2") for g in self.wo_unit_ops(2)]
        else:
            dma = []
        has_s = i <= 15
        has_pv = i >= 1
        Sc = V_S + 16 * (i & 1)
        Sp = V_S + 16 * ((i - 1) & 1)
        nreads = 0
        if has_s:
            for s in range(8):
                a(f"ds_read_b128 {ar(A_K+4*s,4)}, v{V_KA+8*rs+s} offset:{imm}")
                nreads += 1
        vreads = []
        if has_pv:
            for s2 in range(2):
                for g in range(4):
                    for x in range(2):
                        vreads.append(f"ds_read_b64_tr_b16 {ar(A_V+16*s2+4*g+2*x,2)}, v{V_VA+4*rs+g} offset:{imm+s2*4096+x*2048}")
        valu = []
        if has_pv:
            for k in range(16):
                valu.append(f"v_fma_f32 v{V_E+k}, v{Sp+k}, s{S_C}, -v{V_MC}")
            ex = [f"v_exp_f32 v{V_E+k}, v{V_E+k}" for k in range(16)]
            seq = []
            seq += valu[0:4]
            for k in range(16):
                seq.append(ex[k])
                if k + 4 < 16:
                    seq.append(valu[k + 4])
                if k >= 1:
                    kk = k - 1
                    if i == 1 and kk == 0:
                        seq.append(f"v_mov_b32 v{V_L}, v{V_E+0}")
                    else:
                        seq.append(f"v_add_f32 v{V_L}, v{V_L}, v{V_E+kk}")
                    if kk & 1:
                        seq.append(f"v_cvt_pk_bf16_f32 v{V_P+kk//2}, v{V_E+kk-1}, v{V_E+kk}")
            seq.append("s_nop 0")
            seq.append(f"v_add_f32 v{V_L}, v{V_L}, v{V_E+15}")
            seq.append(f"v_cvt_pk_bf16_f32 v{V_P+7}, v{V_E+14}, v{V_E+15}")
            valu = seq
        vi = 0
        di = 0
        nmf = 8 if has_s else 0
        per = (len(valu) + 7) // 8 if has_s else len(valu)
        vr_issued = 0
        def issue_vreads(k):
            nonlocal vr_issued
            for _ in range(k):
                if vr_issued < len(vreads):
                    a(vreads[vr_issued]); vr_issued += 1
        if has_s:
            issue_vreads(7)
            younger = vr_issued
            for s in range(8):
                allowed = (7 - s) + vr_issued
                a(f"s_waitcnt lgkmcnt({min(allowed,15)})")
                srcc = "0" if s == 0 else vr(Sc,16)
                a(f"v_mfma_f32_32x32x16_bf16 {vr(Sc,16)}, {ar(A_K+4*s,4)}, {ar(A_Q+4*s,4)}, {srcc}")
                if s >= 1:
                    issue_vreads(1)
                for _ in range(per):
                    if vi < len(valu):
                        a(valu[vi]); vi += 1
                if di < len(dma) and (s & 1):
                    self.issue_group(dma[di][0], dma[di][1]); di += 1
        issue_vreads(16)
        while vi < len(valu):
            a(valu[vi]); vi += 1
        mx = []
        if has_s:
            TM = V_TMAX
            mx.append(f"v_max3_f32 v{TM}, v{Sc}, v{Sc+1}, v{Sc+2}")
            for k in range(3, 15, 2):
                mx.append(f"v_max3_f32 v{TM}, v{TM}, v{Sc+k}, v{Sc+k+1}")
            mx.append(f"v_max_f32 v{TM}, v{TM}, v{Sc+15}")
            mx.append(f"v_mov_b32 v{V_T}, v{TM}")
            mx.append("s_nop 1")
            mx.append(f"v_permlane32_swap_b32 v{TM}, v{V_T}")
            mx.append("s_nop 1")
            mx.append(f"v_max_f32 v{TM}, v{TM}, v{V_T}")
            mx.append(f"v_mul_f32 v{TM}, s{S_C}, v{TM}")
        if has_pv:
            a("s_waitcnt lgkmcnt(0)")
            a("s_nop 1")
            mi = 0
            cnt = 0
            for s2 in range(2):
                for g in range(4):
                    srcc = "0" if (i == 1 and s2 == 0) else vr(V_O+16*g,16)
                    a(f"v_mfma_f32_32x32x16_bf16 {vr(V_O+16*g,16)}, {ar(A_V+16*s2+4*g,4)}, {vr(V_P+4*s2,4)}, {srcc}")
                    cnt += 1
                    if di < len(dma):
                        self.issue_group(dma[di][0], dma[di][1]); di += 1
                    if cnt >= 5:
                        for _ in range(4):
                            if mi < len(mx):
                                a(mx[mi]); mi += 1
            while di < len(dma):
                self.issue_group(dma[di][0], dma[di][1]); di += 1
            while mi < len(mx):
                a(mx[mi]); mi += 1
        else:
            while di < len(dma):
                self.issue_group(dma[di][0], dma[di][1]); di += 1
            a("s_nop 7"); a("s_nop 7")
            for s_ in mx:
                a(s_)
        if has_s:
            if i == 0:
                a(f"v_mov_b32 v{V_MC}, v{V_TMAX}")
            else:
                lab = a.newlabel("L_nors")
                a(f"v_sub_f32 v{V_T}, v{V_TMAX}, v{V_MC}")
                a(f"v_cmp_lt_f32 vcc, s{S_THR}, v{V_T}")
                a(f"s_cbranch_vccz {lab}")
                a("s_nop 7"); a("s_nop 7")
                a(f"v_max_f32 v{V_T}, v{V_TMAX}, v{V_MC}")
                a(f"v_sub_f32 v{V_T+1}, v{V_MC}, v{V_T}")
                a(f"v_exp_f32 v{V_T+1}, v{V_T+1}")
                a(f"v_mov_b32 v{V_MC}, v{V_T}")
                a(f"v_mul_f32 v{V_L}, v{V_L}, v{V_T+1}")
                for k in range(64):
                    a(f"v_mul_f32 v{V_O+k}, v{V_O+k}, v{V_T+1}")
                a("s_nop 1")
                a.label(lab)

    def combine(self):
        a = self.a
        T = V_T
        a.c("---- combine the two key halves, publish O")
        a(f"v_mov_b32 v{T}, v{V_L}")
        a("s_nop 1")
        a(f"v_permlane32_swap_b32 v{V_L}, v{T}")
        a("s_nop 1")
        a(f"v_add_f32 v{V_L}, v{V_L}, v{T}")
        a("s_barrier")
        a(f"v_lshlrev_b32 v{T}, 3, v{V_LANE}")
        a(f"s_lshl_b32 s{S_T0}, s{S_WAVE}, 9")
        a(f"s_add_u32 s{S_T0}, s{S_T0}, {STATS_OFF}")
        a(f"v_add_u32 v{T}, s{S_T0}, v{T}")
        a(f"v_mov_b32 v{T+2}, v{V_MC}")
        a(f"v_mov_b32 v{T+3}, v{V_L}")
        a(f"ds_write_b64 v{T}, {vr(T+2,2)}")
        a(f"v_lshlrev_b32 v{T+1}, 4, v{V_LANE}")
        a(f"s_lshl_b32 s{S_T0}, s{S_WAVE}, 13")
        a(f"s_add_u32 s{S_T0}, s{S_T0}, 32768")
        a(f"v_add_u32 v{T+1}, s{S_T0}, v{T+1}")
        a("s_nop 7")
        for u in range(8):
            a(f"ds_write_b128 v{T+1}, {vr(V_O+32+4*u,4)} offset:{u*1024}")
        a("s_waitcnt lgkmcnt(0)")
        a("s_barrier")
        a(f"s_xor_b32 s{S_T1}, s{S_WAVE}, 2")
        a(f"v_lshlrev_b32 v{T}, 3, v{V_LANE}")
        a(f"s_lshl_b32 s{S_T0}, s{S_T1}, 9")
        a(f"s_add_u32 s{S_T0}, s{S_T0}, {STATS_OFF}")
        a(f"v_add_u32 v{T}, s{S_T0}, v{T}")
        a(f"ds_read_b64 {vr(T+2,2)}, v{T}")
        a(f"v_lshlrev_b32 v{T+1}, 4, v{V_LANE}")
        a(f"s_lshl_b32 s{S_T0}, s{S_T1}, 13")
        a(f"s_add_u32 s{S_T0}, s{S_T0}, 32768")
        a(f"v_add_u32 v{T+1}, s{S_T0}, v{T+1}")
        for u in range(8):
            a(f"ds_read_b128 {vr(V_O+32+4*u,4)}, v{T+1} offset:{u*1024}")
        a("s_waitcnt lgkmcnt(8)")
        a(f"v_max_f32 v{T+4}, v{V_MC}, v{T+2}")
        a(f"v_sub_f32 v{T+5}, v{V_MC}, v{T+4}")
        a(f"v_sub_f32 v{T+6}, v{T+2}, v{T+4}")
        a(f"v_exp_f32 v{T+5}, v{T+5}")
        a(f"v_exp_f32 v{T+6}, v{T+6}")
        a("s_nop 0")
        a(f"v_mul_f32 v{T+7}, v{T+5}, v{V_L}")
        a(f"v_fma_f32 v{T+7}, v{T+6}, v{T+3}, v{T+7}")
        a(f"v_rcp_f32 v{T+7}, v{T+7}")
        a("s_nop 0")
        a(f"v_mul_f32 v{T+5}, v{T+5}, v{T+7}")
        a(f"v_mul_f32 v{T+6}, v{T+6}, v{T+7}")
        for k in range(32):
            a(f"v_mul_f32 v{V_O+k}, v{V_O+k}, v{T+5}")
        a("s_waitcnt lgkmcnt(0)")
        a("s_barrier")
        self.issue_wo_unit(3)
        for k in range(32):
            a(f"v_fma_f32 v{V_O+k}, v{V_O+32+k}, v{T+6}, v{V_O+k}")
        for k in range(16):
            a(f"v_cvt_pk_bf16_f32 v{V_E+k}, v{V_O+2*k}, v{V_O+2*k+1}")
        a(f"v_and_b32 v{T}, 31, v{V_LANE}")
        a(f"v_lshrrev_b32 v{T+1}, 4, v{T}")
        a(f"v_lshlrev_b32 v{T+1}, 12, v{T+1}")
        a(f"v_and_b32 v{T+2}, 15, v{T}")
        a(f"v_lshl_add_u32 v{T+1}, v{T+2}, 4, v{T+1}")
        a(f"v_lshrrev_b32 v{T+2}, 5, v{V_LANE}")
        a(f"v_lshl_add_u32 v{T+1}, v{T+2}, 8, v{T+1}")
        a(f"s_lshl_b32 s{S_T0}, s{S_IDX}, 14")
        a(f"s_lshl_b32 s{S_T1}, s{S_QB}, 13")
        a(f"s_add_u32 s{S_T0}, s{S_T0}, s{S_T1}")
        a(f"s_lshl_b32 s{S_T1}, s{S_KS}, 11")
        a(f"s_add_u32 s{S_T0}, s{S_T0}, s{S_T1}")
        a(f"s_add_u32 s{S_T0}, s{S_T0}, {WS_O}")
        for g in range(2):
            for u in range(2):
                a.vmop(f"buffer_store_dwordx4 {vr(V_E+8*g+4*u,4)}, v{T+1}, {sr(SRD_WS,4)}, s{S_T0} offen offset:{g*1024+u*512} sc1", "ostore")

    def wo_consts(self):
        a = self.a
        T = V_T
        a.c("wo constants")
        for u in range(9):
            a(f"v_add_u32 v{T}, {64*u}, v{V_LANE}")
            a(f"v_mul_u32_u24 v{T+1}, 3641, v{T}")
            a(f"v_lshrrev_b32 v{T+1}, 16, v{T+1}")
            a(f"v_mul_u32_u24 v{T+2}, 18, v{T+1}")
            a(f"v_sub_u32 v{T+2}, v{T}, v{T+2}")
            a(f"v_mul_u32_u24 v{T+1}, 1152, v{T+1}")
            a(f"v_lshl_add_u32 v{T+1}, v{T+2}, 4, v{T+1}")
            a(f"v_subrev_u32 v{V_WOOFF+u}, {1024*(u%4)}, v{T+1}")
        a(f"v_lshrrev_b32 v{T}, 4, v{V_LANE}")
        a(f"v_lshrrev_b32 v{T+1}, 1, v{T}")
        a(f"v_lshlrev_b32 v{T+1}, 4, v{T+1}")
        a(f"v_and_b32 v{T+2}, 1, v{T}")
        a(f"v_lshl_add_u32 v{T+1}, v{T+2}, 2, v{T+1}")
        a(f"v_and_b32 v{T+2}, 15, v{V_LANE}")
        a(f"v_lshrrev_b32 v{T+2}, 2, v{T+2}")
        a(f"v_add_u32 v{T+1}, v{T+1}, v{T+2}")
        a(f"v_mul_u32_u24 v{T+1}, 288, v{T+1}")
        a(f"v_and_b32 v{T+2}, 3, v{V_LANE}")
        a(f"v_lshl_add_u32 v{V_WOA}, v{T+2}, 3, v{T+1}")
        a(f"v_add_u32 v{V_WOA+1}, 0x10000, v{V_WOA}")
        a(f"v_add_u32 v{V_WOA+2}, 0x20000, v{V_WOA}")

    def signal(self, region):
        a = self.a
        T = V_T
        lab = a.newlabel("L_sig")
        a(f"s_cmp_lg_u32 s{S_WAVE}, 0")
        a(f"s_cbranch_scc1 {lab}")
        a(f"s_lshl_b32 s{S_T0}, s{S_IDX}, 7")
        a(f"s_add_u32 s{S_T0}, s{S_T0}, {region}")
        a(f"v_mov_b32 v{T}, s{S_T0}")
        a(f"v_mov_b32 v{T+1}, 1")
        a("s_mov_b64 exec, 1")
        a(f"buffer_store_dword v{T+1}, v{T}, {sr(SRD_WS,4)}, 0 offen sc1")
        a("s_mov_b64 exec, -1")
        a.label(lab)

    def poll(self, srd, vaddr, nl, want_expr):
        a = self.a
        T = V_T
        lab = a.newlabel("L_poll")
        done = a.newlabel("L_pdone")
        a(f"s_mov_b64 exec, {(1<<nl)-1:#x}")
        a(f"s_mov_b32 s{S_SPIN}, 0")
        a.label(lab)
        a(f"buffer_load_dword v{T+2}, v{vaddr}, {sr(srd,4)}, 0 offen sc1")
        a("s_waitcnt vmcnt(0)")
        a(f"v_cmp_le_u32 vcc, {want_expr}, v{T+2}")
        a(f"s_add_u32 s{S_SPIN}, s{S_SPIN}, 1")
        a("s_nop 2")
        a("s_cmp_eq_u64 vcc, exec")
        a(f"s_cbranch_scc1 {done}")
        a("s_sleep 1")
        a(f"s_cmp_lt_u32 s{S_SPIN}, 0x8000")
        a(f"s_cbranch_scc1 {lab}")
        a.label(done)
        a("s_mov_b64 exec, -1")

    def check_ready(self):
        a = self.a
        T = V_T
        lab = a.newlabel("L_rdy")
        a(f"s_cmp_lg_u32 s{S_WAVE}, 0")
        a(f"s_cbranch_scc1 {lab}")
        a(f"s_lshl_b32 s{S_T0}, s{S_B}, 2")
        a(f"v_mov_b32 v{T}, s{S_T0}")
        self.poll(SRD_DBG, T, 1, 32)
        a.label(lab)

    def exchange1(self):
        a = self.a
        T = V_T
        a.c("---- exchange 1")
        a("s_waitcnt vmcnt(0)")
        self.check_ready()
        a("s_barrier")
        self.signal(WS_FLAG1)
        lab = a.newlabel("L_x1")
        a(f"s_cmp_lg_u32 s{S_WAVE}, 0")
        a(f"s_cbranch_scc1 {lab}")
        a(f"s_and_b32 s{S_T0}, s{S_IDX}, 0xfc")
        a(f"v_add_u32 v{T}, s{S_T0}, v{V_LANE}")
        a(f"v_lshlrev_b32 v{T}, 7, v{T}")
        a(f"v_add_u32 v{T}, {WS_FLAG1}, v{T}") if WS_FLAG1 else None
        self.poll(SRD_WS, T, 4, 1)
        a.label(lab)
        a("s_barrier")

    def oproj(self):
        a = self.a
        T = V_T
        a.c("---- O projection")
        a(f"v_lshlrev_b32 v{T}, 4, v{V_LANE}")
        a(f"s_and_b32 s{S_T0}, s{S_IDX}, 0xfc")
        a(f"s_lshl_b32 s{S_T0}, s{S_T0}, 14")
        a(f"s_lshl_b32 s{S_T1}, s{S_WAVE}, 12")
        a(f"s_add_u32 s{S_T0}, s{S_T0}, s{S_T1}")
        a(f"s_add_u32 s{S_T0}, s{S_T0}, {WS_O}")
        for hd in range(4):
            for tp in range(4):
                t = 4 * hd + tp
                a.vmop(f"buffer_load_dwordx4 {ar(A_OB+4*t,4)}, v{T}, {sr(SRD_WS,4)}, s{S_T0} offen offset:{tp*1024} sc1", f"ob{t}")
            if hd < 3:
                a(f"s_add_u32 s{S_T0}, s{S_T0}, 16384")
        def reads(t):
            rs, imm = set_imm(self.wo_lds(t))
            out = []
            for nb in range(9):
                for x in range(2):
                    off = imm + nb * 32 + x * 2304
                    r2, off2 = rs, off
                    if off2 >= 65536:
                        r2 += 1; off2 -= 65536
                    out.append(f"ds_read_b64_tr_b16 {ar(A_W+36*(t&1)+4*nb+2*x,2)}, v{V_WOA+r2} offset:{off2}")
            return out
        for s_ in reads(0):
            a(s_)
        for t in range(16):
            nxt = reads(t + 1) if t < 15 else []
            a.wait_tag(f"ob{t}")
            a("s_waitcnt lgkmcnt(0)")
            for nb in range(9):
                srcc = "0" if t == 0 else vr(V_ACC+4*nb,4)
                a(f"v_mfma_f32_16x16x32_bf16 {vr(V_ACC+4*nb,4)}, {ar(A_W+36*(t&1)+4*nb,4)}, {ar(A_OB+4*t,4)}, {srcc}")
                for s_ in nxt[2*nb:2*nb+2]:
                    a(s_)
        a("s_nop 7")
        for p in range(5):
            for h in range(2):
                nb = 2 * p + h
                if nb < 9:
                    a(f"v_cvt_pk_bf16_f32 v{V_E+4*p+2*h}, v{V_ACC+4*nb}, v{V_ACC+4*nb+1}")
                    a(f"v_cvt_pk_bf16_f32 v{V_E+4*p+2*h+1}, v{V_ACC+4*nb+2}, v{V_ACC+4*nb+3}")
                else:
                    a(f"v_mov_b32 v{V_E+4*p+2*h}, 0")
                    a(f"v_mov_b32 v{V_E+4*p+2*h+1}, 0")
        a(f"s_lshl_b32 s{S_T0}, s{S_B}, 2")
        a(f"s_add_u32 s{S_T0}, s{S_T0}, s{S_HH}")
        a(f"s_lshl_b32 s{S_T0}, s{S_T0}, 3")
        a(f"s_add_u32 s{S_T0}, s{S_T0}, s{S_J}")
        a(f"s_mul_i32 s{S_T0}, s{S_T0}, {PSTRIDE}")
        a(f"s_mul_i32 s{S_T1}, s{S_WAVE}, 5120")
        a(f"s_add_u32 s{S_T0}, s{S_T0}, s{S_T1}")
        a(f"s_add_u32 s{S_T0}, s{S_T0}, {WS_P}")
        for p in range(5):
            if p == 4:
                a(f"s_add_u32 s{S_T0}, s{S_T0}, 4096")
            a.vmop(f"buffer_store_dwordx4 {vr(V_E+4*p,4)}, v{T}, {sr(SRD_WS,4)}, s{S_T0} offen offset:{(p%4)*1024} sc1", "pstore")

    def exchange2(self):
        a = self.a
        T = V_T
        a.c("---- exchange 2")
        a("s_waitcnt vmcnt(0)")
        a("s_barrier")
        self.signal(WS_FLAG2)
        lab = a.newlabel("L_x2")
        a(f"s_cmp_lg_u32 s{S_WAVE}, 0")
        a(f"s_cbranch_scc1 {lab}")
        a(f"s_lshl_b32 s{S_T0}, s{S_B}, 5")
        a(f"s_add_u32 s{S_T0}, s{S_T0}, s{S_HH}")
        a(f"v_lshlrev_b32 v{T}, 2, v{V_LANE}")
        a(f"v_add_u32 v{T}, s{S_T0}, v{T}")
        a(f"v_lshlrev_b32 v{T}, 7, v{T}")
        a(f"v_add_u32 v{T}, {WS_FLAG2}, v{T}")
        self.poll(SRD_WS, T, 8, 1)
        a.label(lab)
        a("s_barrier")

    def final(self):
        a = self.a
        T = V_T
        a.c("---- final reduce")
        a(f"v_cmp_gt_u32 vcc, 160, v0")
        a(f"s_and_saveexec_b64 {sr(S_SAVE,2)}, vcc")
        a("s_cbranch_execz L_end")
        a(f"s_mul_i32 s{S_T0}, s{S_J}, 160")
        a(f"v_add_u32 v{T}, s{S_T0}, v0")
        a(f"v_lshlrev_b32 v{T+1}, 4, v{T}")
        a(f"s_lshl_b32 s{S_T0}, s{S_B}, 2")
        a(f"s_add_u32 s{S_T0}, s{S_T0}, s{S_HH}")
        a(f"s_mul_i32 s{S_T0}, s{S_T0}, {8*PSTRIDE}")
        a(f"s_add_u32 s{S_T0}, s{S_T0}, {WS_P}")
        for jj in range(8):
            a(f"buffer_load_dwordx4 {vr(V_O+4*jj,4)}, v{T+1}, {sr(SRD_WS,4)}, s{S_T0} offen sc1")
            if jj < 7:
                a(f"s_add_u32 s{S_T0}, s{S_T0}, {PSTRIDE}")
        a(f"v_mul_u32_u24 v{T+2}, 3277, v{T}")
        a(f"v_lshrrev_b32 v{T+2}, 20, v{T+2}")
        a(f"v_mul_u32_u24 v{T+3}, 320, v{T+2}")
        a(f"v_sub_u32 v{T+3}, v{T}, v{T+3}")
        a(f"v_lshrrev_b32 v{T+4}, 6, v{T+3}")
        a(f"v_and_b32 v{T+5}, 63, v{T}")
        a(f"v_and_b32 v{T+6}, 15, v{T+5}")
        a(f"v_lshl_add_u32 v{T+6}, v{T+2}, 4, v{T+6}")
        a(f"v_mul_u32_u24 v{T+6}, 1152, v{T+6}")
        a(f"v_lshrrev_b32 v{T+7}, 4, v{T+5}")
        a(f"v_lshlrev_b32 v{T+7}, 3, v{T+7}")
        a(f"v_lshl_add_u32 v{T+7}, v{T+4}, 6, v{T+7}")
        a(f"v_add_u32 v{T+6}, v{T+6}, v{T+7}")
        a(f"s_mul_i32 s{S_T0}, s{S_B}, 73728")
        a(f"s_mul_i32 s{S_T1}, s{S_HH}, 288")
        a(f"s_add_u32 s{S_T0}, s{S_T0}, s{S_T1}")
        a(f"s_mov_b32 s{S_T1}, 0xffff0000")
        acc = V_E
        for jj in range(8):
            a(f"s_waitcnt vmcnt({7-jj})")
            for d in range(4):
                src = V_O + 4 * jj + d
                if jj == 0:
                    a(f"v_lshlrev_b32 v{acc+2*d}, 16, v{src}")
                    a(f"v_and_b32 v{acc+2*d+1}, s{S_T1}, v{src}")
                else:
                    a(f"v_lshlrev_b32 v{T+8}, 16, v{src}")
                    a(f"v_and_b32 v{T+9}, s{S_T1}, v{src}")
                    a(f"v_add_f32 v{acc+2*d}, v{acc+2*d}, v{T+8}")
                    a(f"v_add_f32 v{acc+2*d+1}, v{acc+2*d+1}, v{T+9}")
        for d in range(4):
            a(f"v_cvt_pk_bf16_f32 v{T+10+d}, v{acc+2*d}, v{acc+2*d+1}")
        a(f"buffer_store_dwordx2 {vr(T+10,2)}, v{T+6}, {sr(SRD_OUT,4)}, s{S_T0} offen")
        a(f"v_cmp_gt_u32 vcc, 4, v{T+4}")
        a(f"s_and_b64 exec, exec, vcc")
        a("s_cbranch_execz L_end")
        a(f"buffer_store_dwordx2 {vr(T+12,2)}, v{T+6}, {sr(SRD_OUT,4)}, s{S_T0} offen offset:32")

    def write_stamps(self):
        if not self.ts:
            return
        a = self.a
        T = V_T
        self.stamp()
        a("s_mov_b64 exec, -1")
        a("s_waitcnt lgkmcnt(0)")
        if self.ts == "dbg":
            sel = self.dbgsel
            a("s_mov_b64 exec, 1")
            for k, st in enumerate(sel):
                if k == 0:
                    a(f"s_not_b32 s{S_T0}, s{S_TS+2*st}")
                    a(f"v_mov_b32 v{T+1}, s{S_T0}")
                else:
                    a(f"v_mov_b32 v{T+1}, s{S_TS+2*st}")
                a(f"v_mov_b32 v{T}, {32+4*k}")
                a(f"buffer_atomic_umax v{T+1}, v{T}, {sr(SRD_DBG,4)}, 0 offen sc1")
                a("s_nop 1")
            return
        lab = a.newlabel("L_ts")
        a(f"s_lshl_b32 s{S_T0}, s2, 2")
        a(f"s_add_u32 s{S_T0}, s{S_T0}, s{S_WAVE}")
        a(f"s_lshl_b32 s{S_T0}, s{S_T0}, 6")
        a(f"s_add_u32 s{S_T0}, s{S_T0}, {WS_TS}")
        a(f"v_mov_b32 v{T}, s{S_T0}")
        a("s_mov_b64 exec, 1")
        for k in range(self.nts):
            a(f"v_mov_b32 v{T+1}, s{S_TS+2*k}")
            a(f"buffer_store_dword v{T+1}, v{T}, {sr(SRD_WS,4)}, 0 offen offset:{4*k}")
            a("s_nop 1")

    def build(self):
        a = self.a
        self.prologue()
        for n in range(9):
            self.q_step(n)
        self.stamp()
        self.qx_step()
        self.stamp()
        for i in range(17):
            if i == 12:
                self.wo_consts()
            self.att_step(i)
        self.stamp()
        self.combine()
        self.stamp()
        self.exchange1()
        self.stamp()
        self.oproj()
        self.stamp()
        self.exchange2()
        self.stamp()
        if self.ts:
            self.final_ts()
        else:
            self.final()
        a.label("L_end")
        a("s_endpgm")
        a.label("L_codeend")
        a("s_endpgm")
        hdr = [
            "; fused GQA block: Q projection + attention + output projection (generated by gen.py)",
            f"; @launch grid=(256,1,1) block=(256,1,1) lds={LDS_BYTES}",
            '.amdgcn_target "amdgcn-amd-amdhsa--gfx950"',
            ".text",
            f".globl {KNAME}",
            ".p2align 8",
            f".type {KNAME},@function",
            f"{KNAME}:",
        ]
        ftr = [
            '.section .rodata,"a"',
            ".p2align 6",
            f".amdhsa_kernel {KNAME}",
            "  .amdhsa_next_free_vgpr 512",
            "  .amdhsa_next_free_sgpr 102",
            "  .amdhsa_accum_offset 256",
            "  .amdhsa_group_segment_fixed_size 0",
            "  .amdhsa_kernarg_size 64",
            "  .amdhsa_user_sgpr_count 2",
            "  .amdhsa_user_sgpr_kernarg_segment_ptr 1",
            "  .amdhsa_system_sgpr_workgroup_id_x 1",
            ".end_amdhsa_kernel",
        ]
        return "\n".join(hdr) + "\n" + a.text() + "\n".join(ftr) + "\n"

    def final_ts(self):
        a = self.a
        n0 = len(a.L)
        self.final()
        for k in range(n0, len(a.L)):
            a.L[k] = a.L[k].replace("L_end", "L_fin")
        a.label("L_fin")
        self.write_stamps()


if __name__ == "__main__":
    import argparse
    p = argparse.ArgumentParser()
    p.add_argument("-o", default="standalone__gqa_block_cached__near_ridge.s")
    p.add_argument("--ts", default=False)
    p.add_argument("--kvaux", default="")
    args = p.parse_args()
    g = Gen(ts=args.ts, kvaux=args.kvaux)
    open(args.o, "w").write(g.build())
    print("written", args.o, len(g.a.L), "lines")
```

```python
import sys, math, struct

KNAME = "standalone__gqa_block_cached__near_ridge_kernel"

UNIT = 16384
LDS_BYTES = 163840
QSLOT = [0, 24576, 49152]
QX_OFF = 65536
SCR_OFF = 81920
STATS_OFF = 160768
WS_FLAG1 = 0
WS_FLAG2 = 32768
WS_O = 0x100000
WS_P = 0x800000
WS_TS = 0x2000000
PSTRIDE = 20480
C_SCALE = math.log2(math.e) / math.sqrt(128.0)
T_RESCALE = 8.0
NW = 5


def f32bits(x):
    return struct.unpack("<I", struct.pack("<f", x))[0]


def phys(u):
    return (5 + u) % 10


def kunit(i):
    return 0 if i == 0 else 2 * i - 1


def vunit(i):
    return 31 if i == 15 else 2 * i + 2


def unit_desc(u):
    if u == 0:
        return ("K", 0)
    if u == 31:
        return ("V", 15)
    if u & 1:
        return ("K", (u + 1) // 2)
    return ("V", (u - 2) // 2)


def wo_lds(t):
    return 114688 + 9216 * t if t < 5 else 9216 * (t - 5)


class Asm:
    def __init__(self, pfx):
        self.L = []
        self.vm = []
        self.nlabel = 0
        self.pfx = pfx
        self.nbar = 0

    def __call__(self, s):
        self.L.append("    " + s)

    def label(self, name):
        self.L.append(name + ":")

    def c(self, s):
        self.L.append("    ; " + s)

    def newlabel(self, p="L"):
        self.nlabel += 1
        return f"{p}_{self.pfx}{self.nlabel}"

    def vmop(self, s, tag):
        self(s)
        self.vm.append(tag)

    def wait_tag(self, tag):
        idx = [i for i, t in enumerate(self.vm) if t == tag]
        assert idx, tag
        n = min(len(self.vm) - 1 - idx[-1], 63)
        self(f"s_waitcnt vmcnt({n})")

    def barrier(self, name):
        self.nbar += 1
        self.bars = getattr(self, "bars", []) + [name]
        self(f"s_barrier        ; {name}")

    def text(self):
        return "\n".join(self.L) + "\n"


S_X, S_K, S_V, S_WQ, S_WO, S_OUT, S_DBG, S_WS = 4, 6, 8, 10, 12, 14, 16, 18
SRD_X, SRD_WQ, SRD_K, SRD_V, SRD_WO, SRD_WS, SRD_OUT, SRD_DBG = 20, 24, 28, 32, 36, 40, 44, 48
S_WAVE = 52
S_B = 53
S_J = 54
S_HH = 55
S_IDX = 56
S_T0, S_T1, S_T2, S_T3 = 57, 58, 59, 60
S_SWAP = 61
S_W4K = 63
S_C = 66
S_THR = 67
S_SPIN = 68
S_QB = 69
S_KS = 70
S_SLOT = 71
S_SAVE = 72
S_PC = 74
S_TS = 76

ACC_OFF = 144
V_LANE = 1
V_KA = 2
V_VA = 10
V_L16 = 14
V_TMAX = 15
V_MC = 16
V_L = 17
V_T = 18
V_QA = 30
V_QB = 31
V_CST, V_CSR, V_CW, V_CR, V_OST = 35, 36, 37, 38, 39
V_P = 40
V_S = 48
V_O = 80
V_DK = 30
V_ACC = 80
V_E = 116
V_WOA = 136
A_Q = 0
A_K = 32
A_V = 64
A_OB = 0
A_W = 64
V_EKOFF = 80
V_EVOFF = 84
V_PFD = 88

L_KOFF = 2
L_VOFF = 6
L_WQOFF = 7
L_XOFF = 8
L_WOOFF = 10
L_T = 20
L_RDY = 32


def vr(b, n=1):
    return f"v{b}" if n == 1 else f"v[{b}:{b+n-1}]"


def ar(b, n=1):
    return f"a{b}" if n == 1 else f"a[{b}:{b+n-1}]"


def sr(b, n=1):
    return f"s{b}" if n == 1 else f"s[{b}:{b+n-1}]"


class Gen:
    def __init__(self, ts=False, kvaux="", stampset=None, touch=True, LA=5, swap=True, early=3, opts=None):
        self.a = Asm("c")
        self.l = Asm("l")
        self.ts = ts
        self.nts = {"c": 0, "l": 0}
        self.kvaux = kvaux
        self.touch = touch
        self.LA = LA
        self.swap = swap
        self.early = early
        self.opts = opts or {}
        self.dbgsel = [0, 1, 2, 3, 4, 5, 6, 8]
        self.stampset = stampset or ["start", "qend", "qx", "att", "comb", "ex1", "oproj", "ex2", "end"]
        self.stampnames = {"c": [], "l": []}

    def stamp(self, name="end", who="c"):
        if not self.ts or name not in self.stampset:
            return
        a = self.a if who == "c" else self.l
        self.stampnames[who].append(name)
        r = S_TS + 2 * self.nts[who]
        assert r + 1 <= 101
        a(f"s_memrealtime {sr(r,2)}")
        self.nts[who] += 1

    def bar(self, name):
        self.a.barrier(name)

    def q_item_ops(self, n):
        base = QSLOT[n % 3]
        g = []
        for j in range(16):
            pre = []
            if j % 4 == 0:
                pre.append(f"s_mov_b32 m0, {base + (j//4)*4096}")
            pre.append(f"s_mov_b32 s{S_T3}, {n*64*8192 + j*32768 - (j%4)*1024}")
            pre.append(f"buffer_load_dwordx4 v{L_WQOFF}, {sr(SRD_WQ,4)}, s{S_T3} offen offset:{(j%4)*1024} lds")
            g.append(pre)
        for j in range(8):
            pre = []
            if j % 4 == 0:
                pre.append(f"s_mov_b32 m0, {base + 16384 + (j//4)*4096}")
            pre.append(f"s_mov_b32 s{S_T3}, {128*n + j*9216 - (j%4)*1024}")
            pre.append(f"buffer_load_dwordx4 v{L_XOFF+(j&1)}, {sr(SRD_X,4)}, s{S_T3} offen offset:{(j%4)*1024} lds")
            g.append(pre)
        return g

    def unit_ops(self, u, who):
        kind, i = unit_desc(u)
        base = phys(u) * UNIT
        srd = SRD_K if kind == "K" else SRD_V
        aux = self.kvaux
        g = []
        if who == "l":
            for j in range(16):
                pre = []
                if j == 0 and self.swap:
                    pre.append(f"s_xor_b32 s{S_T2}, s{S_SWAP}, {i*16384}")
                if j % 4 == 0:
                    pre.append(f"s_mov_b32 m0, {base + (j//4)*4096}")
                    if self.swap:
                        pre.append(f"s_add_u32 s{S_T3}, s{S_T2}, {(j//4)*4096}")
                    else:
                        pre.append(f"s_mov_b32 s{S_T3}, {i*16384 + (j//4)*4096}")
                voff = L_KOFF + (j & 3) if kind == "K" else L_VOFF
                pre.append(f"buffer_load_dwordx4 v{voff}, {sr(srd,4)}, s{S_T3} offen offset:{(j%4)*1024} {aux} lds")
                g.append(pre)
        else:
            for jj in range(4):
                pre = []
                if jj == 0:
                    pre.append(f"s_add_u32 m0, s{S_W4K}, {base}")
                    if self.swap:
                        pre.append(f"s_xor_b32 s{S_T3}, s{S_SWAP}, {i*16384}")
                        pre.append(f"s_add_u32 s{S_T3}, s{S_T3}, s{S_W4K}")
                    else:
                        pre.append(f"s_add_u32 s{S_T3}, s{S_W4K}, {i*16384}")
                voff = V_EKOFF + jj if kind == "K" else V_EVOFF
                pre.append(f"buffer_load_dwordx4 v{voff}, {sr(srd,4)}, s{S_T3} offen offset:{jj*1024} {aux} lds")
                g.append(pre)
        return g

    def wo_kstep_ops(self, t):
        g = []
        base = wo_lds(t)
        for u in range(9):
            pre = []
            if u == 0:
                pre.append(f"s_mov_b32 s{S_T3}, {t*36864}")
            if u % 4 == 0:
                pre.append(f"s_mov_b32 m0, {base + u*1024}")
                pre.append("s_nop 0")
            pre.append(f"buffer_load_dwordx4 v{L_WOOFF+u}, {sr(SRD_WO,4)}, s{S_T3} offen offset:{(u%4)*1024} lds")
            g.append(pre)
        return g

    @staticmethod
    def issue(a, groups, tag):
        for grp in groups:
            for s in grp[:-1]:
                a(s)
            a.vmop(grp[-1], tag)

    def dma_voffsets(self, a, T, koff, voff, wqoff=None, xoff=None):
        L = V_LANE
        a(f"v_lshrrev_b32 v{T}, 4, v{L}")
        a(f"v_and_b32 v{T+1}, 15, v{L}")
        a(f"v_lshlrev_b32 v{T+2}, 2, v{T}")
        a(f"v_xor_b32 v{T+2}, v{T+2}, v{T+1}")
        a(f"v_lshlrev_b32 v{T+2}, 4, v{T+2}")
        a(f"v_lshl_add_u32 v{voff}, v{T}, 8, v{T+2}")
        if wqoff is not None:
            a(f"v_lshl_add_u32 v{wqoff}, v{T}, 13, v{T+2}")
            a(f"v_lshrrev_b32 v{T+3}, 3, v{L}")
            a(f"v_and_b32 v{T+4}, 7, v{L}")
            a(f"v_mul_u32_u24 v{T+3}, 1152, v{T+3}")
            for e in range(2):
                a(f"v_add_u32 v{T+2}, {4*e}, v{T}")
                a(f"v_xor_b32 v{T+2}, v{T+2}, v{T+4}")
                a(f"v_lshl_add_u32 v{xoff+e}, v{T+2}, 4, v{T+3}")
        for jj in range(4):
            a(f"v_add_u32 v{T+2}, {4*jj}, v{T}")
            a(f"v_xor_b32 v{T+2}, v{T+2}, v{T+1}")
            a(f"v_lshlrev_b32 v{T+2}, 4, v{T+2}")
            a(f"v_lshl_add_u32 v{koff+jj}, v{T}, 8, v{T+2}")

    def prologue(self):
        a = self.a
        L, T = V_LANE, V_T
        a("s_cmp_ge_u32 s2, 256")
        a("s_cbranch_scc1 L_end")
        self.stamp("start")
        a("s_load_dwordx16 s[4:19], s[0:1], 0")
        a(f"s_getpc_b64 {sr(S_PC,2)}")
        a.label("L_pcbase")
        a(f"v_lshrrev_b32 v{T+1}, 6, v0")
        a(f"v_and_b32 v{L}, 63, v0")
        a(f"v_readfirstlane_b32 s{S_WAVE}, v{T+1}")
        a(f"s_and_b32 s{S_J}, s2, 7")
        a(f"s_lshr_b32 s{S_SLOT}, s2, 3")
        a(f"s_lshr_b32 s{S_B}, s{S_SLOT}, 2")
        a(f"s_and_b32 s{S_HH}, s{S_SLOT}, 3")
        a(f"s_lshl_b32 s{S_IDX}, s{S_B}, 5")
        a(f"s_lshl_b32 s{S_T1}, s{S_J}, 2")
        a(f"s_add_u32 s{S_IDX}, s{S_IDX}, s{S_T1}")
        a(f"s_add_u32 s{S_IDX}, s{S_IDX}, s{S_HH}")
        a(f"s_and_b32 s{S_SWAP}, s{S_HH}, 1")
        a(f"s_lshl_b32 s{S_SWAP}, s{S_SWAP}, 14")
        a(f"s_mul_i32 s{S_T0}, s{S_B}, 73728")
        a(f"s_lshl_b32 s{S_T1}, s{S_J}, 2")
        a(f"s_add_u32 s{S_T1}, s{S_T1}, s{S_HH}")
        a(f"s_lshl_b32 s{S_T1}, s{S_T1}, 8")
        a(f"s_lshl_b32 s{S_T2}, s{S_B}, 4")
        a(f"s_lshl_b32 s{S_T3}, s{S_J}, 1")
        a(f"s_add_u32 s{S_T2}, s{S_T2}, s{S_T3}")
        a(f"s_lshr_b32 s{S_T3}, s{S_HH}, 1")
        a(f"s_add_u32 s{S_T2}, s{S_T2}, s{S_T3}")
        a(f"s_lshl_b32 s{S_T2}, s{S_T2}, 18")
        a(f"s_mov_b32 s{SRD_X+2}, 73728")
        a(f"s_mov_b32 s{SRD_X+3}, 0x20000")
        a(f"s_sub_u32 s{SRD_WQ+2}, 4718592, s{S_T1}")
        a(f"s_mov_b32 s{SRD_WQ+3}, 0x20000")
        a(f"s_mov_b32 s{SRD_K+2}, 262144")
        a(f"s_mov_b32 s{SRD_K+3}, 0x20000")
        a(f"s_mov_b32 s{SRD_V+2}, 262144")
        a(f"s_mov_b32 s{SRD_V+3}, 0x20000")
        a(f"s_mov_b32 s{SRD_WS+2}, 0x10000000")
        a(f"s_mov_b32 s{SRD_WS+3}, 0x20000")
        a(f"s_cmp_lg_u32 s{S_WAVE}, 4")
        a(f"s_cbranch_scc1 L_compute")
        a("@@LOADER@@")
        a.label("L_compute")
        a(f"s_and_b32 s{S_QB}, s{S_WAVE}, 1")
        a(f"s_lshr_b32 s{S_KS}, s{S_WAVE}, 1")
        a(f"s_lshl_b32 s{S_W4K}, s{S_WAVE}, 12")
        a(f"v_and_b32 v{T}, 0x7f, v0")
        a(f"v_lshrrev_b32 v{T+1}, 3, v{T}")
        a(f"v_and_b32 v{T+2}, 7, v{T}")
        a(f"s_lshl_b32 s{S_SAVE}, s{S_SLOT}, 4")
        a(f"v_add_u32 v{T+1}, s{S_SAVE}, v{T+1}")
        a("s_waitcnt lgkmcnt(0)")
        self.srds(a)
        if self.touch:
            lb = a.newlabel("L_tx"); lj = a.newlabel("L_tj")
            a(f"s_cmp_ge_u32 s{S_WAVE}, 2")
            a(f"s_cbranch_scc1 {lb}")
            a(f"v_add_u32 v{T+1}, 64, v{T+1}")
            a(f"v_lshlrev_b32 v{T+1}, 13, v{T+1}")
            a(f"v_lshl_add_u32 v{T+1}, v{T+2}, 7, v{T+1}")
            a(f"s_lshl_b32 s{S_SAVE}, s{S_J}, 10")
            a(f"v_add_u32 v{T+1}, s{S_SAVE}, v{T+1}")
            a(f"global_load_dword v{V_PFD}, v{T+1}, {sr(S_WQ,2)}")
            a(f"s_branch {lj}")
            a.label(lb)
            a(f"v_mul_u32_u24 v{T+1}, 1152, v{T+1}")
            a(f"v_lshl_add_u32 v{T+1}, v{T+2}, 7, v{T+1}")
            a(f"global_load_dword v{V_PFD}, v{T+1}, {sr(S_X,2)} offset:128")
            a.label(lj)
        a(f"s_lshl_b32 s{S_SAVE}, s{S_WAVE}, 14")
        a(f"v_lshlrev_b32 v{T}, 7, v{L}")
        a(f"v_add_u32 v{T}, s{S_SAVE}, v{T}")
        a(f"s_mov_b32 s{S_SPIN}, L_codeend-L_pcbase")
        for k in range(2):
            lab = a.newlabel("L_pf")
            a(f"v_cmp_gt_u32 vcc, s{S_SPIN}, v{T}")
            a(f"s_and_saveexec_b64 {sr(S_SAVE,2)}, vcc")
            a(f"s_cbranch_execz {lab}")
            a(f"global_load_dword v{V_PFD+1+k}, v{T}, {sr(S_PC,2)}")
            a.label(lab)
            a(f"s_mov_b64 exec, {sr(S_SAVE,2)}")
            a(f"v_add_u32 v{T}, 0x2000, v{T}")
        a(f"s_mov_b32 s{S_C}, {f32bits(C_SCALE):#x}")
        a(f"s_mov_b32 s{S_THR}, {f32bits(T_RESCALE):#x}")
        a(f"s_mov_b32 s{SRD_OUT}, s{S_OUT}")
        a(f"s_mov_b32 s{SRD_OUT+1}, s{S_OUT+1}")
        a(f"s_mov_b32 s{SRD_OUT+2}, 589824")
        a(f"s_mov_b32 s{SRD_OUT+3}, 0x20000")
        a(f"v_lshrrev_b32 v{T}, 4, v{L}")
        a(f"v_and_b32 v{T+1}, 15, v{L}")
        a(f"v_lshrrev_b32 v{T+2}, 2, v{T+1}")
        a(f"v_and_b32 v{T+3}, 3, v{L}")
        a(f"v_and_b32 v{T+4}, 1, v{T}")
        a(f"v_lshrrev_b32 v{T+5}, 1, v{T}")
        a(f"v_lshl_add_u32 v{T+6}, v{T+5}, 3, v{T+2}")
        a(f"v_lshlrev_b32 v{T+6}, 8, v{T+6}")
        a(f"v_xor_b32 v{T+7}, s{S_WAVE}, v{T+2}")
        a(f"v_lshl_add_u32 v{T+6}, v{T+7}, 6, v{T+6}")
        a(f"v_lshl_add_u32 v{T+6}, v{T+4}, 5, v{T+6}")
        a(f"v_and_b32 v{T+7}, 1, v{T+3}")
        a(f"v_lshl_add_u32 v{T+6}, v{T+7}, 4, v{T+6}")
        a(f"v_lshrrev_b32 v{T+7}, 1, v{T+3}")
        a(f"v_lshl_add_u32 v{V_QA}, v{T+7}, 3, v{T+6}")
        a(f"v_and_b32 v{T+8}, 31, v{L}")
        a(f"v_lshrrev_b32 v{T+9}, 5, v{L}")
        a(f"v_lshrrev_b32 v{T+10}, 1, v{T+8}")
        a(f"v_and_b32 v{T+10}, 7, v{T+10}")
        a(f"v_xor_b32 v{T+10}, v{T+10}, v{T+9}")
        a(f"v_lshlrev_b32 v{T+11}, 7, v{T+8}")
        a(f"v_add_u32 v{T+11}, 16384, v{T+11}")
        for s in range(4):
            a(f"v_xor_b32 v{T+9}, {2*s}, v{T+10}")
            a(f"v_lshl_add_u32 v{V_QB+s}, v{T+9}, 4, v{T+11}")
        a(f"v_lshlrev_b32 v{V_L16}, 4, v{L}")
        self.dma_voffsets(a, T, V_EKOFF, V_EVOFF)
        self.att_consts()
        self.comb_consts()

    def srds(self, a):
        a(f"s_add_u32 s{SRD_X}, s{S_X}, s{S_T0}")
        a(f"s_addc_u32 s{SRD_X+1}, s{S_X+1}, 0")
        a(f"s_add_u32 s{SRD_WQ}, s{S_WQ}, s{S_T1}")
        a(f"s_addc_u32 s{SRD_WQ+1}, s{S_WQ+1}, 0")
        a(f"s_add_u32 s{SRD_K}, s{S_K}, s{S_T2}")
        a(f"s_addc_u32 s{SRD_K+1}, s{S_K+1}, 0")
        a(f"s_add_u32 s{SRD_V}, s{S_V}, s{S_T2}")
        a(f"s_addc_u32 s{SRD_V+1}, s{S_V+1}, 0")
        a(f"s_mov_b32 s{SRD_WS}, s{S_WS}")
        a(f"s_mov_b32 s{SRD_WS+1}, s{S_WS+1}")

    def att_consts(self):
        a = self.a
        L, T = V_LANE, V_T
        a.c("attention constants (register set 0 = LDS base 0)")
        a(f"v_lshrrev_b32 v{T}, 4, v{L}")
        a(f"v_and_b32 v{T+1}, 15, v{L}")
        a(f"v_lshrrev_b32 v{T+2}, 2, v{T+1}")
        a(f"v_and_b32 v{T+3}, 3, v{L}")
        a(f"v_and_b32 v{T+4}, 1, v{T}")
        a(f"v_lshrrev_b32 v{T+5}, 1, v{T}")
        a(f"v_lshl_add_u32 v{T+6}, v{T+5}, 2, v{T+2}")
        a(f"v_lshlrev_b32 v{T+6}, 8, v{T+6}")
        a(f"v_lshl_add_u32 v{T+6}, v{T+4}, 5, v{T+6}")
        a(f"v_lshl_add_u32 v{T+6}, v{T+3}, 3, v{T+6}")
        a(f"s_lshl_b32 s{S_T0}, s{S_KS}, 13")
        a(f"v_add_u32 v{T+6}, s{S_T0}, v{T+6}")
        a(f"s_lshl_b32 s{S_T1}, s{S_KS}, 1")
        for g in range(4):
            a(f"s_xor_b32 s{S_T2}, s{S_T1}, {g}")
            a(f"v_xor_b32 v{T+7}, s{S_T2}, v{T+2}")
            a(f"v_lshl_add_u32 v{V_VA+g}, v{T+7}, 6, v{T+6}")
        a(f"v_and_b32 v{T+8}, 31, v{L}")
        a(f"v_lshrrev_b32 v{T+9}, 5, v{L}")
        a(f"v_and_b32 v{T+10}, 15, v{T+8}")
        a(f"v_xor_b32 v{T+10}, v{T+10}, v{T+9}")
        a(f"v_lshlrev_b32 v{T+11}, 8, v{T+8}")
        a(f"v_add_u32 v{T+11}, s{S_T0}, v{T+11}")
        for s in range(8):
            a(f"v_xor_b32 v{T+9}, {2*s}, v{T+10}")
            a(f"v_lshl_add_u32 v{V_KA+s}, v{T+9}, 4, v{T+11}")
        self.kset = 0
        self.vset = 0

    def comb_consts(self):
        a = self.a
        L, T = V_LANE, V_T
        a.c("combine constants")
        a(f"v_lshlrev_b32 v{T}, 3, v{L}")
        a(f"s_lshl_b32 s{S_T0}, s{S_WAVE}, 9")
        a(f"s_add_u32 s{S_T0}, s{S_T0}, {STATS_OFF}")
        a(f"v_add_u32 v{V_CST}, s{S_T0}, v{T}")
        a(f"s_xor_b32 s{S_T1}, s{S_WAVE}, 2")
        a(f"s_lshl_b32 s{S_T0}, s{S_T1}, 9")
        a(f"s_add_u32 s{S_T0}, s{S_T0}, {STATS_OFF}")
        a(f"v_add_u32 v{V_CSR}, s{S_T0}, v{T}")
        a(f"s_lshl_b32 s{S_T0}, s{S_WAVE}, 13")
        a(f"s_add_u32 s{S_T0}, s{S_T0}, {SCR_OFF}")
        a(f"v_add_u32 v{V_CW}, s{S_T0}, v{V_L16}")
        a(f"s_lshl_b32 s{S_T0}, s{S_T1}, 13")
        a(f"s_add_u32 s{S_T0}, s{S_T0}, {SCR_OFF}")
        a(f"v_add_u32 v{V_CR}, s{S_T0}, v{V_L16}")
        a(f"v_and_b32 v{T}, 31, v{L}")
        a(f"v_lshrrev_b32 v{T+1}, 4, v{T}")
        a(f"v_lshlrev_b32 v{T+1}, 12, v{T+1}")
        a(f"v_and_b32 v{T+2}, 15, v{T}")
        a(f"v_lshl_add_u32 v{T+1}, v{T+2}, 4, v{T+1}")
        a(f"v_lshrrev_b32 v{T+2}, 5, v{L}")
        a(f"v_lshl_add_u32 v{T+1}, v{T+2}, 8, v{T+1}")
        a(f"s_lshl_b32 s{S_T0}, s{S_IDX}, 14")
        a(f"s_lshl_b32 s{S_T1}, s{S_QB}, 13")
        a(f"s_add_u32 s{S_T0}, s{S_T0}, s{S_T1}")
        a(f"s_lshl_b32 s{S_T1}, s{S_KS}, 11")
        a(f"s_add_u32 s{S_T0}, s{S_T0}, s{S_T1}")
        a(f"s_add_u32 s{S_T0}, s{S_T0}, {WS_O}")
        a(f"v_add_u32 v{V_OST}, s{S_T0}, v{T+1}")

    def early_schedule(self):
        return {1: 0, 3: 1, 5: 2} if self.early == 3 else ({2: 0, 5: 1} if self.early == 2 else ({} if self.early == 0 else {3: 0}))

    def q_step(self, n):
        a = self.a
        base = QSLOT[n % 3]
        a.c(f"---- Q step {n}")
        self.bar(f"q{n}")
        self.stamp(f"qb{n}")
        for s in range(4):
            a(f"ds_read_b64_tr_b16 {ar(A_K+4*s,2)}, v{V_QA} offset:{base+s*4096}")
            a(f"ds_read_b64_tr_b16 {ar(A_K+4*s+2,2)}, v{V_QA} offset:{base+s*4096+1024}")
            for qb in range(2):
                a(f"ds_read_b128 {ar(A_V+8*s+4*qb,4)}, v{V_QB+s} offset:{base+qb*4096}")
        es = self.early_schedule()
        dma = self.unit_ops(es[n], "c") if n in es else []
        for s in range(4):
            remaining = 16 - 4 * (s + 1)
            a(f"s_waitcnt lgkmcnt({min(remaining,15)})")
            for qb in range(2):
                src_c = vr(V_S+16*qb,16) if not (n == 0 and s == 0) else "0"
                a(f"v_mfma_f32_32x32x16_bf16 {vr(V_S+16*qb,16)}, {ar(A_K+4*s,4)}, {ar(A_V+8*s+4*qb,4)}, {src_c}")
            if dma:
                self.issue(a, [dma[s]], f"u{es[n]}")

    def qx_step(self):
        a = self.a
        T = V_T
        a.c("---- QX")
        if self.early == 0:
            a("s_waitcnt vmcnt(0)")
        self.bar("x1")
        a(f"s_lshl_b32 s{S_T0}, s{S_WAVE}, 11")
        a(f"s_add_u32 s{S_T0}, s{S_T0}, {QX_OFF}")
        a(f"v_add_u32 v{T}, s{S_T0}, v{V_L16}")
        a(f"s_lshl_b32 s{S_T0}, s{S_QB}, 13")
        a(f"s_add_u32 s{S_T0}, s{S_T0}, {QX_OFF}")
        a(f"v_add_u32 v{T+1}, s{S_T0}, v{V_L16}")
        a("s_nop 7")
        E = V_O + 16
        for qb in range(2):
            for half in range(2):
                for d in range(4):
                    src = V_S + 16 * qb + 8 * half + 2 * d
                    a(f"v_cvt_pk_bf16_f32 v{E+4*(2*qb+half)+d}, v{src}, v{src+1}")
        for qb in range(2):
            for half in range(2):
                a(f"ds_write_b128 v{T}, {vr(E+4*(2*qb+half),4)} offset:{qb*8192+half*1024}")
        a("s_waitcnt lgkmcnt(0)")
        self.bar("x2")
        for s in range(8):
            a(f"ds_read_b128 {ar(A_Q+4*s,4)}, v{T+1} offset:{s*1024}")
        a("s_waitcnt lgkmcnt(0)")

    def set_regs(self, which, want):
        a = self.a
        cur = self.kset if which == "K" else self.vset
        if cur == want:
            return
        d = (want - cur) * 65536
        base, n = (V_KA, 8) if which == "K" else (V_VA, 4)
        for k in range(n):
            if d > 0:
                a(f"v_add_u32 v{base+k}, {d:#x}, v{base+k}")
            else:
                a(f"v_subrev_u32 v{base+k}, {-d:#x}, v{base+k}")
        if which == "K":
            self.kset = want
        else:
            self.vset = want

    def att_step(self, i):
        a = self.a
        a.c(f"---- attention step {i}")
        has_s = i <= 15
        has_pv = i >= 1
        need = [kunit(i)] if i == 0 else ([vunit(15)] if i == 16 else [kunit(i), vunit(i - 1)])
        mine = [u for u in need if f"u{u}" in a.vm]
        if mine:
            a.wait_tag(f"u{max(mine)}")
        if has_s:
            ku = phys(kunit(i)) * UNIT
            self.set_regs("K", ku // 65536)
            kimm = ku % 65536
        if has_pv:
            vu = phys(vunit(i - 1)) * UNIT
            self.set_regs("V", vu // 65536)
            vimm = vu % 65536
        if i == 12 and self.touch:
            T = V_T
            lab = a.newlabel("L_wt")
            a(f"s_mul_i32 s{S_T0}, s{S_J}, 589824")
            a(f"s_mul_i32 s{S_T1}, s{S_SLOT}, {144*128}")
            a(f"s_add_u32 s{S_T0}, s{S_T0}, s{S_T1}")
            a(f"v_lshlrev_b32 v{T}, 7, v0")
            a(f"v_add_u32 v{T}, s{S_T0}, v{T}")
            a(f"v_cmp_gt_u32 vcc, 144, v0")
            a(f"s_and_saveexec_b64 {sr(S_SAVE,2)}, vcc")
            a(f"s_cbranch_execz {lab}")
            a(f"global_load_dword v{V_QB+3}, v{T}, {sr(S_WO,2)}")
            a.label(lab)
            a(f"s_mov_b64 exec, {sr(S_SAVE,2)}")
        self.stamp(f"aw{i}")
        self.bar(f"a{i}")
        self.stamp(f"ab{i}")
        Sc = V_S + 16 * (i & 1)
        Sp = V_S + 16 * ((i - 1) & 1)
        if has_s:
            for s in range(8):
                a(f"ds_read_b128 {ar(A_K+4*s,4)}, v{V_KA+s} offset:{kimm}")
        vreads = []
        if has_pv:
            for s2 in range(2):
                for g in range(4):
                    for x in range(2):
                        vreads.append(f"ds_read_b64_tr_b16 {ar(A_V+16*s2+4*g+2*x,2)}, v{V_VA+g} offset:{vimm+s2*4096+x*2048}")
        valu = []
        if has_pv:
            E = Sp
            fm = [f"v_fma_f32 v{E+k}, v{Sp+k}, s{S_C}, -v{V_MC}" for k in range(16)]
            ex = [f"v_exp_f32 v{E+k}, v{E+k}" for k in range(16)]
            seq = fm[0:4]
            for k in range(16):
                seq.append(ex[k])
                if k + 4 < 16:
                    seq.append(fm[k + 4])
                if k >= 1:
                    kk = k - 1
                    if i == 1 and kk == 0:
                        seq.append(f"v_mov_b32 v{V_L}, v{E+0}")
                    else:
                        seq.append(f"v_add_f32 v{V_L}, v{V_L}, v{E+kk}")
                    if kk & 1:
                        seq.append(f"v_cvt_pk_bf16_f32 v{V_P+kk//2}, v{E+kk-1}, v{E+kk}")
            seq.append("s_nop 0")
            seq.append(f"v_add_f32 v{V_L}, v{V_L}, v{E+15}")
            seq.append(f"v_cvt_pk_bf16_f32 v{V_P+7}, v{E+14}, v{E+15}")
            valu = seq
        vi = 0
        per = (len(valu) + 7) // 8 if has_s else len(valu)
        st = {"vr": 0}

        def issue_vreads(k):
            for _ in range(k):
                if st["vr"] < len(vreads):
                    a(vreads[st["vr"]]); st["vr"] += 1

        if has_s:
            issue_vreads(7)
            for _ in range(per):
                if vi < len(valu):
                    a(valu[vi]); vi += 1
            for s in range(8):
                allowed = (7 - s) + st["vr"]
                a(f"s_waitcnt lgkmcnt({min(allowed,15)})")
                srcc = "0" if s == 0 else vr(Sc,16)
                a(f"v_mfma_f32_32x32x16_bf16 {vr(Sc,16)}, {ar(A_K+4*s,4)}, {ar(A_Q+4*s,4)}, {srcc}")
                if s >= 1:
                    issue_vreads(1)
                for _ in range(per):
                    if vi < len(valu):
                        a(valu[vi]); vi += 1
        issue_vreads(16)
        while vi < len(valu):
            a(valu[vi]); vi += 1
        mx = []
        if has_s:
            TM = V_TMAX
            mx.append(f"v_max3_f32 v{TM}, v{Sc}, v{Sc+1}, v{Sc+2}")
            for k in range(3, 15, 2):
                mx.append(f"v_max3_f32 v{TM}, v{TM}, v{Sc+k}, v{Sc+k+1}")
            mx.append(f"v_max_f32 v{TM}, v{TM}, v{Sc+15}")
            mx.append(f"v_mov_b32 v{V_T}, v{TM}")
            mx.append("s_nop 1")
            mx.append(f"v_permlane32_swap_b32 v{TM}, v{V_T}")
            mx.append("s_nop 1")
            mx.append(f"v_max_f32 v{TM}, v{TM}, v{V_T}")
            mx.append(f"v_mul_f32 v{TM}, s{S_C}, v{TM}")
        if has_pv:
            a("s_waitcnt lgkmcnt(0)")
            a("s_nop 1")
            mi = 0
            cnt = 0
            for s2 in range(2):
                for g in range(4):
                    srcc = "0" if (i == 1 and s2 == 0) else vr(V_O+16*g,16)
                    a(f"v_mfma_f32_32x32x16_bf16 {vr(V_O+16*g,16)}, {ar(A_V+16*s2+4*g,4)}, {vr(V_P+4*s2,4)}, {srcc}")
                    cnt += 1
                    if cnt >= 5:
                        for _ in range(4):
                            if mi < len(mx):
                                a(mx[mi]); mi += 1
            while mi < len(mx):
                a(mx[mi]); mi += 1
        else:
            a("s_nop 7"); a("s_nop 7")
            for s_ in mx:
                a(s_)
        if has_s:
            if i == 0:
                a(f"v_mov_b32 v{V_MC}, v{V_TMAX}")
            else:
                lab = a.newlabel("L_nors")
                a(f"v_sub_f32 v{V_T}, v{V_TMAX}, v{V_MC}")
                a(f"v_cmp_lt_f32 vcc, s{S_THR}, v{V_T}")
                a(f"s_cbranch_vccz {lab}")
                a("s_nop 7"); a("s_nop 7")
                a(f"v_max_f32 v{V_T}, v{V_TMAX}, v{V_MC}")
                a(f"v_sub_f32 v{V_T+1}, v{V_MC}, v{V_T}")
                a(f"v_exp_f32 v{V_T+1}, v{V_T+1}")
                a(f"v_mov_b32 v{V_MC}, v{V_T}")
                a(f"v_mul_f32 v{V_L}, v{V_L}, v{V_T+1}")
                for k in range(64):
                    a(f"v_mul_f32 v{V_O+k}, v{V_O+k}, v{V_T+1}")
                a("s_nop 1")
                a.label(lab)

    def combine(self):
        a = self.a
        T = V_T
        E = V_S
        a.c("---- combine the two key halves, publish O")
        a(f"v_mov_b32 v{T+3}, v{V_L}")
        a(f"v_mov_b32 v{T+2}, v{V_MC}")
        a("s_nop 0")
        a(f"v_permlane32_swap_b32 v{V_L}, v{T+3}")
        a("s_nop 1")
        a(f"v_add_f32 v{V_L}, v{V_L}, v{T+3}")
        a(f"v_mov_b32 v{T+3}, v{V_L}")
        self.bar("c1")
        a(f"ds_write_b64 v{V_CST}, {vr(T+2,2)}")
        a("s_nop 3")
        for u in range(8):
            a(f"ds_write_b128 v{V_CW}, {vr(V_O+32+4*u,4)} offset:{u*1024}")
        a("s_waitcnt lgkmcnt(0)")
        self.bar("c2")
        a(f"ds_read_b64 {vr(T+2,2)}, v{V_CSR}")
        for u in range(8):
            a(f"ds_read_b128 {vr(V_O+32+4*u,4)}, v{V_CR} offset:{u*1024}")
        a("s_waitcnt lgkmcnt(8)")
        a(f"v_max_f32 v{T+4}, v{V_MC}, v{T+2}")
        a(f"v_sub_f32 v{T+6}, v{V_MC}, v{T+4}")
        a(f"v_sub_f32 v{T+8}, v{T+2}, v{T+4}")
        a(f"v_exp_f32 v{T+6}, v{T+6}")
        a(f"v_exp_f32 v{T+8}, v{T+8}")
        a("s_nop 0")
        a(f"v_mul_f32 v{T+5}, v{T+6}, v{V_L}")
        a(f"v_fma_f32 v{T+5}, v{T+8}, v{T+3}, v{T+5}")
        a(f"v_rcp_f32 v{T+5}, v{T+5}")
        a("s_nop 0")
        a(f"v_mul_f32 v{T+6}, v{T+6}, v{T+5}")
        a(f"v_mul_f32 v{T+8}, v{T+8}, v{T+5}")
        a(f"v_mov_b32 v{T+7}, v{T+6}")
        a(f"v_mov_b32 v{T+9}, v{T+8}")
        for k in range(16):
            a(f"v_pk_mul_f32 {vr(V_O+2*k,2)}, {vr(V_O+2*k,2)}, {vr(T+6,2)}")
        a("s_waitcnt lgkmcnt(0)")
        self.bar("c3")
        for u in range(8):
            for k in (2 * u, 2 * u + 1):
                a(f"v_pk_fma_f32 {vr(V_O+2*k,2)}, {vr(V_O+32+2*k,2)}, {vr(T+8,2)}, {vr(V_O+2*k,2)}")
            for k in (2 * u, 2 * u + 1):
                a(f"v_cvt_pk_bf16_f32 v{E+k}, v{V_O+2*k}, v{V_O+2*k+1}")
            if u & 1:
                g, uu = (u >> 2), (u >> 1) & 1
                a.vmop(f"buffer_store_dwordx4 {vr(E+8*g+4*uu,4)}, v{V_OST}, {sr(SRD_WS,4)}, 0 offen offset:{g*1024+uu*512} sc1", "ostore")
        L = V_LANE
        a(f"v_lshrrev_b32 v{T}, 4, v{L}")
        a(f"v_lshrrev_b32 v{T+1}, 1, v{T}")
        a(f"v_lshlrev_b32 v{T+1}, 4, v{T+1}")
        a(f"v_and_b32 v{T+2}, 1, v{T}")
        a(f"v_lshl_add_u32 v{T+1}, v{T+2}, 2, v{T+1}")
        a(f"v_and_b32 v{T+2}, 15, v{L}")
        a(f"v_lshrrev_b32 v{T+2}, 2, v{T+2}")
        a(f"v_add_u32 v{T+1}, v{T+1}, v{T+2}")
        a(f"v_mul_u32_u24 v{T+1}, 288, v{T+1}")
        a(f"v_and_b32 v{T+2}, 3, v{L}")
        a(f"v_lshl_add_u32 v{V_QA}, v{T+2}, 3, v{T+1}")
        a(f"v_add_u32 v{V_QA+1}, 0x10000, v{V_QA}")
        a(f"v_add_u32 v{V_QA+2}, 0x20000, v{V_QA}")
        a("s_waitcnt vmcnt(0)")
        self.bar("e1")
        self.bar("e2")

    def oproj(self):
        a = self.a
        T = V_T
        WOA = V_QA
        a.c("---- O projection")
        a(f"s_and_b32 s{S_T0}, s{S_IDX}, 0xfc")
        a(f"s_lshl_b32 s{S_T0}, s{S_T0}, 14")
        a(f"s_add_u32 s{S_T0}, s{S_T0}, s{S_W4K}")
        a(f"s_add_u32 s{S_T0}, s{S_T0}, {WS_O}")
        for hd in range(4):
            for tp in range(4):
                t = 4 * hd + tp
                a.vmop(f"buffer_load_dwordx4 {ar(A_OB+4*t,4)}, v{V_L16}, {sr(SRD_WS,4)}, s{S_T0} offen offset:{tp*1024} sc1", f"ob{t}")
            if hd < 3:
                a(f"s_add_u32 s{S_T0}, s{S_T0}, 16384")
        a(f"s_lshl_b32 s{S_T0}, s{S_B}, 2")
        a(f"s_add_u32 s{S_T0}, s{S_T0}, s{S_HH}")
        a(f"s_lshl_b32 s{S_T0}, s{S_T0}, 3")
        a(f"s_add_u32 s{S_T0}, s{S_T0}, s{S_J}")
        a(f"s_mul_i32 s{S_T0}, s{S_T0}, {PSTRIDE}")
        a(f"s_mul_i32 s{S_T1}, s{S_WAVE}, 5120")
        a(f"s_add_u32 s{S_T0}, s{S_T0}, s{S_T1}")
        a(f"s_add_u32 s{S_T0}, s{S_T0}, {WS_P}")
        a(f"v_mov_b32 v{V_E+18}, 0")
        a(f"v_mov_b32 v{V_E+19}, 0")
        RING = 10
        AHEAD = 7
        seq = [(nb, t) for nb in range(9) for t in range(16)]

        def reads(k):
            nb, t = seq[k]
            out = []
            for x in range(2):
                off = wo_lds(t) + nb * 32 + x * 2304
                rs, imm = off // 65536, off % 65536
                out.append(f"ds_read_b64_tr_b16 {ar(A_W+4*(k%RING)+2*x,2)}, v{WOA+rs} offset:{imm}")
            return out
        for k in range(AHEAD):
            for s_ in reads(k):
                a(s_)
        for k, (nb, t) in enumerate(seq):
            if nb == 0:
                a.wait_tag(f"ob{t}")
            ahead = min(AHEAD - 1, len(seq) - 1 - k)
            a(f"s_waitcnt lgkmcnt({2*ahead})")
            srcc = "0" if t == 0 else vr(V_ACC+4*nb,4)
            a(f"v_mfma_f32_16x16x32_bf16 {vr(V_ACC+4*nb,4)}, {ar(A_W+4*(k%RING),4)}, {ar(A_OB+4*t,4)}, {srcc}")
            if k + AHEAD < len(seq):
                for s_ in reads(k + AHEAD):
                    a(s_)
            if t == 10 and nb >= 1:
                pb = nb - 1
                p, h = pb // 2, pb % 2
                a(f"v_cvt_pk_bf16_f32 v{V_E+4*p+2*h}, v{V_ACC+4*pb}, v{V_ACC+4*pb+1}")
                a(f"v_cvt_pk_bf16_f32 v{V_E+4*p+2*h+1}, v{V_ACC+4*pb+2}, v{V_ACC+4*pb+3}")
                if h == 1:
                    a.vmop(f"buffer_store_dwordx4 {vr(V_E+4*p,4)}, v{V_L16}, {sr(SRD_WS,4)}, s{S_T0} offen offset:{p*1024} sc1", "pstore")
        a("s_nop 7")
        a(f"v_cvt_pk_bf16_f32 v{V_E+16}, v{V_ACC+32}, v{V_ACC+33}")
        a(f"v_cvt_pk_bf16_f32 v{V_E+17}, v{V_ACC+34}, v{V_ACC+35}")
        a(f"s_add_u32 s{S_T0}, s{S_T0}, 4096")
        a.vmop(f"buffer_store_dwordx4 {vr(V_E+16,4)}, v{V_L16}, {sr(SRD_WS,4)}, s{S_T0} offen sc1", "pstore")
        self.stamp("oproj")
        a("s_waitcnt vmcnt(0)")
        self.bar("f1")
        self.bar("f2")

    def final(self, endlab="L_end"):
        a = self.a
        T = V_T
        R = V_S
        acc = V_O
        a.c("---- final reduce")
        a(f"v_cmp_gt_u32 vcc, 160, v0")
        a(f"s_and_saveexec_b64 {sr(S_SAVE,2)}, vcc")
        a(f"s_cbranch_execz {endlab}")
        a(f"s_mul_i32 s{S_T0}, s{S_J}, 160")
        a(f"v_add_u32 v{T}, s{S_T0}, v0")
        a(f"v_lshlrev_b32 v{T+1}, 4, v{T}")
        a(f"s_lshl_b32 s{S_T0}, s{S_B}, 2")
        a(f"s_add_u32 s{S_T0}, s{S_T0}, s{S_HH}")
        a(f"s_mul_i32 s{S_T0}, s{S_T0}, {8*PSTRIDE}")
        a(f"s_add_u32 s{S_T0}, s{S_T0}, {WS_P}")
        for jj in range(8):
            a(f"buffer_load_dwordx4 {vr(R+4*jj,4)}, v{T+1}, {sr(SRD_WS,4)}, s{S_T0} offen sc1")
            if jj < 7:
                a(f"s_add_u32 s{S_T0}, s{S_T0}, {PSTRIDE}")
        a(f"v_mul_u32_u24 v{T+2}, 3277, v{T}")
        a(f"v_lshrrev_b32 v{T+2}, 20, v{T+2}")
        a(f"v_mul_u32_u24 v{T+3}, 320, v{T+2}")
        a(f"v_sub_u32 v{T+3}, v{T}, v{T+3}")
        a(f"v_lshrrev_b32 v{T+4}, 6, v{T+3}")
        a(f"v_and_b32 v{T+5}, 63, v{T}")
        a(f"v_and_b32 v{T+6}, 15, v{T+5}")
        a(f"v_lshl_add_u32 v{T+6}, v{T+2}, 4, v{T+6}")
        a(f"v_mul_u32_u24 v{T+6}, 1152, v{T+6}")
        a(f"v_lshrrev_b32 v{T+7}, 4, v{T+5}")
        a(f"v_lshlrev_b32 v{T+7}, 3, v{T+7}")
        a(f"v_lshl_add_u32 v{T+7}, v{T+4}, 6, v{T+7}")
        a(f"v_add_u32 v{T+6}, v{T+6}, v{T+7}")
        a(f"s_mul_i32 s{S_T0}, s{S_B}, 73728")
        a(f"s_mul_i32 s{S_T1}, s{S_HH}, 288")
        a(f"s_add_u32 s{S_T0}, s{S_T0}, s{S_T1}")
        a(f"s_mov_b32 s{S_T1}, 0xffff0000")
        for jj in range(8):
            a(f"s_waitcnt vmcnt({7-jj})")
            for d in range(4):
                src = R + 4 * jj + d
                if jj == 0:
                    a(f"v_lshlrev_b32 v{acc+2*d}, 16, v{src}")
                    a(f"v_and_b32 v{acc+2*d+1}, s{S_T1}, v{src}")
                else:
                    a(f"v_lshlrev_b32 v{T+8}, 16, v{src}")
                    a(f"v_and_b32 v{T+9}, s{S_T1}, v{src}")
                    a(f"v_add_f32 v{acc+2*d}, v{acc+2*d}, v{T+8}")
                    a(f"v_add_f32 v{acc+2*d+1}, v{acc+2*d+1}, v{T+9}")
        for d in range(4):
            a(f"v_cvt_pk_bf16_f32 v{acc+8+d}, v{acc+2*d}, v{acc+2*d+1}")
        a(f"buffer_store_dwordx2 {vr(acc+8,2)}, v{T+6}, {sr(SRD_OUT,4)}, s{S_T0} offen")
        a(f"v_cmp_gt_u32 vcc, 4, v{T+4}")
        a(f"s_and_b64 exec, exec, vcc")
        a(f"s_cbranch_execz {endlab}")
        a(f"buffer_store_dwordx2 {vr(acc+10,2)}, v{T+6}, {sr(SRD_OUT,4)}, s{S_T0} offen offset:32")

    def write_stamps(self, a, who, T):
        self.stamp("end", who)
        a("s_mov_b64 exec, -1")
        a("s_waitcnt lgkmcnt(0)")
        if self.ts == "dbg":
            if who == "l":
                return
            lab = a.newlabel("L_nots")
            a(f"s_cmp_lg_u32 s{S_WAVE}, 0")
            a(f"s_cbranch_scc1 {lab}")
            a(f"s_mov_b32 s{SRD_DBG}, s{S_DBG}")
            a(f"s_mov_b32 s{SRD_DBG+1}, s{S_DBG+1}")
            a(f"s_mov_b32 s{SRD_DBG+2}, 256")
            a(f"s_mov_b32 s{SRD_DBG+3}, 0x20000")
            a("s_mov_b64 exec, 1")
            for k, st in enumerate(self.dbgsel):
                if k == 0:
                    a(f"s_not_b32 s{S_T0}, s{S_TS+2*st}")
                    a(f"v_mov_b32 v{T+1}, s{S_T0}")
                else:
                    a(f"v_mov_b32 v{T+1}, s{S_TS+2*st}")
                a(f"v_mov_b32 v{T}, {32+4*k}")
                a(f"buffer_atomic_umax v{T+1}, v{T}, {sr(SRD_DBG,4)}, 0 offen sc1")
                a("s_nop 1")
            a.label(lab)
            return
        a(f"s_mul_i32 s{S_T0}, s2, {NW}")
        a(f"s_add_u32 s{S_T0}, s{S_T0}, s{S_WAVE}")
        a(f"s_lshl_b32 s{S_T0}, s{S_T0}, 6")
        a(f"s_add_u32 s{S_T0}, s{S_T0}, {WS_TS}")
        a(f"v_mov_b32 v{T}, s{S_T0}")
        a("s_mov_b64 exec, 1")
        for k in range(self.nts[who]):
            a(f"v_mov_b32 v{T+1}, s{S_TS+2*k}")
            a(f"buffer_store_dword v{T+1}, v{T}, {sr(SRD_WS,4)}, 0 offen offset:{4*k}")
            a("s_nop 1")

    def l_poll(self, srd, vaddr, nl, want):
        a = self.l
        T = L_T
        lab = a.newlabel("L_poll")
        done = a.newlabel("L_pdone")
        a(f"s_mov_b64 exec, {(1<<nl)-1:#x}")
        a(f"s_mov_b32 s{S_SPIN}, 0")
        a.label(lab)
        a(f"buffer_load_dword v{T+2}, v{vaddr}, {sr(srd,4)}, 0 offen sc1")
        a("s_waitcnt vmcnt(0)")
        a(f"v_cmp_le_u32 vcc, {want}, v{T+2}")
        a(f"s_add_u32 s{S_SPIN}, s{S_SPIN}, 1")
        a("s_nop 2")
        a("s_cmp_eq_u64 vcc, exec")
        a(f"s_cbranch_scc1 {done}")
        a(f"s_cmp_lt_u32 s{S_SPIN}, 0x8000")
        a(f"s_cbranch_scc1 {lab}")
        a.label(done)
        a("s_mov_b64 exec, -1")

    def l_signal(self, vflag):
        a = self.l
        T = L_T
        a(f"v_mov_b32 v{T+1}, 1")
        a("s_mov_b64 exec, 1")
        a(f"buffer_store_dword v{T+1}, v{vflag}, {sr(SRD_WS,4)}, 0 offen sc1")
        a("s_mov_b64 exec, -1")

    def loader(self):
        a = self.l
        T = L_T
        L = V_LANE
        a.label("L_loader")
        if self.ts:
            self.nts["l"] = 1 if "start" in self.stampset else 0
            if "start" in self.stampset:
                self.stampnames["l"].append("start")
        self.dma_voffsets(a, T, L_KOFF, L_VOFF, L_WQOFF, L_XOFF)
        a("s_waitcnt lgkmcnt(0)")
        self.srds(a)
        self.issue(a, self.q_item_ops(0), "q0")
        a(f"s_lshl_b32 s{S_T0}, s{S_IDX}, 7")
        a(f"v_lshlrev_b32 v{T}, 15, v{L}")
        a(f"v_add_u32 v{T}, s{S_T0}, v{T}")
        a(f"v_mov_b32 v{T+1}, 0")
        a("s_mov_b64 exec, 3")
        a.vmop(f"buffer_store_dword v{T+1}, v{T}, {sr(SRD_WS,4)}, 0 offen sc1", "rst")
        a("s_mov_b64 exec, -1")
        self.issue(a, self.q_item_ops(1), "q1")
        self.stamp("ldma0", "l")
        a(f"s_mul_i32 s{S_T0}, s{S_J}, 589824")
        a(f"s_mul_i32 s{S_T1}, s{S_HH}, 288")
        a(f"s_add_u32 s{S_T0}, s{S_T0}, s{S_T1}")
        a(f"s_add_u32 s{SRD_WO}, s{S_WO}, s{S_T0}")
        a(f"s_addc_u32 s{SRD_WO+1}, s{S_WO+1}, 0")
        a(f"s_sub_u32 s{SRD_WO+2}, 4718592, s{S_T0}")
        a(f"s_mov_b32 s{SRD_WO+3}, 0x20000")
        a(f"s_mov_b32 s{SRD_DBG}, s{S_DBG}")
        a(f"s_mov_b32 s{SRD_DBG+1}, s{S_DBG+1}")
        a(f"s_mov_b32 s{SRD_DBG+2}, 256")
        a(f"s_mov_b32 s{SRD_DBG+3}, 0x20000")
        for u in range(9):
            a(f"v_add_u32 v{T}, {64*u}, v{L}")
            a(f"v_mul_u32_u24 v{T+1}, 3641, v{T}")
            a(f"v_lshrrev_b32 v{T+1}, 16, v{T+1}")
            a(f"v_mul_u32_u24 v{T+2}, 18, v{T+1}")
            a(f"v_sub_u32 v{T+2}, v{T}, v{T+2}")
            a(f"v_mul_u32_u24 v{T+1}, 1152, v{T+1}")
            a(f"v_lshl_add_u32 v{T+1}, v{T+2}, 4, v{T+1}")
            a(f"v_subrev_u32 v{L_WOOFF+u}, {1024*(u%4)}, v{T+1}")
        a(f"s_lshl_b32 s{S_T0}, s{S_IDX}, 7")
        a(f"v_mov_b32 v{T+4}, s{S_T0}")
        a(f"v_add_u32 v{T+5}, {WS_FLAG2}, v{T+4}")
        a(f"s_and_b32 s{S_T0}, s{S_IDX}, 0xfc")
        a(f"v_add_u32 v{T+6}, s{S_T0}, v{L}")
        a(f"v_lshlrev_b32 v{T+6}, 7, v{T+6}")
        a(f"s_lshl_b32 s{S_T0}, s{S_B}, 5")
        a(f"s_add_u32 s{S_T0}, s{S_T0}, s{S_HH}")
        a(f"v_lshlrev_b32 v{T+7}, 2, v{L}")
        a(f"v_add_u32 v{T+7}, s{S_T0}, v{T+7}")
        a(f"v_lshlrev_b32 v{T+7}, 7, v{T+7}")
        a(f"v_add_u32 v{T+7}, {WS_FLAG2}, v{T+7}")
        a(f"s_lshl_b32 s{S_T0}, s{S_B}, 2")
        a(f"v_mov_b32 v{T+8}, s{S_T0}")
        nxt = self.early
        for n in range(9):
            a.wait_tag(f"q{n}")
            self.stamp(f"lq{n}", "l")
            a.barrier(f"q{n}")
            if n == 1:
                a(f"v_mov_b32 v{T+1}, 1")
                a("s_mov_b64 exec, 1")
                a.vmop(f"buffer_atomic_add v{T+1}, v{T+8}, {sr(SRD_DBG,4)}, 0 offen sc1", "rdyadd")
                a("s_mov_b64 exec, -1")
            if n + 2 <= 8:
                self.issue(a, self.q_item_ops(n + 2), f"q{n+2}")
            if n >= 7:
                self.issue(a, self.unit_ops(nxt, "l"), f"u{nxt}"); nxt += 1
        a.barrier("x1")
        a.barrier("x2")
        while nxt <= min(self.LA - 1, 8):
            self.issue(a, self.unit_ops(nxt, "l"), f"u{nxt}"); nxt += 1
        wo_next = 0
        for i in range(17):
            need = [kunit(0)] if i == 0 else ([vunit(15)] if i == 16 else [kunit(i), vunit(i - 1)])
            mine = [u for u in need if f"u{u}" in a.vm]
            if mine:
                a.wait_tag(f"u{max(mine)}")
            self.stamp(f"law{i}", "l")
            a.barrier(f"a{i}")
            lim = min(31, 2 * i + self.LA, 2 * i + 8 if i >= 1 else 9)
            while nxt <= lim:
                self.issue(a, self.unit_ops(nxt, "l"), f"u{nxt}"); nxt += 1
            if i == 10:
                a.vmop(f"buffer_load_dword v{L_RDY}, v{T+8}, {sr(SRD_DBG,4)}, 0 offen sc1", "rdy")
            avail = {14: 2, 15: 4, 16: 7}.get(i, -1)
            if nxt > 31:
                while wo_next <= avail:
                    self.issue(a, self.wo_kstep_ops(wo_next), f"wo{wo_next}"); wo_next += 1
        a.barrier("c1")
        while wo_next <= 9:
            self.issue(a, self.wo_kstep_ops(wo_next), f"wo{wo_next}"); wo_next += 1
        a.barrier("c2")
        while wo_next <= 11:
            self.issue(a, self.wo_kstep_ops(wo_next), f"wo{wo_next}"); wo_next += 1
        a.barrier("c3")
        while wo_next <= 15:
            self.issue(a, self.wo_kstep_ops(wo_next), f"wo{wo_next}"); wo_next += 1
        rok = a.newlabel("L_rok")
        a.wait_tag("rdy")
        a(f"v_readfirstlane_b32 s{S_T0}, v{L_RDY}")
        a("s_nop 3")
        a(f"s_cmp_ge_u32 s{S_T0}, 32")
        a(f"s_cbranch_scc1 {rok}")
        self.l_poll(SRD_DBG, T + 8, 1, 32)
        a.label(rok)
        a("s_waitcnt vmcnt(0)")
        a.barrier("e1")
        self.l_signal(T + 4)
        self.l_poll(SRD_WS, T + 6, 4, 1)
        a.barrier("e2")
        a.barrier("f1")
        self.l_signal(T + 5)
        self.l_poll(SRD_WS, T + 7, 8, 1)
        a.barrier("f2")
        if self.ts:
            self.write_stamps(a, "l", T)
        a("s_endpgm")

    def build(self):
        a = self.a
        self.prologue()
        self.stamp("pro")
        for n in range(9):
            self.q_step(n)
            self.stamp(f"q{n}")
        self.stamp("qend")
        self.qx_step()
        self.stamp("qx")
        for i in range(17):
            self.att_step(i)
            self.stamp(f"a{i}")
        self.stamp("att")
        self.combine()
        self.stamp("ex1")
        self.oproj()
        self.stamp("ex2")
        if self.ts:
            self.final("L_fin")
            a.label("L_fin")
            self.write_stamps(a, "c", V_T)
        else:
            self.final()
        a.label("L_end")
        a("s_endpgm")
        self.loader()
        assert self.a.bars == self.l.bars, (self.a.bars, self.l.bars)
        hdr = [
            "; fused GQA block: Q projection + attention + output projection (generated)",
            f"; @launch grid=(256,1,1) block=({64*NW},1,1) lds={LDS_BYTES}",
            '.amdgcn_target "amdgcn-amd-amdhsa--gfx950"',
            ".text",
            f".globl {KNAME}",
            ".p2align 8",
            f".type {KNAME},@function",
            f"{KNAME}:",
        ]
        ftr = [
            "L_codeend:",
            "    s_endpgm",
            '.section .rodata,"a"',
            ".p2align 6",
            f".amdhsa_kernel {KNAME}",
            "  .amdhsa_next_free_vgpr 256",
            "  .amdhsa_next_free_sgpr 102",
            f"  .amdhsa_accum_offset {ACC_OFF}",
            "  .amdhsa_group_segment_fixed_size 0",
            "  .amdhsa_kernarg_size 64",
            "  .amdhsa_user_sgpr_count 2",
            "  .amdhsa_user_sgpr_kernarg_segment_ptr 1",
            "  .amdhsa_system_sgpr_workgroup_id_x 1",
            ".end_amdhsa_kernel",
        ]
        body = a.text().replace("    @@LOADER@@\n", self.l.text())
        return "\n".join(hdr) + "\n" + body + "\n".join(ftr) + "\n"


if __name__ == "__main__":
    import argparse
    p = argparse.ArgumentParser()
    p.add_argument("-o", default="standalone__gqa_block_cached__near_ridge.s")
    p.add_argument("--ts", default=False)
    p.add_argument("--kvaux", default="")
    p.add_argument("--stamps", default=None)
    p.add_argument("--notouch", action="store_true")
    p.add_argument("--noswap", action="store_true")
    p.add_argument("--la", type=int, default=5)
    p.add_argument("--early", type=int, default=3)
    args = p.parse_args()
    g = Gen(ts=args.ts, kvaux=args.kvaux, stampset=args.stamps.split(",") if args.stamps else None,
            touch=not args.notouch, LA=args.la, swap=not args.noswap, early=args.early)
    open(args.o, "w").write(g.build())
    print("written", args.o, len(g.a.L) + len(g.l.L), "lines", g.stampnames)
```

```python
import sys, math, struct

KNAME = "standalone__gqa_block_cached__near_ridge_kernel"

UNIT = 16384
LDS_BYTES = 163840
QSLOT = [0, 24576, 49152]
QX_OFF = 65536
SCR_OFF = 81920
STATS_OFF = 160768
WS_FLAG1 = 0
WS_FLAG2 = 32768
WS_O = 0x100000
WS_P = 0x800000
WS_TS = 0x2000000
PSTRIDE = 20480
C_SCALE = math.log2(math.e) / math.sqrt(128.0)
T_RESCALE = 8.0
NW = 5


def f32bits(x):
    return struct.unpack("<I", struct.pack("<f", x))[0]


def phys(u):
    return (5 + u) % 10


def kunit(i):
    return 0 if i == 0 else 2 * i - 1


def vunit(i):
    return 31 if i == 15 else 2 * i + 2


def unit_desc(u):
    if u == 0:
        return ("K", 0)
    if u == 31:
        return ("V", 15)
    if u & 1:
        return ("K", (u + 1) // 2)
    return ("V", (u - 2) // 2)


def wo_lds(t):
    return 114688 + 9216 * t if t < 5 else 9216 * (t - 5)


class Asm:
    def __init__(self, pfx):
        self.L = []
        self.vm = []
        self.nlabel = 0
        self.pfx = pfx
        self.nbar = 0

    def __call__(self, s):
        self.L.append("    " + s)

    def label(self, name):
        self.L.append(name + ":")

    def c(self, s):
        self.L.append("    ; " + s)

    def newlabel(self, p="L"):
        self.nlabel += 1
        return f"{p}_{self.pfx}{self.nlabel}"

    def vmop(self, s, tag):
        self(s)
        self.vm.append(tag)

    def wait_tag(self, tag):
        idx = [i for i, t in enumerate(self.vm) if t == tag]
        assert idx, tag
        n = min(len(self.vm) - 1 - idx[-1], 63)
        self(f"s_waitcnt vmcnt({n})")

    def barrier(self, name):
        self.nbar += 1
        self.bars = getattr(self, "bars", []) + [name]
        self(f"s_barrier        ; {name}")

    def text(self):
        return "\n".join(self.L) + "\n"


S_X, S_K, S_V, S_WQ, S_WO, S_OUT, S_DBG, S_WS = 4, 6, 8, 10, 12, 14, 16, 18
SRD_X, SRD_WQ, SRD_K, SRD_V, SRD_WO, SRD_WS, SRD_OUT, SRD_DBG = 20, 24, 28, 32, 36, 40, 44, 48
S_WAVE = 52
S_B = 53
S_J = 54
S_HH = 55
S_IDX = 56
S_T0, S_T1, S_T3 = 57, 58, 59
S_T2 = 64
S_SWAP = 61
S_W4K = 63
S_C = 66
S_THR = 67
S_SPIN = 68
S_QB = 69
S_KS = 70
S_SLOT = 71
S_SAVE = 72
S_PC = 74
S_TS = 76

ACC_OFF = 144
V_LANE = 1
V_KA = 2
V_VA = 10
V_L16 = 14
V_TMAX = 15
V_MC = 16
V_L = 17
V_T = 18
V_QA = 30
V_QB = 31
V_CST, V_CSR, V_CW, V_CR, V_OST = 35, 36, 37, 38, 39
V_P = 40
V_S = 48
V_O = 80
V_DK = 30
V_ACC = 80
V_E = 116
V_WOA = 136
A_Q = 0
A_K = 32
A_V = 64
A_OB = 0
A_W = 64
V_EKOFF = 80
V_EVOFF = 84
V_PFD = 88

L_KOFF = 2
L_VOFF = 6
L_WQOFF = 7
L_XOFF = 8
L_WOOFF = 10
L_T = 20
L_RDY = 32


def vr(b, n=1):
    return f"v{b}" if n == 1 else f"v[{b}:{b+n-1}]"


def ar(b, n=1):
    return f"a{b}" if n == 1 else f"a[{b}:{b+n-1}]"


def sr(b, n=1):
    return f"s{b}" if n == 1 else f"s[{b}:{b+n-1}]"


class Gen:
    def __init__(self, ts=False, kvaux="", stampset=None, touch=True, LA=5, swap=True, early=3, opts=None):
        self.a = Asm("c")
        self.l = Asm("l")
        self.ts = ts
        self.nts = {"c": 0, "l": 0}
        self.kvaux = kvaux
        self.touch = touch
        self.LA = LA
        self.swap = swap
        self.early = early
        self.opts = opts or {}
        self.dbgsel = [0, 1, 2, 3, 4, 5, 6, 8]
        self.stampset = stampset or ["start", "qend", "qx", "att", "comb", "ex1", "oproj", "ex2", "end"]
        self.stampnames = {"c": [], "l": []}

    def stamp(self, name="end", who="c"):
        if not self.ts or name not in self.stampset:
            return
        a = self.a if who == "c" else self.l
        self.stampnames[who].append(name)
        r = S_TS + 2 * self.nts[who]
        assert r + 1 <= 101
        a(f"s_memrealtime {sr(r,2)}")
        self.nts[who] += 1

    def bar(self, name):
        self.a.barrier(name)

    def q_item_ops(self, n):
        base = QSLOT[n % 3]
        g = []
        for j in range(16):
            pre = []
            if j % 4 == 0:
                pre.append(f"s_mov_b32 m0, {base + (j//4)*4096}")
            pre.append(f"s_mov_b32 s{S_T3}, {n*64*8192 + j*32768 - (j%4)*1024}")
            pre.append(f"buffer_load_dwordx4 v{L_WQOFF}, {sr(SRD_WQ,4)}, s{S_T3} offen offset:{(j%4)*1024} lds")
            g.append(pre)
        for j in range(8):
            pre = []
            if j % 4 == 0:
                pre.append(f"s_mov_b32 m0, {base + 16384 + (j//4)*4096}")
            pre.append(f"s_mov_b32 s{S_T3}, {128*n + j*9216 - (j%4)*1024}")
            pre.append(f"buffer_load_dwordx4 v{L_XOFF+(j&1)}, {sr(SRD_X,4)}, s{S_T3} offen offset:{(j%4)*1024} lds")
            g.append(pre)
        return g

    def unit_ops(self, u, who):
        kind, i = unit_desc(u)
        base = phys(u) * UNIT
        srd = SRD_K if kind == "K" else SRD_V
        aux = self.kvaux
        g = []
        if who == "l":
            for j in range(16):
                pre = []
                if j == 0 and self.swap:
                    pre.append(f"s_xor_b32 s{S_T2}, s{S_SWAP}, {i*16384}")
                if j % 4 == 0:
                    pre.append(f"s_mov_b32 m0, {base + (j//4)*4096}")
                    if self.swap:
                        pre.append(f"s_add_u32 s{S_T3}, s{S_T2}, {(j//4)*4096}")
                    else:
                        pre.append(f"s_mov_b32 s{S_T3}, {i*16384 + (j//4)*4096}")
                voff = L_KOFF + (j & 3) if kind == "K" else L_VOFF
                pre.append(f"buffer_load_dwordx4 v{voff}, {sr(srd,4)}, s{S_T3} offen offset:{(j%4)*1024} {aux} lds")
                g.append(pre)
        else:
            for jj in range(4):
                pre = []
                if jj == 0:
                    pre.append(f"s_add_u32 m0, s{S_W4K}, {base}")
                    if self.swap:
                        pre.append(f"s_xor_b32 s{S_T3}, s{S_SWAP}, {i*16384}")
                        pre.append(f"s_add_u32 s{S_T3}, s{S_T3}, s{S_W4K}")
                    else:
                        pre.append(f"s_add_u32 s{S_T3}, s{S_W4K}, {i*16384}")
                voff = V_EKOFF + jj if kind == "K" else V_EVOFF
                pre.append(f"buffer_load_dwordx4 v{voff}, {sr(srd,4)}, s{S_T3} offen offset:{jj*1024} {aux} lds")
                g.append(pre)
        return g

    def wo_kstep_ops(self, t):
        g = []
        base = wo_lds(t)
        for u in range(9):
            pre = []
            if u == 0:
                pre.append(f"s_mov_b32 s{S_T3}, {t*36864}")
            if u % 4 == 0:
                pre.append(f"s_mov_b32 m0, {base + u*1024}")
                pre.append("s_nop 0")
            pre.append(f"buffer_load_dwordx4 v{L_WOOFF+u}, {sr(SRD_WO,4)}, s{S_T3} offen offset:{(u%4)*1024} lds")
            g.append(pre)
        return g

    @staticmethod
    def issue(a, groups, tag):
        for grp in groups:
            for s in grp[:-1]:
                a(s)
            a.vmop(grp[-1], tag)

    def dma_voffsets(self, a, T, koff, voff, wqoff=None, xoff=None):
        L = V_LANE
        a(f"v_lshrrev_b32 v{T}, 4, v{L}")
        a(f"v_and_b32 v{T+1}, 15, v{L}")
        a(f"v_lshlrev_b32 v{T+2}, 2, v{T}")
        a(f"v_xor_b32 v{T+2}, v{T+2}, v{T+1}")
        a(f"v_lshlrev_b32 v{T+2}, 4, v{T+2}")
        a(f"v_lshl_add_u32 v{voff}, v{T}, 8, v{T+2}")
        if wqoff is not None:
            a(f"v_lshl_add_u32 v{wqoff}, v{T}, 13, v{T+2}")
            a(f"v_lshrrev_b32 v{T+3}, 3, v{L}")
            a(f"v_and_b32 v{T+4}, 7, v{L}")
            a(f"v_mul_u32_u24 v{T+3}, 1152, v{T+3}")
            for e in range(2):
                a(f"v_add_u32 v{T+2}, {4*e}, v{T}")
                a(f"v_xor_b32 v{T+2}, v{T+2}, v{T+4}")
                a(f"v_lshl_add_u32 v{xoff+e}, v{T+2}, 4, v{T+3}")
        for jj in range(4):
            a(f"v_add_u32 v{T+2}, {4*jj}, v{T}")
            a(f"v_xor_b32 v{T+2}, v{T+2}, v{T+1}")
            a(f"v_lshlrev_b32 v{T+2}, 4, v{T+2}")
            a(f"v_lshl_add_u32 v{koff+jj}, v{T}, 8, v{T+2}")

    def prologue(self):
        a = self.a
        L, T = V_LANE, V_T
        a("s_cmp_ge_u32 s2, 256")
        a("s_cbranch_scc1 L_end")
        self.stamp("start")
        a("s_load_dwordx16 s[4:19], s[0:1], 0")
        a(f"s_getpc_b64 {sr(S_PC,2)}")
        a.label("L_pcbase")
        a(f"v_lshrrev_b32 v{T+1}, 6, v0")
        a(f"v_and_b32 v{L}, 63, v0")
        a(f"v_readfirstlane_b32 s{S_WAVE}, v{T+1}")
        a(f"s_and_b32 s{S_J}, s2, 7")
        a(f"s_lshr_b32 s{S_SLOT}, s2, 3")
        a(f"s_lshr_b32 s{S_B}, s{S_SLOT}, 2")
        a(f"s_and_b32 s{S_HH}, s{S_SLOT}, 3")
        a(f"s_lshl_b32 s{S_IDX}, s{S_B}, 5")
        a(f"s_lshl_b32 s{S_T1}, s{S_J}, 2")
        a(f"s_add_u32 s{S_IDX}, s{S_IDX}, s{S_T1}")
        a(f"s_add_u32 s{S_IDX}, s{S_IDX}, s{S_HH}")
        a(f"s_and_b32 s{S_SWAP}, s{S_HH}, 1")
        a(f"s_lshl_b32 s{S_SWAP}, s{S_SWAP}, 14")
        a(f"s_mul_i32 s{S_T0}, s{S_B}, 73728")
        a(f"s_lshl_b32 s{S_T1}, s{S_J}, 2")
        a(f"s_add_u32 s{S_T1}, s{S_T1}, s{S_HH}")
        a(f"s_lshl_b32 s{S_T1}, s{S_T1}, 8")
        a(f"s_lshl_b32 s{S_T2}, s{S_B}, 4")
        a(f"s_lshl_b32 s{S_T3}, s{S_J}, 1")
        a(f"s_add_u32 s{S_T2}, s{S_T2}, s{S_T3}")
        a(f"s_lshr_b32 s{S_T3}, s{S_HH}, 1")
        a(f"s_add_u32 s{S_T2}, s{S_T2}, s{S_T3}")
        a(f"s_lshl_b32 s{S_T2}, s{S_T2}, 18")
        a(f"s_mov_b32 s{SRD_X+2}, 73728")
        a(f"s_mov_b32 s{SRD_X+3}, 0x20000")
        a(f"s_sub_u32 s{SRD_WQ+2}, 4718592, s{S_T1}")
        a(f"s_mov_b32 s{SRD_WQ+3}, 0x20000")
        a(f"s_mov_b32 s{SRD_K+2}, 262144")
        a(f"s_mov_b32 s{SRD_K+3}, 0x20000")
        a(f"s_mov_b32 s{SRD_V+2}, 262144")
        a(f"s_mov_b32 s{SRD_V+3}, 0x20000")
        a(f"s_mov_b32 s{SRD_WS+2}, 0x10000000")
        a(f"s_mov_b32 s{SRD_WS+3}, 0x20000")
        a(f"s_cmp_lg_u32 s{S_WAVE}, 4")
        a(f"s_cbranch_scc1 L_compute")
        a("@@LOADER@@")
        a.label("L_compute")
        a(f"s_and_b32 s{S_QB}, s{S_WAVE}, 1")
        a(f"s_lshr_b32 s{S_KS}, s{S_WAVE}, 1")
        a(f"s_lshl_b32 s{S_W4K}, s{S_WAVE}, 12")
        a(f"v_and_b32 v{T}, 0x7f, v0")
        a(f"v_lshrrev_b32 v{T+1}, 3, v{T}")
        a(f"v_and_b32 v{T+2}, 7, v{T}")
        a(f"s_lshl_b32 s{S_SAVE}, s{S_SLOT}, 4")
        a(f"v_add_u32 v{T+1}, s{S_SAVE}, v{T+1}")
        a("s_waitcnt lgkmcnt(0)")
        self.srds(a)
        if self.touch:
            lb = a.newlabel("L_tx"); lj = a.newlabel("L_tj")
            a(f"s_cmp_ge_u32 s{S_WAVE}, 2")
            a(f"s_cbranch_scc1 {lb}")
            a(f"v_add_u32 v{T+1}, 64, v{T+1}")
            a(f"v_lshlrev_b32 v{T+1}, 13, v{T+1}")
            a(f"v_lshl_add_u32 v{T+1}, v{T+2}, 7, v{T+1}")
            a(f"s_lshl_b32 s{S_SAVE}, s{S_J}, 10")
            a(f"v_add_u32 v{T+1}, s{S_SAVE}, v{T+1}")
            a(f"global_load_dword v{V_PFD}, v{T+1}, {sr(S_WQ,2)}")
            a(f"s_branch {lj}")
            a.label(lb)
            a(f"v_mul_u32_u24 v{T+1}, 1152, v{T+1}")
            a(f"v_lshl_add_u32 v{T+1}, v{T+2}, 7, v{T+1}")
            a(f"global_load_dword v{V_PFD}, v{T+1}, {sr(S_X,2)} offset:128")
            a.label(lj)
        a(f"s_lshl_b32 s{S_SAVE}, s{S_WAVE}, 14")
        a(f"v_lshlrev_b32 v{T}, 7, v{L}")
        a(f"v_add_u32 v{T}, s{S_SAVE}, v{T}")
        a(f"s_mov_b32 s{S_SPIN}, L_codeend-L_pcbase")
        for k in range(2):
            lab = a.newlabel("L_pf")
            a(f"v_cmp_gt_u32 vcc, s{S_SPIN}, v{T}")
            a(f"s_and_saveexec_b64 {sr(S_SAVE,2)}, vcc")
            a(f"s_cbranch_execz {lab}")
            a(f"global_load_dword v{V_PFD+1+k}, v{T}, {sr(S_PC,2)}")
            a.label(lab)
            a(f"s_mov_b64 exec, {sr(S_SAVE,2)}")
            a(f"v_add_u32 v{T}, 0x2000, v{T}")
        a(f"s_mov_b32 s{S_C}, {f32bits(C_SCALE):#x}")
        a(f"s_mov_b32 s{S_THR}, {f32bits(T_RESCALE):#x}")
        a(f"s_mov_b32 s{SRD_OUT}, s{S_OUT}")
        a(f"s_mov_b32 s{SRD_OUT+1}, s{S_OUT+1}")
        a(f"s_mov_b32 s{SRD_OUT+2}, 589824")
        a(f"s_mov_b32 s{SRD_OUT+3}, 0x20000")
        a(f"v_lshrrev_b32 v{T}, 4, v{L}")
        a(f"v_and_b32 v{T+1}, 15, v{L}")
        a(f"v_lshrrev_b32 v{T+2}, 2, v{T+1}")
        a(f"v_and_b32 v{T+3}, 3, v{L}")
        a(f"v_and_b32 v{T+4}, 1, v{T}")
        a(f"v_lshrrev_b32 v{T+5}, 1, v{T}")
        a(f"v_lshl_add_u32 v{T+6}, v{T+5}, 3, v{T+2}")
        a(f"v_lshlrev_b32 v{T+6}, 8, v{T+6}")
        a(f"v_xor_b32 v{T+7}, s{S_WAVE}, v{T+2}")
        a(f"v_lshl_add_u32 v{T+6}, v{T+7}, 6, v{T+6}")
        a(f"v_lshl_add_u32 v{T+6}, v{T+4}, 5, v{T+6}")
        a(f"v_and_b32 v{T+7}, 1, v{T+3}")
        a(f"v_lshl_add_u32 v{T+6}, v{T+7}, 4, v{T+6}")
        a(f"v_lshrrev_b32 v{T+7}, 1, v{T+3}")
        a(f"v_lshl_add_u32 v{V_QA}, v{T+7}, 3, v{T+6}")
        a(f"v_and_b32 v{T+8}, 31, v{L}")
        a(f"v_lshrrev_b32 v{T+9}, 5, v{L}")
        a(f"v_lshrrev_b32 v{T+10}, 1, v{T+8}")
        a(f"v_and_b32 v{T+10}, 7, v{T+10}")
        a(f"v_xor_b32 v{T+10}, v{T+10}, v{T+9}")
        a(f"v_lshlrev_b32 v{T+11}, 7, v{T+8}")
        a(f"v_add_u32 v{T+11}, 16384, v{T+11}")
        for s in range(4):
            a(f"v_xor_b32 v{T+9}, {2*s}, v{T+10}")
            a(f"v_lshl_add_u32 v{V_QB+s}, v{T+9}, 4, v{T+11}")
        a(f"v_lshlrev_b32 v{V_L16}, 4, v{L}")
        self.dma_voffsets(a, T, V_EKOFF, V_EVOFF)
        self.att_consts()
        self.comb_consts()

    def srds(self, a):
        a(f"s_add_u32 s{SRD_X}, s{S_X}, s{S_T0}")
        a(f"s_addc_u32 s{SRD_X+1}, s{S_X+1}, 0")
        a(f"s_add_u32 s{SRD_WQ}, s{S_WQ}, s{S_T1}")
        a(f"s_addc_u32 s{SRD_WQ+1}, s{S_WQ+1}, 0")
        a(f"s_add_u32 s{SRD_K}, s{S_K}, s{S_T2}")
        a(f"s_addc_u32 s{SRD_K+1}, s{S_K+1}, 0")
        a(f"s_add_u32 s{SRD_V}, s{S_V}, s{S_T2}")
        a(f"s_addc_u32 s{SRD_V+1}, s{S_V+1}, 0")
        a(f"s_mov_b32 s{SRD_WS}, s{S_WS}")
        a(f"s_mov_b32 s{SRD_WS+1}, s{S_WS+1}")

    def att_consts(self):
        a = self.a
        L, T = V_LANE, V_T
        a.c("attention constants (register set 0 = LDS base 0)")
        a(f"v_lshrrev_b32 v{T}, 4, v{L}")
        a(f"v_and_b32 v{T+1}, 15, v{L}")
        a(f"v_lshrrev_b32 v{T+2}, 2, v{T+1}")
        a(f"v_and_b32 v{T+3}, 3, v{L}")
        a(f"v_and_b32 v{T+4}, 1, v{T}")
        a(f"v_lshrrev_b32 v{T+5}, 1, v{T}")
        a(f"v_lshl_add_u32 v{T+6}, v{T+5}, 2, v{T+2}")
        a(f"v_lshlrev_b32 v{T+6}, 8, v{T+6}")
        a(f"v_lshl_add_u32 v{T+6}, v{T+4}, 5, v{T+6}")
        a(f"v_lshl_add_u32 v{T+6}, v{T+3}, 3, v{T+6}")
        a(f"s_lshl_b32 s{S_T0}, s{S_KS}, 13")
        a(f"v_add_u32 v{T+6}, s{S_T0}, v{T+6}")
        a(f"s_lshl_b32 s{S_T1}, s{S_KS}, 1")
        for g in range(4):
            a(f"s_xor_b32 s{S_T2}, s{S_T1}, {g}")
            a(f"v_xor_b32 v{T+7}, s{S_T2}, v{T+2}")
            a(f"v_lshl_add_u32 v{V_VA+g}, v{T+7}, 6, v{T+6}")
        a(f"v_and_b32 v{T+8}, 31, v{L}")
        a(f"v_lshrrev_b32 v{T+9}, 5, v{L}")
        a(f"v_and_b32 v{T+10}, 15, v{T+8}")
        a(f"v_xor_b32 v{T+10}, v{T+10}, v{T+9}")
        a(f"v_lshlrev_b32 v{T+11}, 8, v{T+8}")
        a(f"v_add_u32 v{T+11}, s{S_T0}, v{T+11}")
        for s in range(8):
            a(f"v_xor_b32 v{T+9}, {2*s}, v{T+10}")
            a(f"v_lshl_add_u32 v{V_KA+s}, v{T+9}, 4, v{T+11}")
        self.kset = 0
        self.vset = 0

    def comb_consts(self):
        a = self.a
        L, T = V_LANE, V_T
        a.c("combine constants")
        a(f"v_lshlrev_b32 v{T}, 3, v{L}")
        a(f"s_lshl_b32 s{S_T0}, s{S_WAVE}, 9")
        a(f"s_add_u32 s{S_T0}, s{S_T0}, {STATS_OFF}")
        a(f"v_add_u32 v{V_CST}, s{S_T0}, v{T}")
        a(f"s_xor_b32 s{S_T1}, s{S_WAVE}, 2")
        a(f"s_lshl_b32 s{S_T0}, s{S_T1}, 9")
        a(f"s_add_u32 s{S_T0}, s{S_T0}, {STATS_OFF}")
        a(f"v_add_u32 v{V_CSR}, s{S_T0}, v{T}")
        a(f"s_lshl_b32 s{S_T0}, s{S_WAVE}, 13")
        a(f"s_add_u32 s{S_T0}, s{S_T0}, {SCR_OFF}")
        a(f"v_add_u32 v{V_CW}, s{S_T0}, v{V_L16}")
        a(f"s_lshl_b32 s{S_T0}, s{S_T1}, 13")
        a(f"s_add_u32 s{S_T0}, s{S_T0}, {SCR_OFF}")
        a(f"v_add_u32 v{V_CR}, s{S_T0}, v{V_L16}")
        a(f"v_and_b32 v{T}, 31, v{L}")
        a(f"v_lshrrev_b32 v{T+1}, 4, v{T}")
        a(f"v_lshlrev_b32 v{T+1}, 12, v{T+1}")
        a(f"v_and_b32 v{T+2}, 15, v{T}")
        a(f"v_lshl_add_u32 v{T+1}, v{T+2}, 4, v{T+1}")
        a(f"v_lshrrev_b32 v{T+2}, 5, v{L}")
        a(f"v_lshl_add_u32 v{T+1}, v{T+2}, 8, v{T+1}")
        a(f"s_lshl_b32 s{S_T0}, s{S_IDX}, 14")
        a(f"s_lshl_b32 s{S_T1}, s{S_QB}, 13")
        a(f"s_add_u32 s{S_T0}, s{S_T0}, s{S_T1}")
        a(f"s_lshl_b32 s{S_T1}, s{S_KS}, 11")
        a(f"s_add_u32 s{S_T0}, s{S_T0}, s{S_T1}")
        a(f"s_add_u32 s{S_T0}, s{S_T0}, {WS_O}")
        a(f"v_add_u32 v{V_OST}, s{S_T0}, v{T+1}")

    def early_schedule(self):
        return {1: 0, 3: 1, 5: 2} if self.early == 3 else ({2: 0, 5: 1} if self.early == 2 else ({} if self.early == 0 else {3: 0}))

    def q_step(self, n):
        a = self.a
        base = QSLOT[n % 3]
        a.c(f"---- Q step {n}")
        self.bar(f"q{n}")
        self.stamp(f"qb{n}")
        for s in range(4):
            a(f"ds_read_b64_tr_b16 {ar(A_K+4*s,2)}, v{V_QA} offset:{base+s*4096}")
            a(f"ds_read_b64_tr_b16 {ar(A_K+4*s+2,2)}, v{V_QA} offset:{base+s*4096+1024}")
            for qb in range(2):
                a(f"ds_read_b128 {ar(A_V+8*s+4*qb,4)}, v{V_QB+s} offset:{base+qb*4096}")
        es = self.early_schedule()
        dma = self.unit_ops(es[n], "c") if n in es else []
        for s in range(4):
            remaining = 16 - 4 * (s + 1)
            a(f"s_waitcnt lgkmcnt({min(remaining,15)})")
            for qb in range(2):
                src_c = vr(V_S+16*qb,16) if not (n == 0 and s == 0) else "0"
                a(f"v_mfma_f32_32x32x16_bf16 {vr(V_S+16*qb,16)}, {ar(A_K+4*s,4)}, {ar(A_V+8*s+4*qb,4)}, {src_c}")
            if dma:
                self.issue(a, [dma[s]], f"u{es[n]}")

    def qx_step(self):
        a = self.a
        T = V_T
        a.c("---- QX")
        if self.early == 0:
            a("s_waitcnt vmcnt(0)")
        self.bar("x1")
        a(f"s_lshl_b32 s{S_T0}, s{S_WAVE}, 11")
        a(f"s_add_u32 s{S_T0}, s{S_T0}, {QX_OFF}")
        a(f"v_add_u32 v{T}, s{S_T0}, v{V_L16}")
        a(f"s_lshl_b32 s{S_T0}, s{S_QB}, 13")
        a(f"s_add_u32 s{S_T0}, s{S_T0}, {QX_OFF}")
        a(f"v_add_u32 v{T+1}, s{S_T0}, v{V_L16}")
        a("s_nop 7")
        E = V_O + 16
        for qb in range(2):
            for half in range(2):
                for d in range(4):
                    src = V_S + 16 * qb + 8 * half + 2 * d
                    a(f"v_cvt_pk_bf16_f32 v{E+4*(2*qb+half)+d}, v{src}, v{src+1}")
        for qb in range(2):
            for half in range(2):
                a(f"ds_write_b128 v{T}, {vr(E+4*(2*qb+half),4)} offset:{qb*8192+half*1024}")
        a("s_waitcnt lgkmcnt(0)")
        self.bar("x2")
        for s in range(8):
            a(f"ds_read_b128 {ar(A_Q+4*s,4)}, v{T+1} offset:{s*1024}")
        a("s_waitcnt lgkmcnt(0)")

    def set_regs(self, which, want):
        a = self.a
        cur = self.kset if which == "K" else self.vset
        if cur == want:
            return
        d = (want - cur) * 65536
        base, n = (V_KA, 8) if which == "K" else (V_VA, 4)
        for k in range(n):
            if d > 0:
                a(f"v_add_u32 v{base+k}, {d:#x}, v{base+k}")
            else:
                a(f"v_subrev_u32 v{base+k}, {-d:#x}, v{base+k}")
        if which == "K":
            self.kset = want
        else:
            self.vset = want

    def att_step(self, i):
        a = self.a
        a.c(f"---- attention step {i}")
        has_s = i <= 15
        has_pv = i >= 1
        need = [kunit(i)] if i == 0 else ([vunit(15)] if i == 16 else [kunit(i), vunit(i - 1)])
        mine = [u for u in need if f"u{u}" in a.vm]
        if mine:
            a.wait_tag(f"u{max(mine)}")
        if has_s:
            ku = phys(kunit(i)) * UNIT
            self.set_regs("K", ku // 65536)
            kimm = ku % 65536
        if has_pv:
            vu = phys(vunit(i - 1)) * UNIT
            self.set_regs("V", vu // 65536)
            vimm = vu % 65536
        if i == 12 and self.touch:
            T = V_T
            lab = a.newlabel("L_wt")
            a(f"s_mul_i32 s{S_T0}, s{S_J}, 589824")
            a(f"s_mul_i32 s{S_T1}, s{S_SLOT}, {144*128}")
            a(f"s_add_u32 s{S_T0}, s{S_T0}, s{S_T1}")
            a(f"v_lshlrev_b32 v{T}, 7, v0")
            a(f"v_add_u32 v{T}, s{S_T0}, v{T}")
            a(f"v_cmp_gt_u32 vcc, 144, v0")
            a(f"s_and_saveexec_b64 {sr(S_SAVE,2)}, vcc")
            a(f"s_cbranch_execz {lab}")
            a(f"global_load_dword v{V_QB+3}, v{T}, {sr(S_WO,2)}")
            a.label(lab)
            a(f"s_mov_b64 exec, {sr(S_SAVE,2)}")
        self.stamp(f"aw{i}")
        self.bar(f"a{i}")
        self.stamp(f"ab{i}")
        Sc = V_S + 16 * (i & 1)
        Sp = V_S + 16 * ((i - 1) & 1)
        if has_s:
            for s in range(8):
                a(f"ds_read_b128 {ar(A_K+4*s,4)}, v{V_KA+s} offset:{kimm}")
        vreads = []
        if has_pv:
            for s2 in range(2):
                for g in range(4):
                    for x in range(2):
                        vreads.append(f"ds_read_b64_tr_b16 {ar(A_V+16*s2+4*g+2*x,2)}, v{V_VA+g} offset:{vimm+s2*4096+x*2048}")
        valu = []
        if has_pv:
            E = Sp
            fm = [f"v_fma_f32 v{E+k}, v{Sp+k}, s{S_C}, -v{V_MC}" for k in range(16)]
            ex = [f"v_exp_f32 v{E+k}, v{E+k}" for k in range(16)]
            seq = fm[0:4]
            for k in range(16):
                seq.append(ex[k])
                if k + 4 < 16:
                    seq.append(fm[k + 4])
                if k >= 1:
                    kk = k - 1
                    if i == 1 and kk == 0:
                        seq.append(f"v_mov_b32 v{V_L}, v{E+0}")
                    else:
                        seq.append(f"v_add_f32 v{V_L}, v{V_L}, v{E+kk}")
                    if kk & 1:
                        seq.append(f"v_cvt_pk_bf16_f32 v{V_P+kk//2}, v{E+kk-1}, v{E+kk}")
            seq.append("s_nop 0")
            seq.append(f"v_add_f32 v{V_L}, v{V_L}, v{E+15}")
            seq.append(f"v_cvt_pk_bf16_f32 v{V_P+7}, v{E+14}, v{E+15}")
            valu = seq
        vi = 0
        per = (len(valu) + 7) // 8 if has_s else len(valu)
        st = {"vr": 0}

        def issue_vreads(k):
            for _ in range(k):
                if st["vr"] < len(vreads):
                    a(vreads[st["vr"]]); st["vr"] += 1

        if has_s:
            issue_vreads(7)
            for _ in range(per):
                if vi < len(valu):
                    a(valu[vi]); vi += 1
            for s in range(8):
                allowed = (7 - s) + st["vr"]
                a(f"s_waitcnt lgkmcnt({min(allowed,15)})")
                srcc = "0" if s == 0 else vr(Sc,16)
                a(f"v_mfma_f32_32x32x16_bf16 {vr(Sc,16)}, {ar(A_K+4*s,4)}, {ar(A_Q+4*s,4)}, {srcc}")
                if s >= 1:
                    issue_vreads(1)
                for _ in range(per):
                    if vi < len(valu):
                        a(valu[vi]); vi += 1
        issue_vreads(16)
        while vi < len(valu):
            a(valu[vi]); vi += 1
        mx = []
        if has_s:
            TM = V_TMAX
            mx.append(f"v_max3_f32 v{TM}, v{Sc}, v{Sc+1}, v{Sc+2}")
            for k in range(3, 15, 2):
                mx.append(f"v_max3_f32 v{TM}, v{TM}, v{Sc+k}, v{Sc+k+1}")
            mx.append(f"v_max_f32 v{TM}, v{TM}, v{Sc+15}")
            mx.append(f"v_mov_b32 v{V_T}, v{TM}")
            mx.append("s_nop 1")
            mx.append(f"v_permlane32_swap_b32 v{TM}, v{V_T}")
            mx.append("s_nop 1")
            mx.append(f"v_max_f32 v{TM}, v{TM}, v{V_T}")
            mx.append(f"v_mul_f32 v{TM}, s{S_C}, v{TM}")
        if has_pv:
            a("s_waitcnt lgkmcnt(0)")
            a("s_nop 1")
            mi = 0
            cnt = 0
            for s2 in range(2):
                for g in range(4):
                    srcc = "0" if (i == 1 and s2 == 0) else vr(V_O+16*g,16)
                    a(f"v_mfma_f32_32x32x16_bf16 {vr(V_O+16*g,16)}, {ar(A_V+16*s2+4*g,4)}, {vr(V_P+4*s2,4)}, {srcc}")
                    cnt += 1
                    if cnt >= 5:
                        for _ in range(4):
                            if mi < len(mx):
                                a(mx[mi]); mi += 1
            while mi < len(mx):
                a(mx[mi]); mi += 1
        else:
            a("s_nop 7"); a("s_nop 7")
            for s_ in mx:
                a(s_)
        if has_s:
            if i == 0:
                a(f"v_mov_b32 v{V_MC}, v{V_TMAX}")
            else:
                lab = a.newlabel("L_nors")
                a(f"v_sub_f32 v{V_T}, v{V_TMAX}, v{V_MC}")
                a(f"v_cmp_lt_f32 vcc, s{S_THR}, v{V_T}")
                a(f"s_cbranch_vccz {lab}")
                a("s_nop 7"); a("s_nop 7")
                a(f"v_max_f32 v{V_T}, v{V_TMAX}, v{V_MC}")
                a(f"v_sub_f32 v{V_T+1}, v{V_MC}, v{V_T}")
                a(f"v_exp_f32 v{V_T+1}, v{V_T+1}")
                a(f"v_mov_b32 v{V_MC}, v{V_T}")
                a(f"v_mul_f32 v{V_L}, v{V_L}, v{V_T+1}")
                for k in range(64):
                    a(f"v_mul_f32 v{V_O+k}, v{V_O+k}, v{V_T+1}")
                a("s_nop 1")
                a.label(lab)

    def combine(self):
        a = self.a
        T = V_T
        E = V_S
        a.c("---- combine the two key halves, publish O")
        a(f"v_mov_b32 v{T+3}, v{V_L}")
        a(f"v_mov_b32 v{T+2}, v{V_MC}")
        a("s_nop 0")
        a(f"v_permlane32_swap_b32 v{V_L}, v{T+3}")
        a("s_nop 1")
        a(f"v_add_f32 v{V_L}, v{V_L}, v{T+3}")
        a(f"v_mov_b32 v{T+3}, v{V_L}")
        self.bar("c1")
        a(f"ds_write_b64 v{V_CST}, {vr(T+2,2)}")
        a("s_nop 3")
        for u in range(8):
            a(f"ds_write_b128 v{V_CW}, {vr(V_O+32+4*u,4)} offset:{u*1024}")
        a("s_waitcnt lgkmcnt(0)")
        self.bar("c2")
        a(f"ds_read_b64 {vr(T+2,2)}, v{V_CSR}")
        for u in range(8):
            a(f"ds_read_b128 {vr(V_O+32+4*u,4)}, v{V_CR} offset:{u*1024}")
        a("s_waitcnt lgkmcnt(8)")
        a(f"v_max_f32 v{T+4}, v{V_MC}, v{T+2}")
        a(f"v_sub_f32 v{T+6}, v{V_MC}, v{T+4}")
        a(f"v_sub_f32 v{T+8}, v{T+2}, v{T+4}")
        a(f"v_exp_f32 v{T+6}, v{T+6}")
        a(f"v_exp_f32 v{T+8}, v{T+8}")
        a("s_nop 0")
        a(f"v_mul_f32 v{T+5}, v{T+6}, v{V_L}")
        a(f"v_fma_f32 v{T+5}, v{T+8}, v{T+3}, v{T+5}")
        a(f"v_rcp_f32 v{T+5}, v{T+5}")
        a("s_nop 0")
        a(f"v_mul_f32 v{T+6}, v{T+6}, v{T+5}")
        a(f"v_mul_f32 v{T+8}, v{T+8}, v{T+5}")
        a(f"v_mov_b32 v{T+7}, v{T+6}")
        a(f"v_mov_b32 v{T+9}, v{T+8}")
        for k in range(16):
            a(f"v_pk_mul_f32 {vr(V_O+2*k,2)}, {vr(V_O+2*k,2)}, {vr(T+6,2)}")
        a("s_waitcnt lgkmcnt(0)")
        self.bar("c3")
        for u in range(8):
            for k in (2 * u, 2 * u + 1):
                a(f"v_pk_fma_f32 {vr(V_O+2*k,2)}, {vr(V_O+32+2*k,2)}, {vr(T+8,2)}, {vr(V_O+2*k,2)}")
            for k in (2 * u, 2 * u + 1):
                a(f"v_cvt_pk_bf16_f32 v{E+k}, v{V_O+2*k}, v{V_O+2*k+1}")
            if u & 1:
                g, uu = (u >> 2), (u >> 1) & 1
                a.vmop(f"buffer_store_dwordx4 {vr(E+8*g+4*uu,4)}, v{V_OST}, {sr(SRD_WS,4)}, 0 offen offset:{g*1024+uu*512} sc1", "ostore")
        L = V_LANE
        a(f"v_lshrrev_b32 v{T}, 4, v{L}")
        a(f"v_lshrrev_b32 v{T+1}, 1, v{T}")
        a(f"v_lshlrev_b32 v{T+1}, 4, v{T+1}")
        a(f"v_and_b32 v{T+2}, 1, v{T}")
        a(f"v_lshl_add_u32 v{T+1}, v{T+2}, 2, v{T+1}")
        a(f"v_and_b32 v{T+2}, 15, v{L}")
        a(f"v_lshrrev_b32 v{T+2}, 2, v{T+2}")
        a(f"v_add_u32 v{T+1}, v{T+1}, v{T+2}")
        a(f"v_mul_u32_u24 v{T+1}, 288, v{T+1}")
        a(f"v_and_b32 v{T+2}, 3, v{L}")
        a(f"v_lshl_add_u32 v{V_QA}, v{T+2}, 3, v{T+1}")
        a(f"v_add_u32 v{V_QA+1}, 0x10000, v{V_QA}")
        a(f"v_add_u32 v{V_QA+2}, 0x20000, v{V_QA}")
        a("s_waitcnt vmcnt(0)")
        self.bar("e1")
        self.bar("e2")

    def oproj(self):
        a = self.a
        T = V_T
        WOA = V_QA
        a.c("---- O projection")
        a(f"s_and_b32 s{S_T0}, s{S_IDX}, 0xfc")
        a(f"s_lshl_b32 s{S_T0}, s{S_T0}, 14")
        a(f"s_add_u32 s{S_T0}, s{S_T0}, s{S_W4K}")
        a(f"s_add_u32 s{S_T0}, s{S_T0}, {WS_O}")
        for hd in range(4):
            for tp in range(4):
                t = 4 * hd + tp
                a.vmop(f"buffer_load_dwordx4 {ar(A_OB+4*t,4)}, v{V_L16}, {sr(SRD_WS,4)}, s{S_T0} offen offset:{tp*1024} sc1", f"ob{t}")
            if hd < 3:
                a(f"s_add_u32 s{S_T0}, s{S_T0}, 16384")
        a(f"s_lshl_b32 s{S_T0}, s{S_B}, 2")
        a(f"s_add_u32 s{S_T0}, s{S_T0}, s{S_HH}")
        a(f"s_lshl_b32 s{S_T0}, s{S_T0}, 3")
        a(f"s_add_u32 s{S_T0}, s{S_T0}, s{S_J}")
        a(f"s_mul_i32 s{S_T0}, s{S_T0}, {PSTRIDE}")
        a(f"s_mul_i32 s{S_T1}, s{S_WAVE}, 5120")
        a(f"s_add_u32 s{S_T0}, s{S_T0}, s{S_T1}")
        a(f"s_add_u32 s{S_T0}, s{S_T0}, {WS_P}")
        a(f"v_mov_b32 v{V_E+18}, 0")
        a(f"v_mov_b32 v{V_E+19}, 0")
        RING = 10
        AHEAD = 7
        seq = [(nb, t) for nb in range(9) for t in range(16)]

        def reads(k):
            nb, t = seq[k]
            out = []
            for x in range(2):
                off = wo_lds(t) + nb * 32 + x * 2304
                rs, imm = off // 65536, off % 65536
                out.append(f"ds_read_b64_tr_b16 {ar(A_W+4*(k%RING)+2*x,2)}, v{WOA+rs} offset:{imm}")
            return out
        for k in range(AHEAD):
            for s_ in reads(k):
                a(s_)
        for k, (nb, t) in enumerate(seq):
            if nb == 0:
                a.wait_tag(f"ob{t}")
            ahead = min(AHEAD - 1, len(seq) - 1 - k)
            a(f"s_waitcnt lgkmcnt({2*ahead})")
            srcc = "0" if t == 0 else vr(V_ACC+4*nb,4)
            a(f"v_mfma_f32_16x16x32_bf16 {vr(V_ACC+4*nb,4)}, {ar(A_W+4*(k%RING),4)}, {ar(A_OB+4*t,4)}, {srcc}")
            if k + AHEAD < len(seq):
                for s_ in reads(k + AHEAD):
                    a(s_)
            if t == 10 and nb >= 1:
                pb = nb - 1
                p, h = pb // 2, pb % 2
                a(f"v_cvt_pk_bf16_f32 v{V_E+4*p+2*h}, v{V_ACC+4*pb}, v{V_ACC+4*pb+1}")
                a(f"v_cvt_pk_bf16_f32 v{V_E+4*p+2*h+1}, v{V_ACC+4*pb+2}, v{V_ACC+4*pb+3}")
                if h == 1:
                    a.vmop(f"buffer_store_dwordx4 {vr(V_E+4*p,4)}, v{V_L16}, {sr(SRD_WS,4)}, s{S_T0} offen offset:{p*1024} sc1", "pstore")
        a("s_nop 7")
        a(f"v_cvt_pk_bf16_f32 v{V_E+16}, v{V_ACC+32}, v{V_ACC+33}")
        a(f"v_cvt_pk_bf16_f32 v{V_E+17}, v{V_ACC+34}, v{V_ACC+35}")
        a(f"s_add_u32 s{S_T0}, s{S_T0}, 4096")
        a.vmop(f"buffer_store_dwordx4 {vr(V_E+16,4)}, v{V_L16}, {sr(SRD_WS,4)}, s{S_T0} offen sc1", "pstore")
        self.stamp("oproj")
        a("s_waitcnt vmcnt(0)")
        self.bar("f1")
        self.bar("f2")

    def final(self, endlab="L_end"):
        a = self.a
        T = V_T
        R = V_S
        acc = V_O
        a.c("---- final reduce")
        a(f"v_cmp_gt_u32 vcc, 160, v0")
        a(f"s_and_saveexec_b64 {sr(S_SAVE,2)}, vcc")
        a(f"s_cbranch_execz {endlab}")
        a(f"s_mul_i32 s{S_T0}, s{S_J}, 160")
        a(f"v_add_u32 v{T}, s{S_T0}, v0")
        a(f"v_lshlrev_b32 v{T+1}, 4, v{T}")
        a(f"s_lshl_b32 s{S_T0}, s{S_B}, 2")
        a(f"s_add_u32 s{S_T0}, s{S_T0}, s{S_HH}")
        a(f"s_mul_i32 s{S_T0}, s{S_T0}, {8*PSTRIDE}")
        a(f"s_add_u32 s{S_T0}, s{S_T0}, {WS_P}")
        for jj in range(8):
            a(f"buffer_load_dwordx4 {vr(R+4*jj,4)}, v{T+1}, {sr(SRD_WS,4)}, s{S_T0} offen sc1")
            if jj < 7:
                a(f"s_add_u32 s{S_T0}, s{S_T0}, {PSTRIDE}")
        a(f"v_mul_u32_u24 v{T+2}, 3277, v{T}")
        a(f"v_lshrrev_b32 v{T+2}, 20, v{T+2}")
        a(f"v_mul_u32_u24 v{T+3}, 320, v{T+2}")
        a(f"v_sub_u32 v{T+3}, v{T}, v{T+3}")
        a(f"v_lshrrev_b32 v{T+4}, 6, v{T+3}")
        a(f"v_and_b32 v{T+5}, 63, v{T}")
        a(f"v_and_b32 v{T+6}, 15, v{T+5}")
        a(f"v_lshl_add_u32 v{T+6}, v{T+2}, 4, v{T+6}")
        a(f"v_mul_u32_u24 v{T+6}, 1152, v{T+6}")
        a(f"v_lshrrev_b32 v{T+7}, 4, v{T+5}")
        a(f"v_lshlrev_b32 v{T+7}, 3, v{T+7}")
        a(f"v_lshl_add_u32 v{T+7}, v{T+4}, 6, v{T+7}")
        a(f"v_add_u32 v{T+6}, v{T+6}, v{T+7}")
        a(f"s_mul_i32 s{S_T0}, s{S_B}, 73728")
        a(f"s_mul_i32 s{S_T1}, s{S_HH}, 288")
        a(f"s_add_u32 s{S_T0}, s{S_T0}, s{S_T1}")
        a(f"s_mov_b32 s{S_T1}, 0xffff0000")
        for jj in range(8):
            a(f"s_waitcnt vmcnt({7-jj})")
            for d in range(4):
                src = R + 4 * jj + d
                if jj == 0:
                    a(f"v_lshlrev_b32 v{acc+2*d}, 16, v{src}")
                    a(f"v_and_b32 v{acc+2*d+1}, s{S_T1}, v{src}")
                else:
                    a(f"v_lshlrev_b32 v{T+8}, 16, v{src}")
                    a(f"v_and_b32 v{T+9}, s{S_T1}, v{src}")
                    a(f"v_add_f32 v{acc+2*d}, v{acc+2*d}, v{T+8}")
                    a(f"v_add_f32 v{acc+2*d+1}, v{acc+2*d+1}, v{T+9}")
        for d in range(4):
            a(f"v_cvt_pk_bf16_f32 v{acc+8+d}, v{acc+2*d}, v{acc+2*d+1}")
        a(f"buffer_store_dwordx2 {vr(acc+8,2)}, v{T+6}, {sr(SRD_OUT,4)}, s{S_T0} offen")
        a(f"v_cmp_gt_u32 vcc, 4, v{T+4}")
        a(f"s_and_b64 exec, exec, vcc")
        a(f"s_cbranch_execz {endlab}")
        a(f"buffer_store_dwordx2 {vr(acc+10,2)}, v{T+6}, {sr(SRD_OUT,4)}, s{S_T0} offen offset:32")

    def write_stamps(self, a, who, T):
        self.stamp("end", who)
        a("s_mov_b64 exec, -1")
        a("s_waitcnt lgkmcnt(0)")
        if self.ts == "probe":
            if who == "l":
                return
            k = self.stampnames["c"].index(self.opts["probe"])
            e = self.stampnames["c"].index("end")
            a(f"s_sub_u32 s{S_T0}, s{S_TS+2*k}, s{S_TS}")
            a(f"s_mul_i32 s{S_T0}, s{S_T0}, {self.opts.get('mult',1)}")
            a(f"s_add_u32 s{S_T0}, s{S_T0}, s{S_TS+2*e}")
            lab = a.newlabel("L_spin")
            a.label(lab)
            a(f"s_memrealtime {sr(S_T2,2)}")
            a("s_waitcnt lgkmcnt(0)")
            a(f"s_sub_u32 s{S_T1}, s{S_T2}, s{S_T0}")
            a(f"s_cmp_lt_i32 s{S_T1}, 0")
            a(f"s_cbranch_scc1 {lab}")
            return
        if self.ts == "dbg":
            if who == "l":
                return
            lab = a.newlabel("L_nots")
            a(f"s_cmp_lg_u32 s{S_WAVE}, 0")
            a(f"s_cbranch_scc1 {lab}")
            a(f"s_mov_b32 s{SRD_DBG}, s{S_DBG}")
            a(f"s_mov_b32 s{SRD_DBG+1}, s{S_DBG+1}")
            a(f"s_mov_b32 s{SRD_DBG+2}, 256")
            a(f"s_mov_b32 s{SRD_DBG+3}, 0x20000")
            a("s_mov_b64 exec, 1")
            for k, st in enumerate(self.dbgsel):
                if k == 0:
                    a(f"s_not_b32 s{S_T0}, s{S_TS+2*st}")
                    a(f"v_mov_b32 v{T+1}, s{S_T0}")
                else:
                    a(f"v_mov_b32 v{T+1}, s{S_TS+2*st}")
                a(f"v_mov_b32 v{T}, {32+4*k}")
                a(f"buffer_atomic_umax v{T+1}, v{T}, {sr(SRD_DBG,4)}, 0 offen sc1")
                a("s_nop 1")
            a.label(lab)
            return
        a(f"s_mul_i32 s{S_T0}, s2, {NW}")
        a(f"s_add_u32 s{S_T0}, s{S_T0}, s{S_WAVE}")
        a(f"s_lshl_b32 s{S_T0}, s{S_T0}, 6")
        a(f"s_add_u32 s{S_T0}, s{S_T0}, {WS_TS}")
        a(f"v_mov_b32 v{T}, s{S_T0}")
        a("s_mov_b64 exec, 1")
        for k in range(self.nts[who]):
            a(f"v_mov_b32 v{T+1}, s{S_TS+2*k}")
            a(f"buffer_store_dword v{T+1}, v{T}, {sr(SRD_WS,4)}, 0 offen offset:{4*k}")
            a("s_nop 1")

    def l_poll(self, srd, vaddr, nl, want):
        a = self.l
        T = L_T
        lab = a.newlabel("L_poll")
        done = a.newlabel("L_pdone")
        a(f"s_mov_b64 exec, {(1<<nl)-1:#x}")
        a(f"s_mov_b32 s{S_SPIN}, 0")
        a.label(lab)
        a(f"buffer_load_dword v{T+2}, v{vaddr}, {sr(srd,4)}, 0 offen sc1")
        a("s_waitcnt vmcnt(0)")
        a(f"v_cmp_le_u32 vcc, {want}, v{T+2}")
        a(f"s_add_u32 s{S_SPIN}, s{S_SPIN}, 1")
        a("s_nop 2")
        a("s_cmp_eq_u64 vcc, exec")
        a(f"s_cbranch_scc1 {done}")
        a(f"s_cmp_lt_u32 s{S_SPIN}, 0x8000")
        a(f"s_cbranch_scc1 {lab}")
        a.label(done)
        a("s_mov_b64 exec, -1")

    def l_signal(self, vflag):
        a = self.l
        T = L_T
        a(f"v_mov_b32 v{T+1}, 1")
        a("s_mov_b64 exec, 1")
        a(f"buffer_store_dword v{T+1}, v{vflag}, {sr(SRD_WS,4)}, 0 offen sc1")
        a("s_mov_b64 exec, -1")

    def loader(self):
        a = self.l
        T = L_T
        L = V_LANE
        a.label("L_loader")
        if self.ts:
            self.nts["l"] = 1 if "start" in self.stampset else 0
            if "start" in self.stampset:
                self.stampnames["l"].append("start")
        self.dma_voffsets(a, T, L_KOFF, L_VOFF, L_WQOFF, L_XOFF)
        a("s_waitcnt lgkmcnt(0)")
        self.srds(a)
        self.issue(a, self.q_item_ops(0), "q0")
        a(f"s_lshl_b32 s{S_T0}, s{S_IDX}, 7")
        a(f"v_lshlrev_b32 v{T}, 15, v{L}")
        a(f"v_add_u32 v{T}, s{S_T0}, v{T}")
        a(f"v_mov_b32 v{T+1}, 0")
        a("s_mov_b64 exec, 3")
        a.vmop(f"buffer_store_dword v{T+1}, v{T}, {sr(SRD_WS,4)}, 0 offen sc1", "rst")
        a("s_mov_b64 exec, -1")
        self.issue(a, self.q_item_ops(1), "q1")
        self.stamp("ldma0", "l")
        a(f"s_mul_i32 s{S_T0}, s{S_J}, 589824")
        a(f"s_mul_i32 s{S_T1}, s{S_HH}, 288")
        a(f"s_add_u32 s{S_T0}, s{S_T0}, s{S_T1}")
        a(f"s_add_u32 s{SRD_WO}, s{S_WO}, s{S_T0}")
        a(f"s_addc_u32 s{SRD_WO+1}, s{S_WO+1}, 0")
        a(f"s_sub_u32 s{SRD_WO+2}, 4718592, s{S_T0}")
        a(f"s_mov_b32 s{SRD_WO+3}, 0x20000")
        a(f"s_mov_b32 s{SRD_DBG}, s{S_DBG}")
        a(f"s_mov_b32 s{SRD_DBG+1}, s{S_DBG+1}")
        a(f"s_mov_b32 s{SRD_DBG+2}, 256")
        a(f"s_mov_b32 s{SRD_DBG+3}, 0x20000")
        for u in range(9):
            a(f"v_add_u32 v{T}, {64*u}, v{L}")
            a(f"v_mul_u32_u24 v{T+1}, 3641, v{T}")
            a(f"v_lshrrev_b32 v{T+1}, 16, v{T+1}")
            a(f"v_mul_u32_u24 v{T+2}, 18, v{T+1}")
            a(f"v_sub_u32 v{T+2}, v{T}, v{T+2}")
            a(f"v_mul_u32_u24 v{T+1}, 1152, v{T+1}")
            a(f"v_lshl_add_u32 v{T+1}, v{T+2}, 4, v{T+1}")
            a(f"v_subrev_u32 v{L_WOOFF+u}, {1024*(u%4)}, v{T+1}")
        a(f"s_lshl_b32 s{S_T0}, s{S_IDX}, 7")
        a(f"v_mov_b32 v{T+4}, s{S_T0}")
        a(f"v_add_u32 v{T+5}, {WS_FLAG2}, v{T+4}")
        a(f"s_and_b32 s{S_T0}, s{S_IDX}, 0xfc")
        a(f"v_add_u32 v{T+6}, s{S_T0}, v{L}")
        a(f"v_lshlrev_b32 v{T+6}, 7, v{T+6}")
        a(f"s_lshl_b32 s{S_T0}, s{S_B}, 5")
        a(f"s_add_u32 s{S_T0}, s{S_T0}, s{S_HH}")
        a(f"v_lshlrev_b32 v{T+7}, 2, v{L}")
        a(f"v_add_u32 v{T+7}, s{S_T0}, v{T+7}")
        a(f"v_lshlrev_b32 v{T+7}, 7, v{T+7}")
        a(f"v_add_u32 v{T+7}, {WS_FLAG2}, v{T+7}")
        a(f"s_lshl_b32 s{S_T0}, s{S_B}, 2")
        a(f"v_mov_b32 v{T+8}, s{S_T0}")
        nxt = self.early
        for n in range(9):
            a.wait_tag(f"q{n}")
            self.stamp(f"lq{n}", "l")
            a.barrier(f"q{n}")
            if n == 1:
                a(f"v_mov_b32 v{T+1}, 1")
                a("s_mov_b64 exec, 1")
                a.vmop(f"buffer_atomic_add v{T+1}, v{T+8}, {sr(SRD_DBG,4)}, 0 offen sc1", "rdyadd")
                a("s_mov_b64 exec, -1")
            if n + 2 <= 8:
                self.issue(a, self.q_item_ops(n + 2), f"q{n+2}")
            if n >= 7:
                self.issue(a, self.unit_ops(nxt, "l"), f"u{nxt}"); nxt += 1
        a.barrier("x1")
        a.barrier("x2")
        while nxt <= min(self.LA - 1, 8):
            self.issue(a, self.unit_ops(nxt, "l"), f"u{nxt}"); nxt += 1
        wo_next = 0
        for i in range(17):
            need = [kunit(0)] if i == 0 else ([vunit(15)] if i == 16 else [kunit(i), vunit(i - 1)])
            mine = [u for u in need if f"u{u}" in a.vm]
            if mine:
                a.wait_tag(f"u{max(mine)}")
            self.stamp(f"law{i}", "l")
            a.barrier(f"a{i}")
            lim = min(31, 2 * i + self.LA, 2 * i + 8 if i >= 1 else 9)
            while nxt <= lim:
                self.issue(a, self.unit_ops(nxt, "l"), f"u{nxt}"); nxt += 1
            if i == 10:
                a.vmop(f"buffer_load_dword v{L_RDY}, v{T+8}, {sr(SRD_DBG,4)}, 0 offen sc1", "rdy")
            avail = {14: 2, 15: 4, 16: 7}.get(i, -1)
            if nxt > 31:
                while wo_next <= avail:
                    self.issue(a, self.wo_kstep_ops(wo_next), f"wo{wo_next}"); wo_next += 1
        a.barrier("c1")
        while wo_next <= 9:
            self.issue(a, self.wo_kstep_ops(wo_next), f"wo{wo_next}"); wo_next += 1
        a.barrier("c2")
        while wo_next <= 11:
            self.issue(a, self.wo_kstep_ops(wo_next), f"wo{wo_next}"); wo_next += 1
        a.barrier("c3")
        while wo_next <= 15:
            self.issue(a, self.wo_kstep_ops(wo_next), f"wo{wo_next}"); wo_next += 1
        rok = a.newlabel("L_rok")
        a.wait_tag("rdy")
        a(f"v_readfirstlane_b32 s{S_T0}, v{L_RDY}")
        a("s_nop 3")
        a(f"s_cmp_ge_u32 s{S_T0}, 32")
        a(f"s_cbranch_scc1 {rok}")
        self.l_poll(SRD_DBG, T + 8, 1, 32)
        a.label(rok)
        a("s_waitcnt vmcnt(0)")
        a.barrier("e1")
        self.l_signal(T + 4)
        self.l_poll(SRD_WS, T + 6, 4, 1)
        a.barrier("e2")
        a.barrier("f1")
        self.l_signal(T + 5)
        self.l_poll(SRD_WS, T + 7, 8, 1)
        a.barrier("f2")
        if self.ts:
            self.write_stamps(a, "l", T)
        a("s_endpgm")

    def build(self):
        a = self.a
        self.prologue()
        self.stamp("pro")
        for n in range(9):
            self.q_step(n)
            self.stamp(f"q{n}")
        self.stamp("qend")
        self.qx_step()
        self.stamp("qx")
        for i in range(17):
            self.att_step(i)
            self.stamp(f"a{i}")
        self.stamp("att")
        self.combine()
        self.stamp("ex1")
        self.oproj()
        self.stamp("ex2")
        if self.ts:
            self.final("L_fin")
            a.label("L_fin")
            self.write_stamps(a, "c", V_T)
        else:
            self.final()
        a.label("L_end")
        a("s_endpgm")
        self.loader()
        assert self.a.bars == self.l.bars, (self.a.bars, self.l.bars)
        hdr = [
            "; fused GQA block: Q projection + attention + output projection (generated)",
            f"; @launch grid=(256,1,1) block=({64*NW},1,1) lds={LDS_BYTES}",
            '.amdgcn_target "amdgcn-amd-amdhsa--gfx950"',
            ".text",
            f".globl {KNAME}",
            ".p2align 8",
            f".type {KNAME},@function",
            f"{KNAME}:",
        ]
        ftr = [
            "L_codeend:",
            "    s_endpgm",
            '.section .rodata,"a"',
            ".p2align 6",
            f".amdhsa_kernel {KNAME}",
            "  .amdhsa_next_free_vgpr 256",
            "  .amdhsa_next_free_sgpr 102",
            f"  .amdhsa_accum_offset {ACC_OFF}",
            "  .amdhsa_group_segment_fixed_size 0",
            "  .amdhsa_kernarg_size 64",
            "  .amdhsa_user_sgpr_count 2",
            "  .amdhsa_user_sgpr_kernarg_segment_ptr 1",
            "  .amdhsa_system_sgpr_workgroup_id_x 1",
            ".end_amdhsa_kernel",
        ]
        body = a.text().replace("    @@LOADER@@\n", self.l.text())
        return "\n".join(hdr) + "\n" + body + "\n".join(ftr) + "\n"


if __name__ == "__main__":
    import argparse
    p = argparse.ArgumentParser()
    p.add_argument("-o", default="standalone__gqa_block_cached__near_ridge.s")
    p.add_argument("--ts", default=False)
    p.add_argument("--kvaux", default="")
    p.add_argument("--stamps", default=None)
    p.add_argument("--notouch", action="store_true")
    p.add_argument("--noswap", action="store_true")
    p.add_argument("--la", type=int, default=5)
    p.add_argument("--early", type=int, default=3)
    p.add_argument("--probe", default=None)
    p.add_argument("--mult", type=int, default=1)
    args = p.parse_args()
    if args.probe:
        args.ts = "probe"
        args.stamps = "start," + args.probe + ",end"
    g = Gen(ts=args.ts, opts={"probe": args.probe, "mult": args.mult}, kvaux=args.kvaux, stampset=args.stamps.split(",") if args.stamps else None,
            touch=not args.notouch, LA=args.la, swap=not args.noswap, early=args.early)
    open(args.o, "w").write(g.build())
    print("written", args.o, len(g.a.L) + len(g.l.L), "lines", g.stampnames)
```

```python
import sys, math, struct

KNAME = "standalone__gqa_block_cached__near_ridge_kernel"

UNIT = 16384
LDS_BYTES = 163840
QSLOT = [0, 24576, 49152]
QX_OFF = 65536
SCR_OFF = 65536
FAST_OFF = 162816
STATS_OFF = 160768
WS_FLAG1 = 0
WS_FLAG2 = 32768
WS_O = 0x100000
WS_P = 0x800000
WS_TS = 0x2000000
PSTRIDE = 20480
C_SCALE = math.log2(math.e) / math.sqrt(128.0)
T_RESCALE = 8.0
NW = 5


def f32bits(x):
    return struct.unpack("<I", struct.pack("<f", x))[0]


def phys(u):
    return (5 + u) % 10


def kunit(i):
    return 0 if i == 0 else 2 * i - 1


def vunit(i):
    return 31 if i == 15 else 2 * i + 2


def unit_desc(u):
    if u == 0:
        return ("K", 0)
    if u == 31:
        return ("V", 15)
    if u & 1:
        return ("K", (u + 1) // 2)
    return ("V", (u - 2) // 2)


def wo_lds(t):
    return 114688 + 9216 * t if t < 5 else 9216 * (t - 5)


class Asm:
    def __init__(self, pfx):
        self.L = []
        self.vm = []
        self.nlabel = 0
        self.pfx = pfx
        self.nbar = 0

    def __call__(self, s):
        self.L.append("    " + s)

    def label(self, name):
        self.L.append(name + ":")

    def c(self, s):
        self.L.append("    ; " + s)

    def newlabel(self, p="L"):
        self.nlabel += 1
        return f"{p}_{self.pfx}{self.nlabel}"

    def vmop(self, s, tag):
        self(s)
        self.vm.append(tag)

    def wait_tag(self, tag):
        idx = [i for i, t in enumerate(self.vm) if t == tag]
        assert idx, tag
        n = min(len(self.vm) - 1 - idx[-1], 63)
        self(f"s_waitcnt vmcnt({n})")

    def barrier(self, name):
        self.nbar += 1
        self.bars = getattr(self, "bars", []) + [name]
        self(f"s_barrier        ; {name}")

    def text(self):
        return "\n".join(self.L) + "\n"


S_X, S_K, S_V, S_WQ, S_WO, S_OUT, S_DBG, S_WS = 4, 6, 8, 10, 12, 14, 16, 18
SRD_X, SRD_WQ, SRD_K, SRD_V, SRD_WO, SRD_WS, SRD_OUT, SRD_DBG = 20, 24, 28, 32, 36, 40, 44, 48
S_WAVE = 52
S_B = 53
S_J = 54
S_HH = 55
S_IDX = 56
S_T0, S_T1, S_T3 = 57, 58, 59
S_T2 = 64
S_SWAP = 61
S_W4K = 63
S_C = 66
S_THR = 67
S_SPIN = 68
S_FAST = 62
S_RDYOK = 71
S_XCC = 65
S_QB = 69
S_KS = 70
S_SLOT = 71
S_SAVE = 72
S_PC = 74
S_TS = 76

ACC_OFF = 144
V_LANE = 1
V_KA = 2
V_VA = 10
V_L16 = 14
V_TMAX = 15
V_MC = 16
V_L = 17
V_T = 18
V_QA = 30
V_QB = 31
V_CST, V_CSR, V_CW, V_CR, V_OST = 35, 36, 37, 38, 39
V_P = 40
V_S = 48
V_O = 80
V_DK = 30
V_ACC = 80
V_E = 116
V_WOA = 136
A_Q = 0
A_K = 32
A_V = 64
A_OB = 0
A_W = 64
V_EKOFF = 80
V_EVOFF = 84
V_PFD = 88

L_KOFF = 2
L_VOFF = 6
L_WQOFF = 7
L_XOFF = 8
L_WOOFF = 10
L_T = 20
L_RDY = 32


def vr(b, n=1):
    return f"v{b}" if n == 1 else f"v[{b}:{b+n-1}]"


def ar(b, n=1):
    return f"a{b}" if n == 1 else f"a[{b}:{b+n-1}]"


def sr(b, n=1):
    return f"s{b}" if n == 1 else f"s[{b}:{b+n-1}]"


class Gen:
    def __init__(self, ts=False, kvaux="", stampset=None, touch=True, LA=5, swap=True, early=3, fast=True, opts=None):
        self.a = Asm("c")
        self.l = Asm("l")
        self.ts = ts
        self.nts = {"c": 0, "l": 0}
        self.kvaux = kvaux
        self.touch = touch
        self.LA = LA
        self.swap = swap
        self.fast = fast
        self.early = early
        self.opts = opts or {}
        self.dbgsel = [0, 1, 2, 3, 4, 5, 6, 8]
        self.stampset = stampset or ["start", "qend", "qx", "att", "comb", "ex1", "oproj", "ex2", "end"]
        self.stampnames = {"c": [], "l": []}

    def stamp(self, name="end", who="c"):
        if not self.ts or name not in self.stampset:
            return
        a = self.a if who == "c" else self.l
        self.stampnames[who].append(name)
        r = S_TS + 2 * self.nts[who]
        assert r + 1 <= 101
        a(f"s_memrealtime {sr(r,2)}")
        self.nts[who] += 1

    def bar(self, name):
        self.a.barrier(name)

    def q_item_ops(self, n):
        base = QSLOT[n % 3]
        g = []
        for j in range(16):
            pre = []
            if j % 4 == 0:
                pre.append(f"s_mov_b32 m0, {base + (j//4)*4096}")
            pre.append(f"s_mov_b32 s{S_T3}, {n*64*8192 + j*32768 - (j%4)*1024}")
            pre.append(f"buffer_load_dwordx4 v{L_WQOFF}, {sr(SRD_WQ,4)}, s{S_T3} offen offset:{(j%4)*1024} lds")
            g.append(pre)
        for j in range(8):
            pre = []
            if j % 4 == 0:
                pre.append(f"s_mov_b32 m0, {base + 16384 + (j//4)*4096}")
            pre.append(f"s_mov_b32 s{S_T3}, {128*n + j*9216 - (j%4)*1024}")
            pre.append(f"buffer_load_dwordx4 v{L_XOFF+(j&1)}, {sr(SRD_X,4)}, s{S_T3} offen offset:{(j%4)*1024} lds")
            g.append(pre)
        return g

    def unit_ops(self, u, who):
        kind, i = unit_desc(u)
        base = phys(u) * UNIT
        srd = SRD_K if kind == "K" else SRD_V
        aux = self.kvaux
        g = []
        if who == "l":
            for j in range(16):
                pre = []
                if j == 0 and self.swap:
                    pre.append(f"s_xor_b32 s{S_T2}, s{S_SWAP}, {i*16384}")
                if j % 4 == 0:
                    pre.append(f"s_mov_b32 m0, {base + (j//4)*4096}")
                    if self.swap:
                        pre.append(f"s_add_u32 s{S_T3}, s{S_T2}, {(j//4)*4096}")
                    else:
                        pre.append(f"s_mov_b32 s{S_T3}, {i*16384 + (j//4)*4096}")
                voff = L_KOFF + (j & 3) if kind == "K" else L_VOFF
                pre.append(f"buffer_load_dwordx4 v{voff}, {sr(srd,4)}, s{S_T3} offen offset:{(j%4)*1024} {aux} lds")
                g.append(pre)
        else:
            for jj in range(4):
                pre = []
                if jj == 0:
                    pre.append(f"s_add_u32 m0, s{S_W4K}, {base}")
                    if self.swap:
                        pre.append(f"s_xor_b32 s{S_T3}, s{S_SWAP}, {i*16384}")
                        pre.append(f"s_add_u32 s{S_T3}, s{S_T3}, s{S_W4K}")
                    else:
                        pre.append(f"s_add_u32 s{S_T3}, s{S_W4K}, {i*16384}")
                voff = V_EKOFF + jj if kind == "K" else V_EVOFF
                pre.append(f"buffer_load_dwordx4 v{voff}, {sr(srd,4)}, s{S_T3} offen offset:{jj*1024} {aux} lds")
                g.append(pre)
        return g

    def wo_kstep_ops(self, t):
        g = []
        base = wo_lds(t)
        for u in range(9):
            pre = []
            if u == 0:
                pre.append(f"s_add_u32 s{S_T3}, s{S_HH}, {t//4}")
                pre.append(f"s_and_b32 s{S_T3}, s{S_T3}, 3")
                pre.append(f"s_mul_i32 s{S_T3}, s{S_T3}, {4*36864}")
                if t % 4:
                    pre.append(f"s_add_u32 s{S_T3}, s{S_T3}, {(t%4)*36864}")
            if u % 4 == 0:
                pre.append(f"s_mov_b32 m0, {base + u*1024}")
                pre.append("s_nop 0")
            pre.append(f"buffer_load_dwordx4 v{L_WOOFF+u}, {sr(SRD_WO,4)}, s{S_T3} offen offset:{(u%4)*1024} lds")
            g.append(pre)
        return g

    @staticmethod
    def issue(a, groups, tag):
        for grp in groups:
            for s in grp[:-1]:
                a(s)
            a.vmop(grp[-1], tag)

    def dma_voffsets(self, a, T, koff, voff, wqoff=None, xoff=None):
        L = V_LANE
        a(f"v_lshrrev_b32 v{T}, 4, v{L}")
        a(f"v_and_b32 v{T+1}, 15, v{L}")
        a(f"v_lshlrev_b32 v{T+2}, 2, v{T}")
        a(f"v_xor_b32 v{T+2}, v{T+2}, v{T+1}")
        a(f"v_lshlrev_b32 v{T+2}, 4, v{T+2}")
        a(f"v_lshl_add_u32 v{voff}, v{T}, 8, v{T+2}")
        if wqoff is not None:
            a(f"v_lshl_add_u32 v{wqoff}, v{T}, 13, v{T+2}")
            a(f"v_lshrrev_b32 v{T+3}, 3, v{L}")
            a(f"v_and_b32 v{T+4}, 7, v{L}")
            a(f"v_mul_u32_u24 v{T+3}, 1152, v{T+3}")
            for e in range(2):
                a(f"v_add_u32 v{T+2}, {4*e}, v{T}")
                a(f"v_xor_b32 v{T+2}, v{T+2}, v{T+4}")
                a(f"v_lshl_add_u32 v{xoff+e}, v{T+2}, 4, v{T+3}")
        for jj in range(4):
            a(f"v_add_u32 v{T+2}, {4*jj}, v{T}")
            a(f"v_xor_b32 v{T+2}, v{T+2}, v{T+1}")
            a(f"v_lshlrev_b32 v{T+2}, 4, v{T+2}")
            a(f"v_lshl_add_u32 v{koff+jj}, v{T}, 8, v{T+2}")

    def prologue(self):
        a = self.a
        L, T = V_LANE, V_T
        a("s_cmp_ge_u32 s2, 256")
        a("s_cbranch_scc1 L_end")
        self.stamp("start")
        a("s_load_dwordx16 s[4:19], s[0:1], 0")
        a(f"s_getpc_b64 {sr(S_PC,2)}")
        a.label("L_pcbase")
        a(f"v_lshrrev_b32 v{T+1}, 6, v0")
        a(f"v_and_b32 v{L}, 63, v0")
        a(f"v_readfirstlane_b32 s{S_WAVE}, v{T+1}")
        a(f"s_and_b32 s{S_J}, s2, 7")
        a(f"s_lshr_b32 s{S_SLOT}, s2, 3")
        a(f"s_lshr_b32 s{S_B}, s{S_SLOT}, 2")
        a(f"s_and_b32 s{S_HH}, s{S_SLOT}, 3")
        a(f"s_lshl_b32 s{S_IDX}, s{S_B}, 5")
        a(f"s_lshl_b32 s{S_T1}, s{S_J}, 2")
        a(f"s_add_u32 s{S_IDX}, s{S_IDX}, s{S_T1}")
        a(f"s_add_u32 s{S_IDX}, s{S_IDX}, s{S_HH}")
        a(f"s_and_b32 s{S_SWAP}, s{S_HH}, 1")
        a(f"s_lshl_b32 s{S_SWAP}, s{S_SWAP}, 14")
        a(f"s_mul_i32 s{S_T0}, s{S_B}, 73728")
        a(f"s_lshl_b32 s{S_T1}, s{S_J}, 2")
        a(f"s_add_u32 s{S_T1}, s{S_T1}, s{S_HH}")
        a(f"s_lshl_b32 s{S_T1}, s{S_T1}, 8")
        a(f"s_lshl_b32 s{S_T2}, s{S_B}, 4")
        a(f"s_lshl_b32 s{S_T3}, s{S_J}, 1")
        a(f"s_add_u32 s{S_T2}, s{S_T2}, s{S_T3}")
        a(f"s_lshr_b32 s{S_T3}, s{S_HH}, 1")
        a(f"s_add_u32 s{S_T2}, s{S_T2}, s{S_T3}")
        a(f"s_lshl_b32 s{S_T2}, s{S_T2}, 18")
        a(f"s_mov_b32 s{SRD_X+2}, 73728")
        a(f"s_mov_b32 s{SRD_X+3}, 0x20000")
        a(f"s_sub_u32 s{SRD_WQ+2}, 4718592, s{S_T1}")
        a(f"s_mov_b32 s{SRD_WQ+3}, 0x20000")
        a(f"s_mov_b32 s{SRD_K+2}, 262144")
        a(f"s_mov_b32 s{SRD_K+3}, 0x20000")
        a(f"s_mov_b32 s{SRD_V+2}, 262144")
        a(f"s_mov_b32 s{SRD_V+3}, 0x20000")
        a(f"s_mov_b32 s{SRD_WS+2}, 0x10000000")
        a(f"s_mov_b32 s{SRD_WS+3}, 0x20000")
        a(f"s_cmp_lg_u32 s{S_WAVE}, 4")
        a(f"s_cbranch_scc1 L_compute")
        a("@@LOADER@@")
        a.label("L_compute")
        a(f"s_and_b32 s{S_QB}, s{S_WAVE}, 1")
        a(f"s_lshr_b32 s{S_KS}, s{S_WAVE}, 1")
        a(f"s_lshl_b32 s{S_W4K}, s{S_WAVE}, 12")
        a("s_waitcnt lgkmcnt(0)")
        self.srds(a)
        a(f"s_mov_b32 s{S_C}, {f32bits(C_SCALE):#x}")
        a(f"s_mov_b32 s{S_THR}, {f32bits(T_RESCALE):#x}")
        a(f"s_mov_b32 s{SRD_OUT}, s{S_OUT}")
        a(f"s_mov_b32 s{SRD_OUT+1}, s{S_OUT+1}")
        a(f"s_mov_b32 s{SRD_OUT+2}, 589824")
        a(f"s_mov_b32 s{SRD_OUT+3}, 0x20000")
        a(f"v_lshrrev_b32 v{T}, 4, v{L}")
        a(f"v_and_b32 v{T+1}, 15, v{L}")
        a(f"v_lshrrev_b32 v{T+2}, 2, v{T+1}")
        a(f"v_and_b32 v{T+3}, 3, v{L}")
        a(f"v_and_b32 v{T+4}, 1, v{T}")
        a(f"v_lshrrev_b32 v{T+5}, 1, v{T}")
        a(f"v_lshl_add_u32 v{T+6}, v{T+5}, 3, v{T+2}")
        a(f"v_lshlrev_b32 v{T+6}, 8, v{T+6}")
        a(f"v_xor_b32 v{T+7}, s{S_WAVE}, v{T+2}")
        a(f"v_lshl_add_u32 v{T+6}, v{T+7}, 6, v{T+6}")
        a(f"v_lshl_add_u32 v{T+6}, v{T+4}, 5, v{T+6}")
        a(f"v_and_b32 v{T+7}, 1, v{T+3}")
        a(f"v_lshl_add_u32 v{T+6}, v{T+7}, 4, v{T+6}")
        a(f"v_lshrrev_b32 v{T+7}, 1, v{T+3}")
        a(f"v_lshl_add_u32 v{V_QA}, v{T+7}, 3, v{T+6}")
        a(f"v_and_b32 v{T+8}, 31, v{L}")
        a(f"v_lshrrev_b32 v{T+9}, 5, v{L}")
        a(f"v_lshrrev_b32 v{T+10}, 1, v{T+8}")
        a(f"v_and_b32 v{T+10}, 7, v{T+10}")
        a(f"v_xor_b32 v{T+10}, v{T+10}, v{T+9}")
        a(f"v_lshlrev_b32 v{T+11}, 7, v{T+8}")
        a(f"v_add_u32 v{T+11}, 16384, v{T+11}")
        for s in range(4):
            a(f"v_xor_b32 v{T+9}, {2*s}, v{T+10}")
            a(f"v_lshl_add_u32 v{V_QB+s}, v{T+9}, 4, v{T+11}")
        a(f"v_lshlrev_b32 v{V_L16}, 4, v{L}")
        if self.opts.get("touch_early"):
            self.touches()
        self.dma_voffsets(a, T, V_EKOFF, V_EVOFF)
        self.att_consts()
        if not self.opts.get("touch_early"):
            self.touches()
        self.comb_consts()

    def touches(self):
        a = self.a
        L, T = V_LANE, V_T
        if self.touch:
            a(f"v_and_b32 v{T}, 0x7f, v0")
            a(f"v_lshrrev_b32 v{T+1}, 3, v{T}")
            a(f"v_and_b32 v{T+2}, 7, v{T}")
            a(f"s_lshl_b32 s{S_SAVE}, s{S_SLOT}, 4")
            a(f"v_add_u32 v{T+1}, s{S_SAVE}, v{T+1}")
            lb = a.newlabel("L_tx"); lj = a.newlabel("L_tj")
            a(f"s_cmp_ge_u32 s{S_WAVE}, 2")
            a(f"s_cbranch_scc1 {lb}")
            a(f"v_add_u32 v{T+1}, 64, v{T+1}")
            a(f"v_lshlrev_b32 v{T+1}, 13, v{T+1}")
            a(f"v_lshl_add_u32 v{T+1}, v{T+2}, 7, v{T+1}")
            a(f"s_lshl_b32 s{S_SAVE}, s{S_J}, 10")
            a(f"v_add_u32 v{T+1}, s{S_SAVE}, v{T+1}")
            a(f"global_load_dword v{V_PFD}, v{T+1}, {sr(S_WQ,2)}")
            a(f"s_branch {lj}")
            a.label(lb)
            a(f"v_mul_u32_u24 v{T+1}, 1152, v{T+1}")
            a(f"v_lshl_add_u32 v{T+1}, v{T+2}, 7, v{T+1}")
            a(f"global_load_dword v{V_PFD}, v{T+1}, {sr(S_X,2)} offset:128")
            a.label(lj)
        lab = a.newlabel("L_rst")
        a(f"s_and_b32 s{S_SPIN}, s{S_IDX}, 31")
        a(f"s_lshl_b32 s{S_SPIN}, s{S_SPIN}, 2")
        a(f"s_add_u32 s{S_SPIN}, s{S_SPIN}, s{S_WAVE}")
        a(f"s_cmp_lg_u32 s{S_SPIN}, 3")
        a(f"s_cbranch_scc1 {lab}")
        a(f"v_and_b32 v{T}, 31, v{L}")
        a(f"v_add_u32 v{T}, s{S_IDX}, v{T}")
        a(f"v_lshlrev_b32 v{T}, 7, v{T}")
        a(f"v_lshrrev_b32 v{T+1}, 5, v{L}")
        a(f"v_lshl_add_u32 v{T}, v{T+1}, 15, v{T}")
        a(f"v_mov_b32 v{T+1}, 0")
        a(f"buffer_store_dword v{T+1}, v{T}, {sr(SRD_WS,4)}, 0 offen sc1")
        a("s_waitcnt vmcnt(0)")
        a(f"s_mov_b32 s{SRD_DBG}, s{S_DBG}")
        a(f"s_mov_b32 s{SRD_DBG+1}, s{S_DBG+1}")
        a(f"s_mov_b32 s{SRD_DBG+2}, 256")
        a(f"s_mov_b32 s{SRD_DBG+3}, 0x20000")
        a(f"s_lshl_b32 s{S_SPIN}, s{S_B}, 2")
        a(f"v_mov_b32 v{T}, s{S_SPIN}")
        a(f"v_mov_b32 v{T+1}, 1")
        a("s_mov_b64 exec, 1")
        a(f"buffer_store_dword v{T+1}, v{T}, {sr(SRD_DBG,4)}, 0 offen sc1")
        a("s_mov_b64 exec, -1")
        a.label(lab)
        lab = a.newlabel("L_pf")
        a(f"s_cmp_lg_u32 s{S_WAVE}, 0")
        a(f"s_cbranch_scc1 {lab}")
        a(f"s_lshl_b32 s{S_SAVE}, s{S_SLOT}, 11")
        a(f"v_lshlrev_b32 v{T}, 7, v{L}")
        a(f"v_add_u32 v{T}, s{S_SAVE}, v{T}")
        a(f"s_mov_b32 s{S_SPIN}, L_codeend-L_pcbase")
        a(f"v_cmp_gt_u32 vcc, s{S_SPIN}, v{T}")
        a(f"s_and_b64 vcc, vcc, 0xffff")
        a(f"s_and_saveexec_b64 {sr(S_SAVE,2)}, vcc")
        a(f"s_cbranch_execz {lab}_r")
        a(f"global_load_dword v{V_PFD+1}, v{T}, {sr(S_PC,2)}")
        a.label(lab + "_r")
        a(f"s_mov_b64 exec, {sr(S_SAVE,2)}")
        a.label(lab)

    def srds(self, a):
        a(f"s_add_u32 s{SRD_X}, s{S_X}, s{S_T0}")
        a(f"s_addc_u32 s{SRD_X+1}, s{S_X+1}, 0")
        a(f"s_add_u32 s{SRD_WQ}, s{S_WQ}, s{S_T1}")
        a(f"s_addc_u32 s{SRD_WQ+1}, s{S_WQ+1}, 0")
        a(f"s_add_u32 s{SRD_K}, s{S_K}, s{S_T2}")
        a(f"s_addc_u32 s{SRD_K+1}, s{S_K+1}, 0")
        a(f"s_add_u32 s{SRD_V}, s{S_V}, s{S_T2}")
        a(f"s_addc_u32 s{SRD_V+1}, s{S_V+1}, 0")
        a(f"s_mov_b32 s{SRD_WS}, s{S_WS}")
        a(f"s_mov_b32 s{SRD_WS+1}, s{S_WS+1}")

    def att_consts(self):
        a = self.a
        L, T = V_LANE, V_T
        a.c("attention constants (register set 0 = LDS base 0)")
        a(f"v_lshrrev_b32 v{T}, 4, v{L}")
        a(f"v_and_b32 v{T+1}, 15, v{L}")
        a(f"v_lshrrev_b32 v{T+2}, 2, v{T+1}")
        a(f"v_and_b32 v{T+3}, 3, v{L}")
        a(f"v_and_b32 v{T+4}, 1, v{T}")
        a(f"v_lshrrev_b32 v{T+5}, 1, v{T}")
        a(f"v_lshl_add_u32 v{T+6}, v{T+5}, 2, v{T+2}")
        a(f"v_lshlrev_b32 v{T+6}, 8, v{T+6}")
        a(f"v_lshl_add_u32 v{T+6}, v{T+4}, 5, v{T+6}")
        a(f"v_lshl_add_u32 v{T+6}, v{T+3}, 3, v{T+6}")
        a(f"s_lshl_b32 s{S_T0}, s{S_KS}, 13")
        a(f"v_add_u32 v{T+6}, s{S_T0}, v{T+6}")
        a(f"s_lshl_b32 s{S_T1}, s{S_KS}, 1")
        for g in range(4):
            a(f"s_xor_b32 s{S_T2}, s{S_T1}, {g}")
            a(f"v_xor_b32 v{T+7}, s{S_T2}, v{T+2}")
            a(f"v_lshl_add_u32 v{V_VA+g}, v{T+7}, 6, v{T+6}")
        a(f"v_and_b32 v{T+8}, 31, v{L}")
        a(f"v_lshrrev_b32 v{T+9}, 5, v{L}")
        a(f"v_and_b32 v{T+10}, 15, v{T+8}")
        a(f"v_xor_b32 v{T+10}, v{T+10}, v{T+9}")
        a(f"v_lshlrev_b32 v{T+11}, 8, v{T+8}")
        a(f"v_add_u32 v{T+11}, s{S_T0}, v{T+11}")
        for s in range(8):
            a(f"v_xor_b32 v{T+9}, {2*s}, v{T+10}")
            a(f"v_lshl_add_u32 v{V_KA+s}, v{T+9}, 4, v{T+11}")
        self.kset = 0
        self.vset = 0

    def comb_consts(self):
        a = self.a
        L, T = V_LANE, V_T
        a.c("combine constants")
        a(f"v_lshlrev_b32 v{T}, 3, v{L}")
        a(f"s_lshl_b32 s{S_T0}, s{S_WAVE}, 9")
        a(f"s_add_u32 s{S_T0}, s{S_T0}, {STATS_OFF}")
        a(f"v_add_u32 v{V_CST}, s{S_T0}, v{T}")
        a(f"s_xor_b32 s{S_T1}, s{S_WAVE}, 2")
        a(f"s_lshl_b32 s{S_T0}, s{S_T1}, 9")
        a(f"s_add_u32 s{S_T0}, s{S_T0}, {STATS_OFF}")
        a(f"v_add_u32 v{V_CSR}, s{S_T0}, v{T}")
        a(f"s_lshl_b32 s{S_T0}, s{S_WAVE}, 13")
        a(f"s_add_u32 s{S_T0}, s{S_T0}, {SCR_OFF}")
        a(f"v_add_u32 v{V_CW}, s{S_T0}, v{V_L16}")
        a(f"s_lshl_b32 s{S_T0}, s{S_T1}, 13")
        a(f"s_add_u32 s{S_T0}, s{S_T0}, {SCR_OFF}")
        a(f"v_add_u32 v{V_CR}, s{S_T0}, v{V_L16}")
        a(f"v_and_b32 v{T}, 31, v{L}")
        a(f"v_lshrrev_b32 v{T+1}, 4, v{T}")
        a(f"v_lshlrev_b32 v{T+1}, 12, v{T+1}")
        a(f"v_and_b32 v{T+2}, 15, v{T}")
        a(f"v_lshl_add_u32 v{T+1}, v{T+2}, 4, v{T+1}")
        a(f"v_lshrrev_b32 v{T+2}, 5, v{L}")
        a(f"v_lshl_add_u32 v{T+1}, v{T+2}, 8, v{T+1}")
        a(f"s_lshl_b32 s{S_T0}, s{S_IDX}, 14")
        a(f"s_lshl_b32 s{S_T1}, s{S_QB}, 13")
        a(f"s_add_u32 s{S_T0}, s{S_T0}, s{S_T1}")
        a(f"s_lshl_b32 s{S_T1}, s{S_KS}, 11")
        a(f"s_add_u32 s{S_T0}, s{S_T0}, s{S_T1}")
        a(f"s_add_u32 s{S_T0}, s{S_T0}, {WS_O}")
        a(f"v_add_u32 v{V_OST}, s{S_T0}, v{T+1}")

    def early_schedule(self):
        return {1: 0, 3: 1, 5: 2} if self.early == 3 else ({2: 0, 5: 1} if self.early == 2 else ({} if self.early == 0 else {3: 0}))

    def q_step(self, n):
        a = self.a
        base = QSLOT[n % 3]
        a.c(f"---- Q step {n}")
        self.bar(f"q{n}")
        self.stamp(f"qb{n}")
        for s in range(4):
            a(f"ds_read_b64_tr_b16 {ar(A_K+4*s,2)}, v{V_QA} offset:{base+s*4096}")
            a(f"ds_read_b64_tr_b16 {ar(A_K+4*s+2,2)}, v{V_QA} offset:{base+s*4096+1024}")
            for qb in range(2):
                a(f"ds_read_b128 {ar(A_V+8*s+4*qb,4)}, v{V_QB+s} offset:{base+qb*4096}")
        es = self.early_schedule()
        dma = self.unit_ops(es[n], "c") if n in es else []
        for s in range(4):
            remaining = 16 - 4 * (s + 1)
            a(f"s_waitcnt lgkmcnt({min(remaining,15)})")
            for qb in range(2):
                src_c = vr(V_S+16*qb,16) if not (n == 0 and s == 0) else "0"
                a(f"v_mfma_f32_32x32x16_bf16 {vr(V_S+16*qb,16)}, {ar(A_K+4*s,4)}, {ar(A_V+8*s+4*qb,4)}, {src_c}")
            if dma:
                self.issue(a, [dma[s]], f"u{es[n]}")

    def qx_step(self):
        a = self.a
        T = V_T
        a.c("---- QX")
        if self.early == 0:
            a("s_waitcnt vmcnt(0)")
        self.bar("x1")
        a(f"s_lshl_b32 s{S_T0}, s{S_WAVE}, 11")
        a(f"s_add_u32 s{S_T0}, s{S_T0}, {QX_OFF}")
        a(f"v_add_u32 v{T}, s{S_T0}, v{V_L16}")
        a(f"s_lshl_b32 s{S_T0}, s{S_QB}, 13")
        a(f"s_add_u32 s{S_T0}, s{S_T0}, {QX_OFF}")
        a(f"v_add_u32 v{T+1}, s{S_T0}, v{V_L16}")
        a("s_nop 7")
        E = V_O + 16
        for qb in range(2):
            for half in range(2):
                for d in range(4):
                    src = V_S + 16 * qb + 8 * half + 2 * d
                    a(f"v_cvt_pk_bf16_f32 v{E+4*(2*qb+half)+d}, v{src}, v{src+1}")
        for qb in range(2):
            for half in range(2):
                a(f"ds_write_b128 v{T}, {vr(E+4*(2*qb+half),4)} offset:{qb*8192+half*1024}")
        a("s_waitcnt lgkmcnt(0)")
        self.bar("x2")
        for s in range(8):
            a(f"ds_read_b128 {ar(A_Q+4*s,4)}, v{T+1} offset:{s*1024}")
        a("s_waitcnt lgkmcnt(0)")

    def set_regs(self, which, want):
        a = self.a
        cur = self.kset if which == "K" else self.vset
        if cur == want:
            return
        d = (want - cur) * 65536
        base, n = (V_KA, 8) if which == "K" else (V_VA, 4)
        for k in range(n):
            if d > 0:
                a(f"v_add_u32 v{base+k}, {d:#x}, v{base+k}")
            else:
                a(f"v_subrev_u32 v{base+k}, {-d:#x}, v{base+k}")
        if which == "K":
            self.kset = want
        else:
            self.vset = want

    def att_step(self, i):
        a = self.a
        a.c(f"---- attention step {i}")
        has_s = i <= 15
        has_pv = i >= 1
        need = [kunit(i)] if i == 0 else ([vunit(15)] if i == 16 else [kunit(i), vunit(i - 1)])
        mine = [u for u in need if f"u{u}" in a.vm]
        if mine:
            a.wait_tag(f"u{max(mine)}")
        if has_s:
            ku = phys(kunit(i)) * UNIT
            self.set_regs("K", ku // 65536)
            kimm = ku % 65536
        if has_pv:
            vu = phys(vunit(i - 1)) * UNIT
            self.set_regs("V", vu // 65536)
            vimm = vu % 65536
        if i == 12 and self.touch:
            T = V_T
            lab = a.newlabel("L_wt")
            a(f"s_mul_i32 s{S_T0}, s{S_J}, 589824")
            a(f"s_mul_i32 s{S_T1}, s{S_SLOT}, {144*128}")
            a(f"s_add_u32 s{S_T0}, s{S_T0}, s{S_T1}")
            a(f"v_lshlrev_b32 v{T}, 7, v0")
            a(f"v_add_u32 v{T}, s{S_T0}, v{T}")
            a(f"v_cmp_gt_u32 vcc, 144, v0")
            a(f"s_and_saveexec_b64 {sr(S_SAVE,2)}, vcc")
            a(f"s_cbranch_execz {lab}")
            a(f"global_load_dword v{V_QB+3}, v{T}, {sr(S_WO,2)}")
            a.label(lab)
            a(f"s_mov_b64 exec, {sr(S_SAVE,2)}")
        self.stamp(f"aw{i}")
        self.bar(f"a{i}")
        self.stamp(f"ab{i}")
        Sc = V_S + 16 * (i & 1)
        Sp = V_S + 16 * ((i - 1) & 1)
        if has_s:
            for s in range(8):
                a(f"ds_read_b128 {ar(A_K+4*s,4)}, v{V_KA+s} offset:{kimm}")
        vreads = []
        if has_pv:
            for s2 in range(2):
                for g in range(4):
                    for x in range(2):
                        vreads.append(f"ds_read_b64_tr_b16 {ar(A_V+16*s2+4*g+2*x,2)}, v{V_VA+g} offset:{vimm+s2*4096+x*2048}")
        valu = []
        if has_pv and i < 16:
            valu = self.softmax_valu(i - 1)
        vi = 0
        per = (len(valu) + 7) // 8 if has_s else len(valu)
        st = {"vr": 0}

        def issue_vreads(k):
            for _ in range(k):
                if st["vr"] < len(vreads):
                    a(vreads[st["vr"]]); st["vr"] += 1

        if has_s:
            issue_vreads(7)
            for _ in range(per):
                if vi < len(valu):
                    a(valu[vi]); vi += 1
            for s in range(8):
                allowed = (7 - s) + st["vr"]
                a(f"s_waitcnt lgkmcnt({min(allowed,15)})")
                srcc = "0" if s == 0 else vr(Sc,16)
                a(f"v_mfma_f32_32x32x16_bf16 {vr(Sc,16)}, {ar(A_K+4*s,4)}, {ar(A_Q+4*s,4)}, {srcc}")
                if s >= 1:
                    issue_vreads(1)
                for _ in range(per):
                    if vi < len(valu):
                        a(valu[vi]); vi += 1
        issue_vreads(16)
        while vi < len(valu):
            a(valu[vi]); vi += 1
        mx = []
        if has_s:
            TM = V_TMAX
            mx.append(f"v_max3_f32 v{TM}, v{Sc}, v{Sc+1}, v{Sc+2}")
            for k in range(3, 15, 2):
                mx.append(f"v_max3_f32 v{TM}, v{TM}, v{Sc+k}, v{Sc+k+1}")
            mx.append(f"v_max_f32 v{TM}, v{TM}, v{Sc+15}")
            mx.append(f"v_mov_b32 v{V_T}, v{TM}")
            mx.append("s_nop 1")
            mx.append(f"v_permlane32_swap_b32 v{TM}, v{V_T}")
            mx.append("s_nop 1")
            mx.append(f"v_max_f32 v{TM}, v{TM}, v{V_T}")
            mx.append(f"v_mul_f32 v{TM}, s{S_C}, v{TM}")
        if has_pv:
            a("s_waitcnt lgkmcnt(0)")
            a("s_nop 1")
            mi = 0
            cnt = 0
            for s2 in range(2):
                for g in range(4):
                    srcc = "0" if (i == 1 and s2 == 0) else vr(V_O+16*g,16)
                    a(f"v_mfma_f32_32x32x16_bf16 {vr(V_O+16*g,16)}, {ar(A_V+16*s2+4*g,4)}, {vr(V_P+4*s2,4)}, {srcc}")
                    cnt += 1
                    if cnt >= 5:
                        for _ in range(4):
                            if mi < len(mx):
                                a(mx[mi]); mi += 1
            while mi < len(mx):
                a(mx[mi]); mi += 1
        else:
            a("s_nop 7"); a("s_nop 7")
            for s_ in mx:
                a(s_)
        if has_s:
            if i == 0:
                a(f"v_mov_b32 v{V_MC}, v{V_TMAX}")
            else:
                lab = a.newlabel("L_nors")
                a(f"v_sub_f32 v{V_T}, v{V_TMAX}, v{V_MC}")
                a(f"v_cmp_lt_f32 vcc, s{S_THR}, v{V_T}")
                a(f"s_cbranch_vccz {lab}")
                a("s_nop 7"); a("s_nop 7")
                a(f"v_max_f32 v{V_T}, v{V_TMAX}, v{V_MC}")
                a(f"v_sub_f32 v{V_T+1}, v{V_MC}, v{V_T}")
                a(f"v_exp_f32 v{V_T+1}, v{V_T+1}")
                a(f"v_mov_b32 v{V_MC}, v{V_T}")
                a(f"v_mul_f32 v{V_L}, v{V_L}, v{V_T+1}")
                for k in range(64):
                    a(f"v_mul_f32 v{V_O+k}, v{V_O+k}, v{V_T+1}")
                a("s_nop 1")
                a.label(lab)
        if i == 14:
            a(f"v_mov_b32 v{V_T}, {FAST_OFF}")
            a(f"ds_read_b32 v{V_T+1}, v{V_T}")
            a("s_waitcnt lgkmcnt(0)")
            a(f"v_readfirstlane_b32 s{S_FAST}, v{V_T+1}")
        if i == 15:
            for s_ in self.softmax_valu(15):
                a(s_)

    def softmax_valu(self, j):
        E = V_S + 16 * (j & 1)
        fm = [f"v_fma_f32 v{E+k}, v{E+k}, s{S_C}, -v{V_MC}" for k in range(16)]
        ex = [f"v_exp_f32 v{E+k}, v{E+k}" for k in range(16)]
        seq = fm[0:4]
        for k in range(16):
            seq.append(ex[k])
            if k + 4 < 16:
                seq.append(fm[k + 4])
            if k >= 1:
                kk = k - 1
                if j == 0 and kk == 0:
                    seq.append(f"v_mov_b32 v{V_L}, v{E+0}")
                else:
                    seq.append(f"v_add_f32 v{V_L}, v{V_L}, v{E+kk}")
                if kk & 1:
                    seq.append(f"v_cvt_pk_bf16_f32 v{V_P+kk//2}, v{E+kk-1}, v{E+kk}")
        seq.append("s_nop 0")
        seq.append(f"v_add_f32 v{V_L}, v{V_L}, v{E+15}")
        seq.append(f"v_cvt_pk_bf16_f32 v{V_P+7}, v{E+14}, v{E+15}")
        return seq

    def combine(self):
        a = self.a
        T = V_T
        E = V_S
        a.c("---- combine the two key halves, publish O")
        a(f"v_mov_b32 v{T+3}, v{V_L}")
        a(f"v_mov_b32 v{T+2}, v{V_MC}")
        a("s_nop 0")
        a(f"v_permlane32_swap_b32 v{V_L}, v{T+3}")
        a("s_nop 1")
        a(f"v_add_f32 v{V_L}, v{V_L}, v{T+3}")
        a(f"v_mov_b32 v{T+3}, v{V_L}")
        a(f"ds_write_b64 v{V_CST}, {vr(T+2,2)}")
        L = V_LANE
        a(f"v_lshrrev_b32 v{T+4}, 4, v{L}")
        a(f"v_lshrrev_b32 v{T+5}, 1, v{T+4}")
        a(f"v_lshlrev_b32 v{T+5}, 4, v{T+5}")
        a(f"v_and_b32 v{T+6}, 1, v{T+4}")
        a(f"v_lshl_add_u32 v{T+5}, v{T+6}, 2, v{T+5}")
        a(f"v_and_b32 v{T+6}, 15, v{L}")
        a(f"v_lshrrev_b32 v{T+6}, 2, v{T+6}")
        a(f"v_add_u32 v{T+5}, v{T+5}, v{T+6}")
        a(f"v_mul_u32_u24 v{T+5}, 288, v{T+5}")
        a(f"v_and_b32 v{T+6}, 3, v{L}")
        a(f"v_lshl_add_u32 v{V_QA}, v{T+6}, 3, v{T+5}")
        a(f"v_add_u32 v{V_QA+1}, 0x10000, v{V_QA}")
        a(f"v_add_u32 v{V_QA+2}, 0x20000, v{V_QA}")
        for u in range(8):
            a(f"ds_write_b128 v{V_CW}, {vr(V_O+32+4*u,4)} offset:{u*1024}")
        a("s_waitcnt lgkmcnt(0)")
        self.bar("c2")
        self.stamp("c2")
        a(f"ds_read_b64 {vr(T+2,2)}, v{V_CSR}")
        for u in range(8):
            a(f"ds_read_b128 {vr(V_O+32+4*u,4)}, v{V_CR} offset:{u*1024}")
        a("s_waitcnt lgkmcnt(8)")
        a(f"v_max_f32 v{T+4}, v{V_MC}, v{T+2}")
        a(f"v_sub_f32 v{T+6}, v{V_MC}, v{T+4}")
        a(f"v_sub_f32 v{T+8}, v{T+2}, v{T+4}")
        a(f"v_exp_f32 v{T+6}, v{T+6}")
        a(f"v_exp_f32 v{T+8}, v{T+8}")
        a("s_nop 0")
        a(f"v_mul_f32 v{T+5}, v{T+6}, v{V_L}")
        a(f"v_fma_f32 v{T+5}, v{T+8}, v{T+3}, v{T+5}")
        a(f"v_rcp_f32 v{T+5}, v{T+5}")
        a("s_nop 0")
        a(f"v_mul_f32 v{T+6}, v{T+6}, v{T+5}")
        a(f"v_mul_f32 v{T+8}, v{T+8}, v{T+5}")
        a(f"v_mov_b32 v{T+7}, v{T+6}")
        a(f"v_mov_b32 v{T+9}, v{T+8}")
        for k in range(16):
            a(f"v_pk_mul_f32 {vr(V_O+2*k,2)}, {vr(V_O+2*k,2)}, {vr(T+6,2)}")
        slow = a.newlabel("L_oslow"); join = a.newlabel("L_ojoin")

        def tail(aux, track):
            for u in range(8):
                a(f"s_waitcnt lgkmcnt({7-u})")
                for k in (2 * u, 2 * u + 1):
                    a(f"v_pk_fma_f32 {vr(V_O+2*k,2)}, {vr(V_O+32+2*k,2)}, {vr(T+8,2)}, {vr(V_O+2*k,2)}")
                for k in (2 * u, 2 * u + 1):
                    a(f"v_cvt_pk_bf16_f32 v{E+k}, v{V_O+2*k}, v{V_O+2*k+1}")
                if u & 1:
                    g, uu = (u >> 2), (u >> 1) & 1
                    ins = f"buffer_store_dwordx4 {vr(E+8*g+4*uu,4)}, v{V_OST}, {sr(SRD_WS,4)}, 0 offen offset:{g*1024+uu*512} {aux}"
                    if track:
                        a.vmop(ins, "ostore")
                    else:
                        a(ins)
        if self.fast:
            a(f"s_cmp_eq_u32 s{S_FAST}, 0")
            a(f"s_cbranch_scc1 {slow}")
            tail("", False)
            a(f"s_branch {join}")
            a.label(slow)
            tail("sc1", True)
            a.label(join)
        else:
            tail("sc1", True)
        self.stamp("ost")
        a(f"s_and_b32 s{S_T0}, s{S_IDX}, 0xfc")
        a(f"s_lshl_b32 s{S_T0}, s{S_T0}, 14")
        a(f"s_add_u32 s{S_T0}, s{S_T0}, s{S_W4K}")
        a(f"s_add_u32 s{S_T0}, s{S_T0}, {WS_O}")
        a(f"s_lshl_b32 s{S_T1}, s{S_HH}, 14")
        a(f"s_add_u32 s{S_T1}, s{S_T1}, s{S_T0}")
        a("s_waitcnt vmcnt(0)")
        self.stamp("ostack")
        self.bar("e1")
        self.stamp("e1")

    def oproj(self):
        a = self.a
        T = V_T
        WOA = V_QA
        a.c("---- O projection")
        for tp in range(4):
            a.vmop(f"buffer_load_dwordx4 {ar(A_OB+4*tp,4)}, v{V_L16}, {sr(SRD_WS,4)}, s{S_T1} offen offset:{tp*1024} sc1", f"ob{tp}")
        RING = 10
        AHEAD = 7
        seq = [(nb, t) for t in range(4) for nb in range(9)] + [(nb, t) for nb in range(9) for t in range(4, 16)]
        NOWN = 36

        def reads(k):
            nb, t = seq[k]
            out = []
            for x in range(2):
                off = wo_lds(t) + nb * 32 + x * 2304
                rs, imm = off // 65536, off % 65536
                out.append(f"ds_read_b64_tr_b16 {ar(A_W+4*(k%RING)+2*x,2)}, v{WOA+rs} offset:{imm}")
            return out
        issued = 0

        def issue_upto(k, limit):
            nonlocal issued
            while issued <= min(k, limit):
                for s_ in reads(issued):
                    a(s_)
                issued += 1
        issue_upto(AHEAD - 1, NOWN - 1)
        a(f"s_lshl_b32 s{S_T3}, s{S_B}, 2")
        a(f"s_add_u32 s{S_T3}, s{S_T3}, s{S_HH}")
        a(f"s_lshl_b32 s{S_T3}, s{S_T3}, 3")
        a(f"s_add_u32 s{S_T3}, s{S_T3}, s{S_J}")
        a(f"s_mul_i32 s{S_T3}, s{S_T3}, {PSTRIDE}")
        a(f"s_mul_i32 s{S_T2}, s{S_WAVE}, 5120")
        a(f"s_add_u32 s{S_T3}, s{S_T3}, s{S_T2}")
        a(f"s_add_u32 s{S_T3}, s{S_T3}, {WS_P}")
        a(f"v_mov_b32 v{V_E+18}, 0")
        a(f"v_mov_b32 v{V_E+19}, 0")
        seen_t = set()
        NA = self.opts.get("na", 14)
        for k, (nb, t) in enumerate(seq):
            if k == NOWN:
                issue_upto(k + AHEAD - 1, len(seq) - 1)
            if k == NA:
                self.stamp("own")
                self.bar("e2")
                self.stamp("ex1")
                for i in range(1, 4):
                    a(f"s_add_u32 s{S_T1}, s{S_HH}, {i}")
                    a(f"s_and_b32 s{S_T1}, s{S_T1}, 3")
                    a(f"s_lshl_b32 s{S_T1}, s{S_T1}, 14")
                    a(f"s_add_u32 s{S_T1}, s{S_T1}, s{S_T0}")
                    for tp in range(4):
                        tt = 4 * i + tp
                        a.vmop(f"buffer_load_dwordx4 {ar(A_OB+4*tt,4)}, v{V_L16}, {sr(SRD_WS,4)}, s{S_T1} offen offset:{tp*1024} sc1", f"ob{tt}")
            if t not in seen_t:
                a.wait_tag(f"ob{t}")
                seen_t.add(t)
            if k == NOWN + 12:
                self.stamp("op16")
            if k % 2 == 0 or k == NOWN:
                last = min(k + 1, issued - 1) if not (k < NOWN and k + 1 >= NOWN) else k
                outstanding_after = issued - 1 - last
                a(f"s_waitcnt lgkmcnt({min(2*outstanding_after, 15)})")
            srcc = "0" if k < 9 else vr(V_ACC+4*nb,4)
            a(f"v_mfma_f32_16x16x32_bf16 {vr(V_ACC+4*nb,4)}, {ar(A_W+4*(k%RING),4)}, {ar(A_OB+4*t,4)}, {srcc}")
            lim = NOWN - 1 if k < NA else len(seq) - 1
            if k >= NA and k < NOWN:
                lim = len(seq) - 1
            issue_upto(k + AHEAD, lim)
            if k >= NOWN and t == 12 and nb >= 1:
                pb = nb - 1
                p, h = pb // 2, pb % 2
                a(f"v_cvt_pk_bf16_f32 v{V_E+4*p+2*h}, v{V_ACC+4*pb}, v{V_ACC+4*pb+1}")
                a(f"v_cvt_pk_bf16_f32 v{V_E+4*p+2*h+1}, v{V_ACC+4*pb+2}, v{V_ACC+4*pb+3}")
                if h == 1:
                    a.vmop(f"buffer_store_dwordx4 {vr(V_E+4*p,4)}, v{V_L16}, {sr(SRD_WS,4)}, s{S_T3} offen offset:{p*1024} sc1", "pstore")
        a("s_nop 7")
        a(f"v_cvt_pk_bf16_f32 v{V_E+16}, v{V_ACC+32}, v{V_ACC+33}")
        a(f"v_cvt_pk_bf16_f32 v{V_E+17}, v{V_ACC+34}, v{V_ACC+35}")
        a(f"s_add_u32 s{S_T3}, s{S_T3}, 4096")
        a.vmop(f"buffer_store_dwordx4 {vr(V_E+16,4)}, v{V_L16}, {sr(SRD_WS,4)}, s{S_T3} offen sc1", "pstore")
        self.stamp("oproj")
        a("s_waitcnt vmcnt(0)")
        self.stamp("pack")
        self.bar("f1")
        self.stamp("f1")
        self.bar("f2")

    def final(self, endlab="L_end"):
        a = self.a
        T = V_T
        R = V_S
        acc = V_O
        a.c("---- final reduce")
        a(f"v_cmp_gt_u32 vcc, 160, v0")
        a(f"s_and_saveexec_b64 {sr(S_SAVE,2)}, vcc")
        a(f"s_cbranch_execz {endlab}")
        a(f"s_mul_i32 s{S_T0}, s{S_J}, 160")
        a(f"v_add_u32 v{T}, s{S_T0}, v0")
        a(f"v_lshlrev_b32 v{T+1}, 4, v{T}")
        a(f"s_lshl_b32 s{S_T0}, s{S_B}, 2")
        a(f"s_add_u32 s{S_T0}, s{S_T0}, s{S_HH}")
        a(f"s_mul_i32 s{S_T0}, s{S_T0}, {8*PSTRIDE}")
        a(f"s_add_u32 s{S_T0}, s{S_T0}, {WS_P}")
        for jj in range(8):
            a(f"buffer_load_dwordx4 {vr(R+4*jj,4)}, v{T+1}, {sr(SRD_WS,4)}, s{S_T0} offen sc1")
            if jj < 7:
                a(f"s_add_u32 s{S_T0}, s{S_T0}, {PSTRIDE}")
        a(f"v_mul_u32_u24 v{T+2}, 3277, v{T}")
        a(f"v_lshrrev_b32 v{T+2}, 20, v{T+2}")
        a(f"v_mul_u32_u24 v{T+3}, 320, v{T+2}")
        a(f"v_sub_u32 v{T+3}, v{T}, v{T+3}")
        a(f"v_lshrrev_b32 v{T+4}, 6, v{T+3}")
        a(f"v_and_b32 v{T+5}, 63, v{T}")
        a(f"v_and_b32 v{T+6}, 15, v{T+5}")
        a(f"v_lshl_add_u32 v{T+6}, v{T+2}, 4, v{T+6}")
        a(f"v_mul_u32_u24 v{T+6}, 1152, v{T+6}")
        a(f"v_lshrrev_b32 v{T+7}, 4, v{T+5}")
        a(f"v_lshlrev_b32 v{T+7}, 3, v{T+7}")
        a(f"v_lshl_add_u32 v{T+7}, v{T+4}, 6, v{T+7}")
        a(f"v_add_u32 v{T+6}, v{T+6}, v{T+7}")
        a(f"s_mul_i32 s{S_T0}, s{S_B}, 73728")
        a(f"s_mul_i32 s{S_T1}, s{S_HH}, 288")
        a(f"s_add_u32 s{S_T0}, s{S_T0}, s{S_T1}")
        a(f"s_mov_b32 s{S_T1}, 0xffff0000")
        for jj in range(8):
            a(f"s_waitcnt vmcnt({7-jj})")
            for d in range(4):
                src = R + 4 * jj + d
                if jj == 0:
                    a(f"v_lshlrev_b32 v{acc+2*d}, 16, v{src}")
                    a(f"v_and_b32 v{acc+2*d+1}, s{S_T1}, v{src}")
                else:
                    a(f"v_lshlrev_b32 v{T+8}, 16, v{src}")
                    a(f"v_and_b32 v{T+9}, s{S_T1}, v{src}")
                    a(f"v_add_f32 v{acc+2*d}, v{acc+2*d}, v{T+8}")
                    a(f"v_add_f32 v{acc+2*d+1}, v{acc+2*d+1}, v{T+9}")
        for d in range(4):
            a(f"v_cvt_pk_bf16_f32 v{acc+8+d}, v{acc+2*d}, v{acc+2*d+1}")
        a(f"buffer_store_dwordx2 {vr(acc+8,2)}, v{T+6}, {sr(SRD_OUT,4)}, s{S_T0} offen")
        a(f"v_cmp_gt_u32 vcc, 4, v{T+4}")
        a(f"s_and_b64 exec, exec, vcc")
        a(f"s_cbranch_execz {endlab}")
        a(f"buffer_store_dwordx2 {vr(acc+10,2)}, v{T+6}, {sr(SRD_OUT,4)}, s{S_T0} offen offset:32")

    def write_stamps(self, a, who, T):
        self.stamp("end", who)
        a("s_mov_b64 exec, -1")
        a("s_waitcnt lgkmcnt(0)")
        if self.ts == "probe":
            if who == "l":
                return
            k = self.stampnames["c"].index(self.opts["probe"])
            e = self.stampnames["c"].index("end")
            a(f"s_sub_u32 s{S_T0}, s{S_TS+2*k}, s{S_TS}")
            a(f"s_mul_i32 s{S_T0}, s{S_T0}, {self.opts.get('mult',1)}")
            a(f"s_add_u32 s{S_T0}, s{S_T0}, s{S_TS+2*e}")
            lab = a.newlabel("L_spin")
            a.label(lab)
            a(f"s_memrealtime s[98:99]")
            a("s_waitcnt lgkmcnt(0)")
            a(f"s_sub_u32 s{S_T1}, s98, s{S_T0}")
            a(f"s_cmp_lt_i32 s{S_T1}, 0")
            a(f"s_cbranch_scc1 {lab}")
            return
        if self.ts == "dbg":
            if who == "l":
                return
            lab = a.newlabel("L_nots")
            a(f"s_cmp_lg_u32 s{S_WAVE}, 0")
            a(f"s_cbranch_scc1 {lab}")
            a(f"s_mov_b32 s{SRD_DBG}, s{S_DBG}")
            a(f"s_mov_b32 s{SRD_DBG+1}, s{S_DBG+1}")
            a(f"s_mov_b32 s{SRD_DBG+2}, 256")
            a(f"s_mov_b32 s{SRD_DBG+3}, 0x20000")
            a("s_mov_b64 exec, 1")
            for k, st in enumerate(self.dbgsel):
                if k == 0:
                    a(f"s_not_b32 s{S_T0}, s{S_TS+2*st}")
                    a(f"v_mov_b32 v{T+1}, s{S_T0}")
                else:
                    a(f"v_mov_b32 v{T+1}, s{S_TS+2*st}")
                a(f"v_mov_b32 v{T}, {32+4*k}")
                a(f"buffer_atomic_umax v{T+1}, v{T}, {sr(SRD_DBG,4)}, 0 offen sc1")
                a("s_nop 1")
            a.label(lab)
            return
        a(f"s_mul_i32 s{S_T0}, s2, {NW}")
        a(f"s_add_u32 s{S_T0}, s{S_T0}, s{S_WAVE}")
        a(f"s_lshl_b32 s{S_T0}, s{S_T0}, 6")
        a(f"s_add_u32 s{S_T0}, s{S_T0}, {WS_TS}")
        a(f"v_mov_b32 v{T}, s{S_T0}")
        a("s_mov_b64 exec, 1")
        for k in range(self.nts[who]):
            a(f"v_mov_b32 v{T+1}, s{S_TS+2*k}")
            a(f"buffer_store_dword v{T+1}, v{T}, {sr(SRD_WS,4)}, 0 offen offset:{4*k}")
            a("s_nop 1")

    def l_poll(self, srd, vaddr, nl, want, cmp="ge"):
        a = self.l
        T = L_T
        lab = a.newlabel("L_poll")
        done = a.newlabel("L_pdone")
        a(f"s_mov_b64 exec, {(1<<nl)-1:#x}")
        a(f"s_mov_b32 s{S_SPIN}, 0")
        a.label(lab)
        a(f"buffer_load_dword v{T+2}, v{vaddr}, {sr(srd,4)}, 0 offen sc1")
        a("s_waitcnt vmcnt(0)")
        if cmp == "bit":
            a(f"v_and_b32 v{T+2}, 1, v{T+2}")
        a(f"v_cmp_le_u32 vcc, {want}, v{T+2}")
        a(f"s_add_u32 s{S_SPIN}, s{S_SPIN}, 1")
        a("s_nop 2")
        a("s_cmp_eq_u64 vcc, exec")
        a(f"s_cbranch_scc1 {done}")
        a(f"s_cmp_lt_u32 s{S_SPIN}, 0x8000")
        a(f"s_cbranch_scc1 {lab}")
        a.label(done)
        a("s_mov_b64 exec, -1")

    def l_signal(self, vflag, fastable=False):
        a = self.l
        T = L_T
        a(f"s_or_b32 s{S_T0}, s{S_XCC}, 1")
        a(f"v_mov_b32 v{T+1}, s{S_T0}")
        a("s_mov_b64 exec, 1")
        if fastable and self.fast:
            slow = a.newlabel("L_fs"); join = a.newlabel("L_fj")
            a(f"s_cmp_eq_u32 s{S_FAST}, 0")
            a(f"s_cbranch_scc1 {slow}")
            a(f"buffer_store_dword v{T+1}, v{vflag}, {sr(SRD_WS,4)}, 0 offen")
            a(f"s_branch {join}")
            a.label(slow)
            a(f"buffer_store_dword v{T+1}, v{vflag}, {sr(SRD_WS,4)}, 0 offen sc1")
            a.label(join)
        else:
            a(f"buffer_store_dword v{T+1}, v{vflag}, {sr(SRD_WS,4)}, 0 offen sc1")
        a("s_mov_b64 exec, -1")

    def loader(self):
        a = self.l
        T = L_T
        L = V_LANE
        a.label("L_loader")
        if self.ts:
            self.nts["l"] = 1 if "start" in self.stampset else 0
            if "start" in self.stampset:
                self.stampnames["l"].append("start")
        self.dma_voffsets(a, T, L_KOFF, L_VOFF, L_WQOFF, L_XOFF)
        a("s_waitcnt lgkmcnt(0)")
        self.srds(a)
        self.issue(a, self.q_item_ops(0), "q0")
        a(f"s_getreg_b32 s{S_XCC}, hwreg(HW_REG_XCC_ID)")
        a(f"s_and_b32 s{S_XCC}, s{S_XCC}, 0xff")
        a(f"s_add_u32 s{S_XCC}, s{S_XCC}, 1")
        a(f"s_lshl_b32 s{S_XCC}, s{S_XCC}, 8")
        self.issue(a, self.q_item_ops(1), "q1")
        self.stamp("ldma0", "l")
        a(f"s_mul_i32 s{S_T0}, s{S_J}, 589824")
        a(f"s_mul_i32 s{S_T1}, s{S_HH}, 288")
        a(f"s_add_u32 s{S_T0}, s{S_T0}, s{S_T1}")
        a(f"s_add_u32 s{SRD_WO}, s{S_WO}, s{S_T0}")
        a(f"s_addc_u32 s{SRD_WO+1}, s{S_WO+1}, 0")
        a(f"s_sub_u32 s{SRD_WO+2}, 4718592, s{S_T0}")
        a(f"s_mov_b32 s{SRD_WO+3}, 0x20000")
        a(f"s_mov_b32 s{SRD_DBG}, s{S_DBG}")
        a(f"s_mov_b32 s{SRD_DBG+1}, s{S_DBG+1}")
        a(f"s_mov_b32 s{SRD_DBG+2}, 256")
        a(f"s_mov_b32 s{SRD_DBG+3}, 0x20000")
        for u in range(9):
            a(f"v_add_u32 v{T}, {64*u}, v{L}")
            a(f"v_mul_u32_u24 v{T+1}, 3641, v{T}")
            a(f"v_lshrrev_b32 v{T+1}, 16, v{T+1}")
            a(f"v_mul_u32_u24 v{T+2}, 18, v{T+1}")
            a(f"v_sub_u32 v{T+2}, v{T}, v{T+2}")
            a(f"v_mul_u32_u24 v{T+1}, 1152, v{T+1}")
            a(f"v_lshl_add_u32 v{T+1}, v{T+2}, 4, v{T+1}")
            a(f"v_subrev_u32 v{L_WOOFF+u}, {1024*(u%4)}, v{T+1}")
        a(f"s_lshl_b32 s{S_T0}, s{S_IDX}, 7")
        a(f"v_mov_b32 v{T+4}, s{S_T0}")
        a(f"v_add_u32 v{T+5}, {WS_FLAG2}, v{T+4}")
        a(f"s_and_b32 s{S_T0}, s{S_IDX}, 0xfc")
        a(f"v_add_u32 v{T+6}, s{S_T0}, v{L}")
        a(f"v_lshlrev_b32 v{T+6}, 7, v{T+6}")
        a(f"s_lshl_b32 s{S_T0}, s{S_B}, 5")
        a(f"s_add_u32 s{S_T0}, s{S_T0}, s{S_HH}")
        a(f"v_lshlrev_b32 v{T+7}, 2, v{L}")
        a(f"v_add_u32 v{T+7}, s{S_T0}, v{T+7}")
        a(f"v_lshlrev_b32 v{T+7}, 7, v{T+7}")
        a(f"v_add_u32 v{T+7}, {WS_FLAG2}, v{T+7}")
        a(f"s_lshl_b32 s{S_T0}, s{S_B}, 2")
        a(f"v_mov_b32 v{T+8}, s{S_T0}")
        nxt = self.early
        for n in range(9):
            a.wait_tag(f"q{n}")
            self.stamp(f"lq{n}", "l")
            a.barrier(f"q{n}")
            if n + 2 <= 8:
                self.issue(a, self.q_item_ops(n + 2), f"q{n+2}")
            if n >= 7:
                self.issue(a, self.unit_ops(nxt, "l"), f"u{nxt}"); nxt += 1
        a.barrier("x1")
        a.barrier("x2")
        while nxt <= min(self.LA - 1, 8):
            self.issue(a, self.unit_ops(nxt, "l"), f"u{nxt}"); nxt += 1
        wo_next = 0
        for i in range(17):
            need = [kunit(0)] if i == 0 else ([vunit(15)] if i == 16 else [kunit(i), vunit(i - 1)])
            mine = [u for u in need if f"u{u}" in a.vm]
            if mine:
                a.wait_tag(f"u{max(mine)}")
            self.stamp(f"law{i}", "l")
            a.barrier(f"a{i}")
            lim = min(31, 2 * i + self.LA, 2 * i + 8 if i >= 1 else 9)
            while nxt <= lim:
                self.issue(a, self.unit_ops(nxt, "l"), f"u{nxt}"); nxt += 1
            if i == 6:
                a.vmop(f"buffer_load_dword v{L_RDY}, v{T+8}, {sr(SRD_DBG,4)}, 0 offen sc1", "rdy")
            if i == 8:
                a.wait_tag("rdy")
                a(f"v_readfirstlane_b32 s{S_RDYOK}, v{L_RDY}")
                lab = a.newlabel("L_tag")
                a("s_nop 3")
                a(f"s_cmp_eq_u32 s{S_RDYOK}, 0")
                a(f"s_cbranch_scc1 {lab}")
                a(f"v_mov_b32 v{T+1}, s{S_XCC}")
                a("s_mov_b64 exec, 1")
                a(f"buffer_store_dword v{T+1}, v{T+4}, {sr(SRD_WS,4)}, 0 offen sc1")
                a("s_mov_b64 exec, -1")
                a.label(lab)
            if i == 11:
                a.vmop(f"buffer_load_dword v{L_RDY+1}, v{T+6}, {sr(SRD_WS,4)}, 0 offen sc1", "xcc")
            if i == 13:
                a.wait_tag("xcc")
                a(f"v_and_b32 v{L_RDY+1}, 0xffffff00, v{L_RDY+1}")
                a(f"v_cmp_eq_u32 vcc, s{S_XCC}, v{L_RDY+1}")
                a("s_nop 1")
                a(f"s_and_b32 s{S_T0}, vcc_lo, 0xf")
                a(f"s_cmp_eq_u32 s{S_T0}, 0xf")
                a(f"s_cselect_b32 s{S_FAST}, 1, 0")
                a(f"s_cmp_lg_u32 s{S_RDYOK}, 0")
                a(f"s_cselect_b32 s{S_FAST}, s{S_FAST}, 0")
                if not self.fast:
                    a(f"s_mov_b32 s{S_FAST}, 0")
                a(f"v_mov_b32 v{T+1}, s{S_FAST}")
                a(f"v_mov_b32 v{T+2}, {FAST_OFF}")
                a(f"ds_write_b32 v{T+2}, v{T+1}")
                a("s_waitcnt lgkmcnt(0)")
            avail = {14: 2, 15: 4, 16: 7}.get(i, -1)
            if nxt > 31:
                while wo_next <= avail:
                    self.issue(a, self.wo_kstep_ops(wo_next), f"wo{wo_next}"); wo_next += 1
        a.barrier("c2")
        while wo_next <= 11:
            self.issue(a, self.wo_kstep_ops(wo_next), f"wo{wo_next}"); wo_next += 1
        rok = a.newlabel("L_rok")
        a(f"s_cmp_lg_u32 s{S_RDYOK}, 0")
        a(f"s_cbranch_scc1 {rok}")
        self.l_poll(SRD_DBG, T + 8, 1, 1, cmp="ge")
        a.label(rok)
        a("s_waitcnt vmcnt(0)")
        self.stamp("lwo", "l")
        a.barrier("e1")
        self.l_signal(T + 4, fastable=True)
        while wo_next <= 15:
            self.issue(a, self.wo_kstep_ops(wo_next), f"wo{wo_next}"); wo_next += 1
        self.l_poll(SRD_WS, T + 6, 4, 1, cmp="bit")
        a.barrier("e2")
        a.barrier("f1")
        self.l_signal(T + 5)
        self.l_poll(SRD_WS, T + 7, 8, 1, cmp="bit")
        a.barrier("f2")
        if self.ts:
            self.write_stamps(a, "l", T)
        a("s_endpgm")

    def build(self):
        a = self.a
        self.prologue()
        self.stamp("pro")
        for n in range(9):
            self.q_step(n)
            self.stamp(f"q{n}")
        self.stamp("qend")
        self.qx_step()
        self.stamp("qx")
        for i in range(17):
            self.att_step(i)
            self.stamp(f"a{i}")
        self.stamp("att")
        self.combine()
        self.oproj()
        self.stamp("ex2")
        if self.ts:
            self.final("L_fin")
            a.label("L_fin")
            self.write_stamps(a, "c", V_T)
        else:
            self.final()
        a.label("L_end")
        a("s_endpgm")
        self.loader()
        assert self.a.bars == self.l.bars, (self.a.bars, self.l.bars)
        hdr = [
            "; fused GQA block: Q projection + attention + output projection (generated)",
            f"; @launch grid=(256,1,1) block=({64*NW},1,1) lds={LDS_BYTES}",
            '.amdgcn_target "amdgcn-amd-amdhsa--gfx950"',
            ".text",
            f".globl {KNAME}",
            ".p2align 8",
            f".type {KNAME},@function",
            f"{KNAME}:",
        ]
        ftr = [
            "L_codeend:",
            "    s_endpgm",
            '.section .rodata,"a"',
            ".p2align 6",
            f".amdhsa_kernel {KNAME}",
            "  .amdhsa_next_free_vgpr 256",
            "  .amdhsa_next_free_sgpr 102",
            f"  .amdhsa_accum_offset {ACC_OFF}",
            "  .amdhsa_group_segment_fixed_size 0",
            "  .amdhsa_kernarg_size 64",
            "  .amdhsa_user_sgpr_count 2",
            "  .amdhsa_user_sgpr_kernarg_segment_ptr 1",
            "  .amdhsa_system_sgpr_workgroup_id_x 1",
            ".end_amdhsa_kernel",
        ]
        body = a.text().replace("    @@LOADER@@\n", self.l.text())
        return "\n".join(hdr) + "\n" + body + "\n".join(ftr) + "\n"


if __name__ == "__main__":
    import argparse
    p = argparse.ArgumentParser()
    p.add_argument("-o", default="standalone__gqa_block_cached__near_ridge.s")
    p.add_argument("--ts", default=False)
    p.add_argument("--kvaux", default="")
    p.add_argument("--stamps", default=None)
    p.add_argument("--notouch", action="store_true")
    p.add_argument("--noswap", action="store_true")
    p.add_argument("--la", type=int, default=5)
    p.add_argument("--early", type=int, default=3)
    p.add_argument("--nofast", action="store_true")
    p.add_argument("--opt", action="append", default=[])
    p.add_argument("--probe", default=None)
    p.add_argument("--mult", type=int, default=1)
    args = p.parse_args()
    if args.probe:
        args.ts = "probe"
        args.stamps = "start," + args.probe + ",end"
    g = Gen(ts=args.ts, opts=dict({"probe": args.probe, "mult": args.mult}, **{kv.split("=")[0]: int(kv.split("=")[1]) for kv in args.opt}), kvaux=args.kvaux, stampset=args.stamps.split(",") if args.stamps else None,
            touch=not args.notouch, LA=args.la, swap=not args.noswap, early=args.early, fast=not args.nofast)
    open(args.o, "w").write(g.build())
    print("written", args.o, len(g.a.L) + len(g.l.L), "lines", g.stampnames)
```

```python
import sys, math, struct

KNAME = "standalone__gqa_block_cached__near_ridge_kernel"

UNIT = 16384
LDS_BYTES = 163840
QSLOT = [0, 24576, 49152]
QX_OFF = 65536
SCR_OFF = 65536
FAST_OFF = 162816
STATS_OFF = 160768
WS_FLAG1 = 0
WS_FLAG2 = 32768
WS_O = 0x100000
WS_P = 0x800000
WS_TS = 0x2000000
PSTRIDE = 20480
C_SCALE = math.log2(math.e) / math.sqrt(128.0)
T_RESCALE = 8.0
NW = 5


def f32bits(x):
    return struct.unpack("<I", struct.pack("<f", x))[0]


def phys(u):
    return (5 + u) % 10


def kunit(i):
    return 0 if i == 0 else 2 * i - 1


def vunit(i):
    return 31 if i == 15 else 2 * i + 2


def unit_desc(u):
    if u == 0:
        return ("K", 0)
    if u == 31:
        return ("V", 15)
    if u & 1:
        return ("K", (u + 1) // 2)
    return ("V", (u - 2) // 2)


def wo_lds(t):
    return 114688 + 9216 * t if t < 5 else 9216 * (t - 5)


class Asm:
    def __init__(self, pfx):
        self.L = []
        self.vm = []
        self.nlabel = 0
        self.pfx = pfx
        self.nbar = 0

    def __call__(self, s):
        self.L.append("    " + s)

    def label(self, name):
        self.L.append(name + ":")

    def c(self, s):
        self.L.append("    ; " + s)

    def newlabel(self, p="L"):
        self.nlabel += 1
        return f"{p}_{self.pfx}{self.nlabel}"

    def vmop(self, s, tag):
        self(s)
        self.vm.append(tag)

    def wait_tag(self, tag):
        idx = [i for i, t in enumerate(self.vm) if t == tag]
        assert idx, tag
        n = min(len(self.vm) - 1 - idx[-1], 63)
        self(f"s_waitcnt vmcnt({n})")

    def barrier(self, name):
        self.nbar += 1
        self.bars = getattr(self, "bars", []) + [name]
        self(f"s_barrier        ; {name}")

    def text(self):
        return "\n".join(self.L) + "\n"


S_X, S_K, S_V, S_WQ, S_WO, S_OUT, S_DBG, S_WS = 4, 6, 8, 10, 12, 14, 16, 18
SRD_X, SRD_WQ, SRD_K, SRD_V, SRD_WO, SRD_WS, SRD_OUT, SRD_DBG = 20, 24, 28, 32, 36, 40, 44, 48
S_WAVE = 52
S_B = 53
S_J = 54
S_HH = 55
S_IDX = 56
S_T0, S_T1, S_T3 = 57, 58, 59
S_T2 = 64
S_SWAP = 61
S_W4K = 63
S_C = 66
S_THR = 67
S_SPIN = 68
S_FAST = 62
S_RDYOK = 71
S_XCC = 65
S_QB = 69
S_KS = 70
S_SLOT = 71
S_SAVE = 72
S_PC = 74
S_TS = 76

ACC_OFF = 152
V_LANE = 1
V_KA = 2
V_VA = 10
V_L16 = 14
V_TMAX = 15
V_MC = 16
V_L = 17
V_T = 18
V_QA = 30
V_QB = 31
V_CST, V_CSR, V_CW, V_CR, V_OST = 35, 36, 37, 38, 39
V_P = 40
V_P2 = 144
S_PEND = 60
V_S = 48
V_O = 80
V_DK = 30
V_ACC = 80
V_E = 116
V_WOA = 136
A_Q = 0
A_K = 32
A_V = 64
A_OB = 0
A_W = 64
V_EKOFF = 80
V_EVOFF = 84
V_PFD = 88

L_KOFF = 2
L_VOFF = 6
L_WQOFF = 7
L_XOFF = 8
L_WOOFF = 10
L_T = 20
L_RDY = 32


def vr(b, n=1):
    return f"v{b}" if n == 1 else f"v[{b}:{b+n-1}]"


def ar(b, n=1):
    return f"a{b}" if n == 1 else f"a[{b}:{b+n-1}]"


def sr(b, n=1):
    return f"s{b}" if n == 1 else f"s[{b}:{b+n-1}]"


class Gen:
    def __init__(self, ts=False, kvaux="", stampset=None, touch=True, LA=5, swap=True, early=3, fast=True, opts=None):
        self.a = Asm("c")
        self.l = Asm("l")
        self.ts = ts
        self.nts = {"c": 0, "l": 0}
        self.kvaux = kvaux
        self.touch = touch
        self.LA = LA
        self.swap = swap
        self.fast = fast
        self.waux = 'nt' if (opts or {}).get('wnt', 0) else ''
        self.early = early
        self.opts = opts or {}
        self.dbgsel = [0, 1, 2, 3, 4, 5, 6, 8]
        self.stampset = stampset or ["start", "qend", "qx", "att", "comb", "ex1", "oproj", "ex2", "end"]
        self.stampnames = {"c": [], "l": []}

    def stamp(self, name="end", who="c"):
        if not self.ts or name not in self.stampset:
            return
        a = self.a if who == "c" else self.l
        self.stampnames[who].append(name)
        r = S_TS + 2 * self.nts[who]
        assert r + 1 <= 101
        if self.opts.get("cyc") and name != "start" and name != "end":
            a(f"s_memtime {sr(r,2)}")
        else:
            a(f"s_memrealtime {sr(r,2)}")
        self.nts[who] += 1

    def bar(self, name):
        self.a.barrier(name)

    def q_item_ops(self, n):
        base = QSLOT[n % 3]
        g = []
        for j in range(16):
            pre = []
            if j % 4 == 0:
                pre.append(f"s_mov_b32 m0, {base + (j//4)*4096}")
            pre.append(f"s_mov_b32 s{S_T3}, {n*64*8192 + j*32768 - (j%4)*1024}")
            pre.append(f"buffer_load_dwordx4 v{L_WQOFF}, {sr(SRD_WQ,4)}, s{S_T3} offen offset:{(j%4)*1024} {self.waux} lds")
            g.append(pre)
        for j in range(8):
            pre = []
            if j % 4 == 0:
                pre.append(f"s_mov_b32 m0, {base + 16384 + (j//4)*4096}")
            pre.append(f"s_mov_b32 s{S_T3}, {128*n + j*9216 - (j%4)*1024}")
            pre.append(f"buffer_load_dwordx4 v{L_XOFF+(j&1)}, {sr(SRD_X,4)}, s{S_T3} offen offset:{(j%4)*1024} lds")
            g.append(pre)
        return g

    def unit_ops(self, u, who):
        kind, i = unit_desc(u)
        base = phys(u) * UNIT
        srd = SRD_K if kind == "K" else SRD_V
        aux = self.kvaux
        g = []
        if who == "l":
            for j in range(16):
                pre = []
                if j == 0 and self.swap:
                    pre.append(f"s_xor_b32 s{S_T2}, s{S_SWAP}, {i*16384}")
                if j % 4 == 0:
                    pre.append(f"s_mov_b32 m0, {base + (j//4)*4096}")
                    if self.swap:
                        pre.append(f"s_add_u32 s{S_T3}, s{S_T2}, {(j//4)*4096}")
                    else:
                        pre.append(f"s_mov_b32 s{S_T3}, {i*16384 + (j//4)*4096}")
                voff = L_KOFF + (j & 3) if kind == "K" else L_VOFF
                pre.append(f"buffer_load_dwordx4 v{voff}, {sr(srd,4)}, s{S_T3} offen offset:{(j%4)*1024} {aux} lds")
                g.append(pre)
        else:
            for jj in range(4):
                pre = []
                if jj == 0:
                    pre.append(f"s_add_u32 m0, s{S_W4K}, {base}")
                    if self.swap:
                        pre.append(f"s_xor_b32 s{S_T3}, s{S_SWAP}, {i*16384}")
                        pre.append(f"s_add_u32 s{S_T3}, s{S_T3}, s{S_W4K}")
                    else:
                        pre.append(f"s_add_u32 s{S_T3}, s{S_W4K}, {i*16384}")
                voff = V_EKOFF + jj if kind == "K" else V_EVOFF
                pre.append(f"buffer_load_dwordx4 v{voff}, {sr(srd,4)}, s{S_T3} offen offset:{jj*1024} {aux} lds")
                g.append(pre)
        return g

    def wo_kstep_ops(self, t):
        g = []
        base = wo_lds(t)
        for u in range(9):
            pre = []
            if u == 0:
                pre.append(f"s_add_u32 s{S_T3}, s{S_HH}, {t//4}")
                pre.append(f"s_and_b32 s{S_T3}, s{S_T3}, 3")
                pre.append(f"s_mul_i32 s{S_T3}, s{S_T3}, {4*36864}")
                if t % 4:
                    pre.append(f"s_add_u32 s{S_T3}, s{S_T3}, {(t%4)*36864}")
            if u % 4 == 0:
                pre.append(f"s_mov_b32 m0, {base + u*1024}")
                pre.append("s_nop 0")
            pre.append(f"buffer_load_dwordx4 v{L_WOOFF+u}, {sr(SRD_WO,4)}, s{S_T3} offen offset:{(u%4)*1024} {self.waux} lds")
            g.append(pre)
        return g

    @staticmethod
    def issue(a, groups, tag):
        for grp in groups:
            for s in grp[:-1]:
                a(s)
            a.vmop(grp[-1], tag)

    def dma_voffsets(self, a, T, koff, voff, wqoff=None, xoff=None):
        L = V_LANE
        a(f"v_lshrrev_b32 v{T}, 4, v{L}")
        a(f"v_and_b32 v{T+1}, 15, v{L}")
        a(f"v_lshlrev_b32 v{T+2}, 2, v{T}")
        a(f"v_xor_b32 v{T+2}, v{T+2}, v{T+1}")
        a(f"v_lshlrev_b32 v{T+2}, 4, v{T+2}")
        a(f"v_lshl_add_u32 v{voff}, v{T}, 8, v{T+2}")
        if wqoff is not None:
            a(f"v_lshl_add_u32 v{wqoff}, v{T}, 13, v{T+2}")
            a(f"v_lshrrev_b32 v{T+3}, 3, v{L}")
            a(f"v_and_b32 v{T+4}, 7, v{L}")
            a(f"v_mul_u32_u24 v{T+3}, 1152, v{T+3}")
            for e in range(2):
                a(f"v_add_u32 v{T+2}, {4*e}, v{T}")
                a(f"v_xor_b32 v{T+2}, v{T+2}, v{T+4}")
                a(f"v_lshl_add_u32 v{xoff+e}, v{T+2}, 4, v{T+3}")
        for jj in range(4):
            a(f"v_add_u32 v{T+2}, {4*jj}, v{T}")
            a(f"v_xor_b32 v{T+2}, v{T+2}, v{T+1}")
            a(f"v_lshlrev_b32 v{T+2}, 4, v{T+2}")
            a(f"v_lshl_add_u32 v{koff+jj}, v{T}, 8, v{T+2}")

    def prologue(self):
        a = self.a
        L, T = V_LANE, V_T
        a("s_cmp_ge_u32 s2, 256")
        a("s_cbranch_scc1 L_end")
        self.stamp("start")
        a("s_load_dwordx16 s[4:19], s[0:1], 0")
        a(f"s_getpc_b64 {sr(S_PC,2)}")
        a.label("L_pcbase")
        a(f"v_lshrrev_b32 v{T+1}, 6, v0")
        a(f"v_and_b32 v{L}, 63, v0")
        a(f"v_readfirstlane_b32 s{S_WAVE}, v{T+1}")
        a(f"s_and_b32 s{S_J}, s2, 7")
        a(f"s_lshr_b32 s{S_SLOT}, s2, 3")
        a(f"s_lshr_b32 s{S_B}, s{S_SLOT}, 2")
        a(f"s_and_b32 s{S_HH}, s{S_SLOT}, 3")
        a(f"s_lshl_b32 s{S_IDX}, s{S_B}, 5")
        a(f"s_lshl_b32 s{S_T1}, s{S_J}, 2")
        a(f"s_add_u32 s{S_IDX}, s{S_IDX}, s{S_T1}")
        a(f"s_add_u32 s{S_IDX}, s{S_IDX}, s{S_HH}")
        a(f"s_and_b32 s{S_SWAP}, s{S_HH}, 1")
        a(f"s_lshl_b32 s{S_SWAP}, s{S_SWAP}, 14")
        a(f"s_mul_i32 s{S_T0}, s{S_B}, 73728")
        a(f"s_lshl_b32 s{S_T1}, s{S_J}, 2")
        a(f"s_add_u32 s{S_T1}, s{S_T1}, s{S_HH}")
        a(f"s_lshl_b32 s{S_T1}, s{S_T1}, 8")
        a(f"s_lshl_b32 s{S_T2}, s{S_B}, 4")
        a(f"s_lshl_b32 s{S_T3}, s{S_J}, 1")
        a(f"s_add_u32 s{S_T2}, s{S_T2}, s{S_T3}")
        a(f"s_lshr_b32 s{S_T3}, s{S_HH}, 1")
        a(f"s_add_u32 s{S_T2}, s{S_T2}, s{S_T3}")
        a(f"s_lshl_b32 s{S_T2}, s{S_T2}, 18")
        a(f"s_mov_b32 s{SRD_X+2}, 73728")
        a(f"s_mov_b32 s{SRD_X+3}, 0x20000")
        a(f"s_sub_u32 s{SRD_WQ+2}, 4718592, s{S_T1}")
        a(f"s_mov_b32 s{SRD_WQ+3}, 0x20000")
        a(f"s_mov_b32 s{SRD_K+2}, 262144")
        a(f"s_mov_b32 s{SRD_K+3}, 0x20000")
        a(f"s_mov_b32 s{SRD_V+2}, 262144")
        a(f"s_mov_b32 s{SRD_V+3}, 0x20000")
        a(f"s_mov_b32 s{SRD_WS+2}, 0x10000000")
        a(f"s_mov_b32 s{SRD_WS+3}, 0x20000")
        a(f"s_cmp_lg_u32 s{S_WAVE}, 4")
        a(f"s_cbranch_scc1 L_compute")
        a("@@LOADER@@")
        a.label("L_compute")
        a(f"s_and_b32 s{S_QB}, s{S_WAVE}, 1")
        a(f"s_lshr_b32 s{S_KS}, s{S_WAVE}, 1")
        a(f"s_lshl_b32 s{S_W4K}, s{S_WAVE}, 12")
        a("s_waitcnt lgkmcnt(0)")
        self.srds(a)
        a(f"s_mov_b32 s{S_C}, {f32bits(C_SCALE):#x}")
        a(f"s_mov_b32 s{S_THR}, {f32bits(T_RESCALE):#x}")
        a(f"s_mov_b32 s{SRD_OUT}, s{S_OUT}")
        a(f"s_mov_b32 s{SRD_OUT+1}, s{S_OUT+1}")
        a(f"s_mov_b32 s{SRD_OUT+2}, 589824")
        a(f"s_mov_b32 s{SRD_OUT+3}, 0x20000")
        a(f"v_lshrrev_b32 v{T}, 4, v{L}")
        a(f"v_and_b32 v{T+1}, 15, v{L}")
        a(f"v_lshrrev_b32 v{T+2}, 2, v{T+1}")
        a(f"v_and_b32 v{T+3}, 3, v{L}")
        a(f"v_and_b32 v{T+4}, 1, v{T}")
        a(f"v_lshrrev_b32 v{T+5}, 1, v{T}")
        a(f"v_lshl_add_u32 v{T+6}, v{T+5}, 3, v{T+2}")
        a(f"v_lshlrev_b32 v{T+6}, 8, v{T+6}")
        a(f"v_xor_b32 v{T+7}, s{S_WAVE}, v{T+2}")
        a(f"v_lshl_add_u32 v{T+6}, v{T+7}, 6, v{T+6}")
        a(f"v_lshl_add_u32 v{T+6}, v{T+4}, 5, v{T+6}")
        a(f"v_and_b32 v{T+7}, 1, v{T+3}")
        a(f"v_lshl_add_u32 v{T+6}, v{T+7}, 4, v{T+6}")
        a(f"v_lshrrev_b32 v{T+7}, 1, v{T+3}")
        a(f"v_lshl_add_u32 v{V_QA}, v{T+7}, 3, v{T+6}")
        a(f"v_and_b32 v{T+8}, 31, v{L}")
        a(f"v_lshrrev_b32 v{T+9}, 5, v{L}")
        a(f"v_lshrrev_b32 v{T+10}, 1, v{T+8}")
        a(f"v_and_b32 v{T+10}, 7, v{T+10}")
        a(f"v_xor_b32 v{T+10}, v{T+10}, v{T+9}")
        a(f"v_lshlrev_b32 v{T+11}, 7, v{T+8}")
        a(f"v_add_u32 v{T+11}, 16384, v{T+11}")
        for s in range(4):
            a(f"v_xor_b32 v{T+9}, {2*s}, v{T+10}")
            a(f"v_lshl_add_u32 v{V_QB+s}, v{T+9}, 4, v{T+11}")
        a(f"v_lshlrev_b32 v{V_L16}, 4, v{L}")
        if self.opts.get("touch_early", 1):
            self.touches()
        self.dma_voffsets(a, T, V_EKOFF, V_EVOFF)
        self.att_consts()
        if not self.opts.get("touch_early", 1):
            self.touches()
        self.comb_consts()

    def touches(self):
        a = self.a
        L, T = V_LANE, V_T
        if self.touch:
            a(f"v_and_b32 v{T}, 0x7f, v0")
            a(f"v_lshrrev_b32 v{T+1}, 3, v{T}")
            a(f"v_and_b32 v{T+2}, 7, v{T}")
            a(f"s_lshl_b32 s{S_SAVE}, s{S_SLOT}, 4")
            a(f"v_add_u32 v{T+1}, s{S_SAVE}, v{T+1}")
            lb = a.newlabel("L_tx"); lj = a.newlabel("L_tj")
            a(f"s_cmp_ge_u32 s{S_WAVE}, 2")
            a(f"s_cbranch_scc1 {lb}")
            a(f"v_add_u32 v{T+1}, 64, v{T+1}")
            a(f"v_lshlrev_b32 v{T+1}, 13, v{T+1}")
            a(f"v_lshl_add_u32 v{T+1}, v{T+2}, 7, v{T+1}")
            a(f"s_lshl_b32 s{S_SAVE}, s{S_J}, 10")
            a(f"v_add_u32 v{T+1}, s{S_SAVE}, v{T+1}")
            a(f"global_load_dword v{V_PFD}, v{T+1}, {sr(S_WQ,2)} {self.waux}")
            a(f"s_branch {lj}")
            a.label(lb)
            a(f"v_mul_u32_u24 v{T+1}, 1152, v{T+1}")
            a(f"v_lshl_add_u32 v{T+1}, v{T+2}, 7, v{T+1}")
            a(f"global_load_dword v{V_PFD}, v{T+1}, {sr(S_X,2)} offset:128")
            a.label(lj)
        lab = a.newlabel("L_rst")
        a(f"s_and_b32 s{S_SPIN}, s{S_IDX}, 31")
        a(f"s_lshl_b32 s{S_SPIN}, s{S_SPIN}, 2")
        a(f"s_add_u32 s{S_SPIN}, s{S_SPIN}, s{S_WAVE}")
        a(f"s_cmp_lg_u32 s{S_SPIN}, 3")
        a(f"s_cbranch_scc1 {lab}")
        a(f"v_and_b32 v{T}, 31, v{L}")
        a(f"v_add_u32 v{T}, s{S_IDX}, v{T}")
        a(f"v_lshlrev_b32 v{T}, 7, v{T}")
        a(f"v_lshrrev_b32 v{T+1}, 5, v{L}")
        a(f"v_lshl_add_u32 v{T}, v{T+1}, 15, v{T}")
        a(f"v_mov_b32 v{T+1}, 0")
        a(f"buffer_store_dword v{T+1}, v{T}, {sr(SRD_WS,4)}, 0 offen sc1")
        a("s_waitcnt vmcnt(0)")
        a(f"s_mov_b32 s{SRD_DBG}, s{S_DBG}")
        a(f"s_mov_b32 s{SRD_DBG+1}, s{S_DBG+1}")
        a(f"s_mov_b32 s{SRD_DBG+2}, 256")
        a(f"s_mov_b32 s{SRD_DBG+3}, 0x20000")
        a(f"s_lshl_b32 s{S_SPIN}, s{S_B}, 2")
        a(f"v_mov_b32 v{T}, s{S_SPIN}")
        a(f"v_mov_b32 v{T+1}, 1")
        a("s_mov_b64 exec, 1")
        a(f"buffer_store_dword v{T+1}, v{T}, {sr(SRD_DBG,4)}, 0 offen sc1")
        a("s_mov_b64 exec, -1")
        a.label(lab)
        lab = a.newlabel("L_pf")
        a(f"s_cmp_lg_u32 s{S_WAVE}, 0")
        a(f"s_cbranch_scc1 {lab}")
        a(f"s_lshl_b32 s{S_SAVE}, s{S_SLOT}, 11")
        a(f"v_lshlrev_b32 v{T}, 7, v{L}")
        a(f"v_add_u32 v{T}, s{S_SAVE}, v{T}")
        a(f"s_mov_b32 s{S_SPIN}, L_codeend-L_pcbase")
        a(f"v_cmp_gt_u32 vcc, s{S_SPIN}, v{T}")
        a(f"s_and_b64 vcc, vcc, 0xffff")
        a(f"s_and_saveexec_b64 {sr(S_SAVE,2)}, vcc")
        a(f"s_cbranch_execz {lab}_r")
        a(f"global_load_dword v{V_PFD+1}, v{T}, {sr(S_PC,2)}")
        a.label(lab + "_r")
        a(f"s_mov_b64 exec, {sr(S_SAVE,2)}")
        a.label(lab)

    def srds(self, a):
        a(f"s_add_u32 s{SRD_X}, s{S_X}, s{S_T0}")
        a(f"s_addc_u32 s{SRD_X+1}, s{S_X+1}, 0")
        a(f"s_add_u32 s{SRD_WQ}, s{S_WQ}, s{S_T1}")
        a(f"s_addc_u32 s{SRD_WQ+1}, s{S_WQ+1}, 0")
        a(f"s_add_u32 s{SRD_K}, s{S_K}, s{S_T2}")
        a(f"s_addc_u32 s{SRD_K+1}, s{S_K+1}, 0")
        a(f"s_add_u32 s{SRD_V}, s{S_V}, s{S_T2}")
        a(f"s_addc_u32 s{SRD_V+1}, s{S_V+1}, 0")
        a(f"s_mov_b32 s{SRD_WS}, s{S_WS}")
        a(f"s_mov_b32 s{SRD_WS+1}, s{S_WS+1}")

    def att_consts(self):
        a = self.a
        L, T = V_LANE, V_T
        a.c("attention constants (register set 0 = LDS base 0)")
        a(f"v_lshrrev_b32 v{T}, 4, v{L}")
        a(f"v_and_b32 v{T+1}, 15, v{L}")
        a(f"v_lshrrev_b32 v{T+2}, 2, v{T+1}")
        a(f"v_and_b32 v{T+3}, 3, v{L}")
        a(f"v_and_b32 v{T+4}, 1, v{T}")
        a(f"v_lshrrev_b32 v{T+5}, 1, v{T}")
        a(f"v_lshl_add_u32 v{T+6}, v{T+5}, 2, v{T+2}")
        a(f"v_lshlrev_b32 v{T+6}, 8, v{T+6}")
        a(f"v_lshl_add_u32 v{T+6}, v{T+4}, 5, v{T+6}")
        a(f"v_lshl_add_u32 v{T+6}, v{T+3}, 3, v{T+6}")
        a(f"s_lshl_b32 s{S_T0}, s{S_KS}, 13")
        a(f"v_add_u32 v{T+6}, s{S_T0}, v{T+6}")
        a(f"s_lshl_b32 s{S_T1}, s{S_KS}, 1")
        for g in range(4):
            a(f"s_xor_b32 s{S_T2}, s{S_T1}, {g}")
            a(f"v_xor_b32 v{T+7}, s{S_T2}, v{T+2}")
            a(f"v_lshl_add_u32 v{V_VA+g}, v{T+7}, 6, v{T+6}")
        a(f"v_and_b32 v{T+8}, 31, v{L}")
        a(f"v_lshrrev_b32 v{T+9}, 5, v{L}")
        a(f"v_and_b32 v{T+10}, 15, v{T+8}")
        a(f"v_xor_b32 v{T+10}, v{T+10}, v{T+9}")
        a(f"v_lshlrev_b32 v{T+11}, 8, v{T+8}")
        a(f"v_add_u32 v{T+11}, s{S_T0}, v{T+11}")
        for s in range(8):
            a(f"v_xor_b32 v{T+9}, {2*s}, v{T+10}")
            a(f"v_lshl_add_u32 v{V_KA+s}, v{T+9}, 4, v{T+11}")
        self.kset = 0
        self.vset = 0

    def comb_consts(self):
        a = self.a
        L, T = V_LANE, V_T
        a.c("combine constants")
        a(f"v_lshlrev_b32 v{T}, 3, v{L}")
        a(f"s_lshl_b32 s{S_T0}, s{S_WAVE}, 9")
        a(f"s_add_u32 s{S_T0}, s{S_T0}, {STATS_OFF}")
        a(f"v_add_u32 v{V_CST}, s{S_T0}, v{T}")
        a(f"s_xor_b32 s{S_T1}, s{S_WAVE}, 2")
        a(f"s_lshl_b32 s{S_T0}, s{S_T1}, 9")
        a(f"s_add_u32 s{S_T0}, s{S_T0}, {STATS_OFF}")
        a(f"v_add_u32 v{V_CSR}, s{S_T0}, v{T}")
        a(f"s_lshl_b32 s{S_T0}, s{S_WAVE}, 13")
        a(f"s_add_u32 s{S_T0}, s{S_T0}, {SCR_OFF}")
        a(f"v_add_u32 v{V_CW}, s{S_T0}, v{V_L16}")
        a(f"s_lshl_b32 s{S_T0}, s{S_T1}, 13")
        a(f"s_add_u32 s{S_T0}, s{S_T0}, {SCR_OFF}")
        a(f"v_add_u32 v{V_CR}, s{S_T0}, v{V_L16}")
        a(f"v_and_b32 v{T}, 31, v{L}")
        a(f"v_lshrrev_b32 v{T+1}, 4, v{T}")
        a(f"v_lshlrev_b32 v{T+1}, 12, v{T+1}")
        a(f"v_and_b32 v{T+2}, 15, v{T}")
        a(f"v_lshl_add_u32 v{T+1}, v{T+2}, 4, v{T+1}")
        a(f"v_lshrrev_b32 v{T+2}, 5, v{L}")
        a(f"v_lshl_add_u32 v{T+1}, v{T+2}, 8, v{T+1}")
        a(f"s_lshl_b32 s{S_T0}, s{S_IDX}, 14")
        a(f"s_lshl_b32 s{S_T1}, s{S_QB}, 13")
        a(f"s_add_u32 s{S_T0}, s{S_T0}, s{S_T1}")
        a(f"s_lshl_b32 s{S_T1}, s{S_KS}, 11")
        a(f"s_add_u32 s{S_T0}, s{S_T0}, s{S_T1}")
        a(f"s_add_u32 s{S_T0}, s{S_T0}, {WS_O}")
        a(f"v_add_u32 v{V_OST}, s{S_T0}, v{T+1}")

    def early_schedule(self):
        return {1: 0, 3: 1, 5: 2} if self.early == 3 else ({2: 0, 5: 1} if self.early == 2 else ({} if self.early == 0 else {3: 0}))

    def q_mfmas(self, n):
        a = self.a
        A0 = 48 * (n & 1)
        out = []
        for s in range(4):
            for qb in range(2):
                src_c = vr(V_S+16*qb,16) if not (n == 0 and s == 0) else "0"
                out.append(f"v_mfma_f32_32x32x16_bf16 {vr(V_S+16*qb,16)}, {ar(A0+4*s,4)}, {ar(A0+16+8*s+4*qb,4)}, {src_c}")
        return out

    def q_step(self, n):
        a = self.a
        base = QSLOT[n % 3]
        A0 = 48 * (n & 1)
        a.c(f"---- Q step {n}")
        self.bar(f"q{n}")
        self.stamp(f"qb{n}")
        reads = []
        for s in range(4):
            reads.append(f"ds_read_b64_tr_b16 {ar(A0+4*s,2)}, v{V_QA} offset:{base+s*4096}")
            reads.append(f"ds_read_b64_tr_b16 {ar(A0+4*s+2,2)}, v{V_QA} offset:{base+s*4096+1024}")
            for qb in range(2):
                reads.append(f"ds_read_b128 {ar(A0+16+8*s+4*qb,4)}, v{V_QB+s} offset:{base+qb*4096}")
        mf = self.q_mfmas(n - 1) if n >= 1 else []
        es = self.early_schedule()
        dma = self.unit_ops(es[n], "c") if n in es else []
        ri = 0
        for k in range(8):
            for _ in range(2):
                a(reads[ri]); ri += 1
            if mf:
                a(mf[k])
            if dma and k % 2 == 1:
                self.issue(a, [dma[k // 2]], f"u{es[n]}")
        a("s_waitcnt lgkmcnt(0)")
        if n == 8:
            for m in self.q_mfmas(8):
                a(m)

    def qx_step(self):
        a = self.a
        T = V_T
        a.c("---- QX")
        if self.early == 0:
            a("s_waitcnt vmcnt(0)")
        self.bar("x1")
        a(f"s_lshl_b32 s{S_T0}, s{S_WAVE}, 11")
        a(f"s_add_u32 s{S_T0}, s{S_T0}, {QX_OFF}")
        a(f"v_add_u32 v{T}, s{S_T0}, v{V_L16}")
        a(f"s_lshl_b32 s{S_T0}, s{S_QB}, 13")
        a(f"s_add_u32 s{S_T0}, s{S_T0}, {QX_OFF}")
        a(f"v_add_u32 v{T+1}, s{S_T0}, v{V_L16}")
        a("s_nop 7")
        E = V_O + 16
        for qb in range(2):
            for half in range(2):
                for d in range(4):
                    src = V_S + 16 * qb + 8 * half + 2 * d
                    a(f"v_cvt_pk_bf16_f32 v{E+4*(2*qb+half)+d}, v{src}, v{src+1}")
        for qb in range(2):
            for half in range(2):
                a(f"ds_write_b128 v{T}, {vr(E+4*(2*qb+half),4)} offset:{qb*8192+half*1024}")
        a("s_waitcnt lgkmcnt(0)")
        self.bar("x2")
        for s in range(8):
            a(f"ds_read_b128 {ar(A_Q+4*s,4)}, v{T+1} offset:{s*1024}")
        a("s_waitcnt lgkmcnt(0)")

    def set_regs(self, which, want):
        a = self.a
        cur = self.kset if which == "K" else self.vset
        if cur == want:
            return
        d = (want - cur) * 65536
        base, n = (V_KA, 8) if which == "K" else (V_VA, 4)
        for k in range(n):
            if d > 0:
                a(f"v_add_u32 v{base+k}, {d:#x}, v{base+k}")
            else:
                a(f"v_subrev_u32 v{base+k}, {-d:#x}, v{base+k}")
        if which == "K":
            self.kset = want
        else:
            self.vset = want

    @staticmethod
    def pbuf(j):
        return V_P if (j & 1) == 0 else V_P2

    def softmax_valu(self, j, lo=0, hi=16):
        E = V_S + 16 * (j & 1)
        P = self.pbuf(j)
        fm = {k: f"v_fma_f32 v{E+k}, v{E+k}, s{S_C}, -v{V_MC}" for k in range(lo, hi)}
        ex = {k: f"v_exp_f32 v{E+k}, v{E+k}" for k in range(lo, hi)}
        D = min(3, hi - lo)
        seq = [fm[k] for k in range(lo, lo + D)]

        def consume(kk):
            out = []
            if j == 0 and kk == 0:
                out.append(f"v_mov_b32 v{V_L}, v{E+0}")
            else:
                out.append(f"v_add_f32 v{V_L}, v{V_L}, v{E+kk}")
            if kk & 1:
                out.append(f"v_cvt_pk_bf16_f32 v{P+kk//2}, v{E+kk-1}, v{E+kk}")
            return out
        for k in range(lo, hi):
            seq.append(ex[k])
            if k + D < hi:
                seq.append(fm[k + D])
            elif k > lo:
                pass
            if k > lo:
                seq += consume(k - 1)
        seq.append("s_nop 0")
        seq += consume(hi - 1)
        return seq

    def max_chain(self, i):
        Sc = V_S + 16 * (i & 1)
        TM = V_TMAX
        mx = [f"v_max3_f32 v{TM}, v{Sc}, v{Sc+1}, v{Sc+2}", f"v_max3_f32 v{V_T}, v{Sc+3}, v{Sc+4}, v{Sc+5}"]
        mx += [f"v_max3_f32 v{TM}, v{TM}, v{Sc+6}, v{Sc+7}", f"v_max3_f32 v{V_T}, v{V_T}, v{Sc+8}, v{Sc+9}"]
        mx += [f"v_max3_f32 v{TM}, v{TM}, v{Sc+10}, v{Sc+11}", f"v_max3_f32 v{V_T}, v{V_T}, v{Sc+12}, v{Sc+13}"]
        mx += [f"v_max3_f32 v{TM}, v{TM}, v{Sc+14}, v{Sc+15}", f"v_max_f32 v{TM}, v{TM}, v{V_T}"]
        mx += [f"v_mov_b32 v{V_T}, v{TM}", "s_nop 1", f"v_permlane32_swap_b32 v{TM}, v{V_T}", "s_nop 1",
               f"v_max_f32 v{TM}, v{TM}, v{V_T}", f"v_mul_f32 v{TM}, s{S_C}, v{TM}"]
        return mx

    def k_reads(self, i):
        ku = phys(kunit(i)) * UNIT
        self.set_regs("K", ku // 65536)
        return [f"ds_read_b128 {ar(A_K+4*s,4)}, v{V_KA+s} offset:{ku % 65536}" for s in range(8)]

    def att_step(self, i):
        a = self.a
        assert self.early == 0
        N1 = self.opts.get("n1", 4)
        a.c(f"---- attention step {i}")
        has_s = i <= 15
        has_pv = i >= 1
        if has_pv:
            vu = phys(vunit(i - 1)) * UNIT
            self.set_regs("V", vu // 65536)
            vimm = vu % 65536
        if i == 12 and self.touch:
            T = V_T
            lab = a.newlabel("L_wt")
            a(f"s_mul_i32 s{S_T0}, s{S_J}, 589824")
            a(f"s_mul_i32 s{S_T1}, s{S_SLOT}, {144*128}")
            a(f"s_add_u32 s{S_T0}, s{S_T0}, s{S_T1}")
            a(f"v_lshlrev_b32 v{T}, 7, v0")
            a(f"v_add_u32 v{T}, s{S_T0}, v{T}")
            a(f"v_cmp_gt_u32 vcc, 144, v0")
            a(f"s_and_saveexec_b64 {sr(S_SAVE,2)}, vcc")
            a(f"s_cbranch_execz {lab}")
            a(f"global_load_dword v{V_QB+3}, v{T}, {sr(S_WO,2)} {self.waux}")
            a.label(lab)
            a(f"s_mov_b64 exec, {sr(S_SAVE,2)}")
        if i == 0 or i == 15:
            kr0 = self.k_reads(i)
        self.stamp(f"aw{i}")
        self.bar(f"a{i}")
        self.stamp(f"ab{i}")
        if i == 16:
            return self.last_step(vimm)
        Sc = V_S + 16 * (i & 1)
        if i == 0 or i == 15:
            for r in kr0:
                a(r)
        if i == 0:
            a(f"s_mov_b32 s{S_PEND}, 0")
        vreads = []
        if has_pv:
            for s2 in range(2):
                for g in range(4):
                    for x in range(2):
                        vreads.append(f"ds_read_b64_tr_b16 {ar(A_V+16*s2+4*g+2*x,2)}, v{V_VA+g} offset:{vimm+s2*4096+x*2048}")
        valu = self.softmax_valu(i - 1, N1, 16) if has_pv else []
        per = (len(valu) + 7) // 8
        vi = 0
        if i == 15:
            for _ in range(12):
                a(valu[vi]); vi += 1
            per = (len(valu) - vi + 7) // 8
        for s in range(8):
            if i == 0 or i == 15:
                a(f"s_waitcnt lgkmcnt({7-s})")
            srcc = "0" if s == 0 else vr(Sc,16)
            a(f"v_mfma_f32_32x32x16_bf16 {vr(Sc,16)}, {ar(A_K+4*s,4)}, {ar(A_Q+4*s,4)}, {srcc}")
            if i != 15:
                for r in vreads[2*s:2*s+2]:
                    a(r)
            for _ in range(per):
                if vi < len(valu):
                    a(valu[vi]); vi += 1
        assert vi >= len(valu)
        kr = self.k_reads(i + 1) if i + 1 <= 14 else []
        mx = self.max_chain(i)
        P1 = self.softmax_valu(i, 0, N1 if i < 15 else 16)
        lab = a.newlabel("L_nors")

        def check():
            if i == 0:
                a(f"v_mov_b32 v{V_MC}, v{V_TMAX}")
                return
            a(f"v_sub_f32 v{V_T}, v{V_TMAX}, v{V_MC}")
            a(f"v_cmp_lt_f32 vcc, s{S_THR}, v{V_T}")
            a(f"s_cbranch_vccz {lab}")
            a(f"v_max_f32 v{V_T}, v{V_TMAX}, v{V_MC}")
            a(f"v_sub_f32 v{V_T+1}, v{V_MC}, v{V_T}")
            a(f"v_exp_f32 v{V_T+1}, v{V_T+1}")
            a(f"v_mov_b32 v{V_MC}, v{V_T}")
            a(f"s_mov_b32 s{S_PEND}, 1")
            a(f"v_mul_f32 v{V_L}, v{V_L}, v{V_T+1}")
            a.label(lab)

        if i == 15:
            P = self.pbuf(14)
            mfs = [f"v_mfma_f32_32x32x16_bf16 {vr(V_O+16*g,16)}, {ar(A_V+16*s2+4*g,4)}, {vr(P+4*s2,4)}, {vr(V_O+16*g,16)}"
                   for s2 in range(2) for g in range(4)]
            a("s_nop 7"); a("s_nop 3")
            for s_ in mx:
                a(s_)
            check()
            self.bar("a15v")
            for r in vreads:
                a(r)
            pi = 0
            for _ in range(14):
                a(P1[pi]); pi += 1
            n = (len(P1) - pi + 7) // 8
            for k in range(8):
                a(f"s_waitcnt lgkmcnt({min(15, 2*(7-k))})")
                a(mfs[k])
                for _ in range(n):
                    if pi < len(P1):
                        a(P1[pi]); pi += 1
            assert pi >= len(P1)
            lab2 = a.newlabel("L_nopend")
            a(f"s_cmp_eq_u32 s{S_PEND}, 0")
            a(f"s_cbranch_scc1 {lab2}")
            a("s_nop 7"); a("s_nop 7")
            for k in range(64):
                a(f"v_mul_f32 v{V_O+k}, v{V_O+k}, v{V_T+1}")
            a(f"s_mov_b32 s{S_PEND}, 0")
            a("s_nop 1")
            a.label(lab2)
        elif has_pv:
            P = self.pbuf(i - 1)
            mfs = []
            for s2 in range(2):
                for g in range(4):
                    srcc = "0" if (i == 1 and s2 == 0) else vr(V_O+16*g,16)
                    mfs.append(f"v_mfma_f32_32x32x16_bf16 {vr(V_O+16*g,16)}, {ar(A_V+16*s2+4*g,4)}, {vr(P+4*s2,4)}, {srcc}")
            a("s_waitcnt lgkmcnt(0)")
            a(mfs[0])
            for r in kr[0:3]:
                a(r)
            a(mfs[1])
            for r in kr[3:6]:
                a(r)
            a(mfs[2])
            for r in kr[6:8]:
                a(r)
            if not kr:
                a("s_nop 6")
            for s_ in mx[0:5]:
                a(s_)
            a(mfs[3])
            for s_ in mx[5:10]:
                a(s_)
            a(mfs[4])
            for s_ in mx[10:]:
                a(s_)
            a(mfs[5])
            check()
            n = (len(P1) + 2) // 3 if i < 15 else 6
            pi = 0
            for _ in range(n):
                if pi < len(P1):
                    a(P1[pi]); pi += 1
            a(mfs[6])
            for _ in range(n):
                if pi < len(P1):
                    a(P1[pi]); pi += 1
            a(mfs[7])
            while pi < len(P1):
                a(P1[pi]); pi += 1
            lab2 = a.newlabel("L_nopend")
            a(f"s_cmp_eq_u32 s{S_PEND}, 0")
            a(f"s_cbranch_scc1 {lab2}")
            a("s_nop 7"); a("s_nop 7")
            for k in range(64):
                a(f"v_mul_f32 v{V_O+k}, v{V_O+k}, v{V_T+1}")
            a(f"s_mov_b32 s{S_PEND}, 0")
            a("s_nop 1")
            a.label(lab2)
        else:
            for r in kr:
                a(r)
            a("s_nop 3")
            for s_ in mx:
                a(s_)
            check()
            for s_ in P1:
                a(s_)
        if i == 14:
            a(f"v_mov_b32 v{V_T}, {FAST_OFF}")
            a(f"ds_read_b32 v{V_T+1}, v{V_T}")
            a("s_waitcnt lgkmcnt(0)")
            a(f"v_readfirstlane_b32 s{S_FAST}, v{V_T+1}")
        if i == 15:
            T = V_T
            a(f"v_mov_b32 v{T+3}, v{V_L}")
            a(f"v_mov_b32 v{T+2}, v{V_MC}")
            a("s_nop 0")
            a(f"v_permlane32_swap_b32 v{V_L}, v{T+3}")
            a("s_nop 1")
            a(f"v_add_f32 v{V_L}, v{V_L}, v{T+3}")
            a(f"v_mov_b32 v{T+3}, v{V_L}")
            a(f"ds_write_b64 v{V_CST}, {vr(T+2,2)}")
        a("s_waitcnt lgkmcnt(0)")

    def last_step(self, vimm):
        a = self.a
        T = V_T
        a(f"ds_read_b64 {vr(T+2,2)}, v{V_CSR}")
        order = [2, 3, 0, 1]
        for s2 in range(2):
            for g in order:
                for x in range(2):
                    a(f"ds_read_b64_tr_b16 {ar(A_V+16*s2+4*g+2*x,2)}, v{V_VA+g} offset:{vimm+s2*4096+x*2048}")
        a("s_waitcnt lgkmcnt(15)")
        a(f"v_max_f32 v{T+4}, v{V_MC}, v{T+2}")
        a(f"v_sub_f32 v{T+6}, v{V_MC}, v{T+4}")
        a(f"v_sub_f32 v{T+8}, v{T+2}, v{T+4}")
        a(f"v_exp_f32 v{T+6}, v{T+6}")
        a(f"v_exp_f32 v{T+8}, v{T+8}")
        a("s_nop 0")
        a(f"v_mul_f32 v{T+5}, v{T+6}, v{V_L}")
        a(f"v_fma_f32 v{T+5}, v{T+8}, v{T+3}, v{T+5}")
        a(f"v_rcp_f32 v{T+5}, v{T+5}")
        a("s_nop 0")
        a(f"v_mul_f32 v{T+6}, v{T+6}, v{T+5}")
        a(f"v_mul_f32 v{T+8}, v{T+8}, v{T+5}")
        a(f"v_mov_b32 v{T+7}, v{T+6}")
        a(f"v_mov_b32 v{T+9}, v{T+8}")
        k = 0
        for s2 in range(2):
            for g in order:
                a(f"s_waitcnt lgkmcnt({min(15, 2*(7-k))})")
                a(f"v_mfma_f32_32x32x16_bf16 {vr(V_O+16*g,16)}, {ar(A_V+16*s2+4*g,4)}, {vr(self.pbuf(15)+4*s2,4)}, {vr(V_O+16*g,16)}")
                k += 1

    def combine(self):
        a = self.a
        T = V_T
        E = V_S
        a.c("---- combine the two key halves, publish O")
        L = V_LANE
        a(f"v_lshrrev_b32 v{T+4}, 4, v{L}")
        a(f"v_lshrrev_b32 v{T+5}, 1, v{T+4}")
        a(f"v_lshlrev_b32 v{T+5}, 4, v{T+5}")
        a(f"v_and_b32 v{T+10}, 1, v{T+4}")
        a(f"v_lshl_add_u32 v{T+5}, v{T+10}, 2, v{T+5}")
        a(f"v_and_b32 v{T+10}, 15, v{L}")
        a(f"v_lshrrev_b32 v{T+10}, 2, v{T+10}")
        a(f"v_add_u32 v{T+5}, v{T+5}, v{T+10}")
        a(f"v_mul_u32_u24 v{T+5}, 288, v{T+5}")
        a(f"v_and_b32 v{T+10}, 3, v{L}")
        a(f"v_lshl_add_u32 v{V_QA}, v{T+10}, 3, v{T+5}")
        a(f"v_add_u32 v{V_QA+1}, 0x10000, v{V_QA}")
        a(f"v_add_u32 v{V_QA+2}, 0x20000, v{V_QA}")
        for u in range(8):
            a(f"ds_write_b128 v{V_CW}, {vr(V_O+32+4*u,4)} offset:{u*1024}")
        for k in range(16):
            a(f"v_pk_mul_f32 {vr(V_O+2*k,2)}, {vr(V_O+2*k,2)}, {vr(T+6,2)}")
        a("s_waitcnt lgkmcnt(0)")
        self.bar("c2")
        self.stamp("c2")
        for u in range(8):
            a(f"ds_read_b128 {vr(V_O+32+4*u,4)}, v{V_CR} offset:{u*1024}")
        slow = a.newlabel("L_oslow"); join = a.newlabel("L_ojoin")

        def tail(aux, track):
            for u in range(8):
                a(f"s_waitcnt lgkmcnt({7-u})")
                for k in (2 * u, 2 * u + 1):
                    a(f"v_pk_fma_f32 {vr(V_O+2*k,2)}, {vr(V_O+32+2*k,2)}, {vr(T+8,2)}, {vr(V_O+2*k,2)}")
                for k in (2 * u, 2 * u + 1):
                    a(f"v_cvt_pk_bf16_f32 v{E+k}, v{V_O+2*k}, v{V_O+2*k+1}")
                if u & 1:
                    g, uu = (u >> 2), (u >> 1) & 1
                    ins = f"buffer_store_dwordx4 {vr(E+8*g+4*uu,4)}, v{V_OST}, {sr(SRD_WS,4)}, 0 offen offset:{g*1024+uu*512} {aux}"
                    if track:
                        a.vmop(ins, "ostore")
                    else:
                        a(ins)
        if self.fast:
            a(f"s_cmp_eq_u32 s{S_FAST}, 0")
            a(f"s_cbranch_scc1 {slow}")
            tail("", False)
            a(f"s_branch {join}")
            a.label(slow)
            tail("sc1", True)
            a.label(join)
        else:
            tail("sc1", True)
        self.bar("c3")
        self.stamp("ost")
        a(f"s_and_b32 s{S_T0}, s{S_IDX}, 0xfc")
        a(f"s_lshl_b32 s{S_T0}, s{S_T0}, 14")
        a(f"s_add_u32 s{S_T0}, s{S_T0}, s{S_W4K}")
        a(f"s_add_u32 s{S_T0}, s{S_T0}, {WS_O}")
        a(f"s_lshl_b32 s{S_T1}, s{S_HH}, 14")
        a(f"s_add_u32 s{S_T1}, s{S_T1}, s{S_T0}")
        a("s_waitcnt vmcnt(0)")
        self.stamp("ostack")
        self.bar("e1")
        self.stamp("e1")

    def oproj(self):
        a = self.a
        T = V_T
        WOA = V_QA
        a.c("---- O projection")
        for tp in range(4):
            a.vmop(f"buffer_load_dwordx4 {ar(A_OB+4*tp,4)}, v{V_L16}, {sr(SRD_WS,4)}, s{S_T1} offen offset:{tp*1024} sc1", f"ob{tp}")
        RING = 10
        AHEAD = 7
        seq = [(nb, t) for t in range(4) for nb in range(9)] + [(nb, t) for nb in range(9) for t in range(4, 16)]
        NOWN = 36

        def reads(k):
            nb, t = seq[k]
            out = []
            for x in range(2):
                off = wo_lds(t) + nb * 32 + x * 2304
                rs, imm = off // 65536, off % 65536
                out.append(f"ds_read_b64_tr_b16 {ar(A_W+4*(k%RING)+2*x,2)}, v{WOA+rs} offset:{imm}")
            return out
        issued = 0

        def issue_upto(k, limit):
            nonlocal issued
            while issued <= min(k, limit):
                for s_ in reads(issued):
                    a(s_)
                issued += 1
        issue_upto(AHEAD - 1, NOWN - 1)
        a(f"s_lshl_b32 s{S_T3}, s{S_B}, 2")
        a(f"s_add_u32 s{S_T3}, s{S_T3}, s{S_HH}")
        a(f"s_lshl_b32 s{S_T3}, s{S_T3}, 3")
        a(f"s_add_u32 s{S_T3}, s{S_T3}, s{S_J}")
        a(f"s_mul_i32 s{S_T3}, s{S_T3}, {PSTRIDE}")
        a(f"s_mul_i32 s{S_T2}, s{S_WAVE}, 5120")
        a(f"s_add_u32 s{S_T3}, s{S_T3}, s{S_T2}")
        a(f"s_add_u32 s{S_T3}, s{S_T3}, {WS_P}")
        a(f"v_mov_b32 v{V_E+18}, 0")
        a(f"v_mov_b32 v{V_E+19}, 0")
        seen_t = set()
        NA = self.opts.get("na", 14)
        for k, (nb, t) in enumerate(seq):
            if k == NOWN:
                issue_upto(k + AHEAD - 1, len(seq) - 1)
            if k == NA:
                self.stamp("own")
                self.bar("e2")
                self.stamp("ex1")
                for i in range(1, 4):
                    a(f"s_add_u32 s{S_T1}, s{S_HH}, {i}")
                    a(f"s_and_b32 s{S_T1}, s{S_T1}, 3")
                    a(f"s_lshl_b32 s{S_T1}, s{S_T1}, 14")
                    a(f"s_add_u32 s{S_T1}, s{S_T1}, s{S_T0}")
                    for tp in range(4):
                        tt = 4 * i + tp
                        a.vmop(f"buffer_load_dwordx4 {ar(A_OB+4*tt,4)}, v{V_L16}, {sr(SRD_WS,4)}, s{S_T1} offen offset:{tp*1024} sc1", f"ob{tt}")
            if t not in seen_t:
                a.wait_tag(f"ob{t}")
                seen_t.add(t)
            if k == NOWN + 12:
                self.stamp("op16")
            if k % 2 == 0 or k == NOWN:
                last = min(k + 1, issued - 1) if not (k < NOWN and k + 1 >= NOWN) else k
                outstanding_after = issued - 1 - last
                a(f"s_waitcnt lgkmcnt({min(2*outstanding_after, 15)})")
            srcc = "0" if k < 9 else vr(V_ACC+4*nb,4)
            a(f"v_mfma_f32_16x16x32_bf16 {vr(V_ACC+4*nb,4)}, {ar(A_W+4*(k%RING),4)}, {ar(A_OB+4*t,4)}, {srcc}")
            lim = NOWN - 1 if k < NA else len(seq) - 1
            if k >= NA and k < NOWN:
                lim = len(seq) - 1
            issue_upto(k + AHEAD, lim)
            if k >= NOWN and t == 12 and nb >= 1:
                pb = nb - 1
                p, h = pb // 2, pb % 2
                a(f"v_cvt_pk_bf16_f32 v{V_E+4*p+2*h}, v{V_ACC+4*pb}, v{V_ACC+4*pb+1}")
                a(f"v_cvt_pk_bf16_f32 v{V_E+4*p+2*h+1}, v{V_ACC+4*pb+2}, v{V_ACC+4*pb+3}")
                if h == 1:
                    a.vmop(f"buffer_store_dwordx4 {vr(V_E+4*p,4)}, v{V_L16}, {sr(SRD_WS,4)}, s{S_T3} offen offset:{p*1024} sc1", "pstore")
        a("s_nop 7")
        a(f"v_cvt_pk_bf16_f32 v{V_E+16}, v{V_ACC+32}, v{V_ACC+33}")
        a(f"v_cvt_pk_bf16_f32 v{V_E+17}, v{V_ACC+34}, v{V_ACC+35}")
        a(f"s_add_u32 s{S_T3}, s{S_T3}, 4096")
        a.vmop(f"buffer_store_dwordx4 {vr(V_E+16,4)}, v{V_L16}, {sr(SRD_WS,4)}, s{S_T3} offen sc1", "pstore")
        self.stamp("oproj")
        a("s_waitcnt vmcnt(0)")
        self.stamp("pack")
        self.bar("f1")
        self.stamp("f1")
        self.bar("f2")

    def final(self, endlab="L_end"):
        a = self.a
        T = V_T
        R = V_S
        acc = V_O
        a.c("---- final reduce")
        a(f"v_cmp_gt_u32 vcc, 160, v0")
        a(f"s_and_saveexec_b64 {sr(S_SAVE,2)}, vcc")
        a(f"s_cbranch_execz {endlab}")
        a(f"s_mul_i32 s{S_T0}, s{S_J}, 160")
        a(f"v_add_u32 v{T}, s{S_T0}, v0")
        a(f"v_lshlrev_b32 v{T+1}, 4, v{T}")
        a(f"s_lshl_b32 s{S_T0}, s{S_B}, 2")
        a(f"s_add_u32 s{S_T0}, s{S_T0}, s{S_HH}")
        a(f"s_mul_i32 s{S_T0}, s{S_T0}, {8*PSTRIDE}")
        a(f"s_add_u32 s{S_T0}, s{S_T0}, {WS_P}")
        for jj in range(8):
            a(f"buffer_load_dwordx4 {vr(R+4*jj,4)}, v{T+1}, {sr(SRD_WS,4)}, s{S_T0} offen sc1")
            if jj < 7:
                a(f"s_add_u32 s{S_T0}, s{S_T0}, {PSTRIDE}")
        a(f"v_mul_u32_u24 v{T+2}, 3277, v{T}")
        a(f"v_lshrrev_b32 v{T+2}, 20, v{T+2}")
        a(f"v_mul_u32_u24 v{T+3}, 320, v{T+2}")
        a(f"v_sub_u32 v{T+3}, v{T}, v{T+3}")
        a(f"v_lshrrev_b32 v{T+4}, 6, v{T+3}")
        a(f"v_and_b32 v{T+5}, 63, v{T}")
        a(f"v_and_b32 v{T+6}, 15, v{T+5}")
        a(f"v_lshl_add_u32 v{T+6}, v{T+2}, 4, v{T+6}")
        a(f"v_mul_u32_u24 v{T+6}, 1152, v{T+6}")
        a(f"v_lshrrev_b32 v{T+7}, 4, v{T+5}")
        a(f"v_lshlrev_b32 v{T+7}, 3, v{T+7}")
        a(f"v_lshl_add_u32 v{T+7}, v{T+4}, 6, v{T+7}")
        a(f"v_add_u32 v{T+6}, v{T+6}, v{T+7}")
        a(f"s_mul_i32 s{S_T0}, s{S_B}, 73728")
        a(f"s_mul_i32 s{S_T1}, s{S_HH}, 288")
        a(f"s_add_u32 s{S_T0}, s{S_T0}, s{S_T1}")
        a(f"s_mov_b32 s{S_T1}, 0xffff0000")
        for jj in range(8):
            a(f"s_waitcnt vmcnt({7-jj})")
            for d in range(4):
                src = R + 4 * jj + d
                if jj == 0:
                    a(f"v_lshlrev_b32 v{acc+2*d}, 16, v{src}")
                    a(f"v_and_b32 v{acc+2*d+1}, s{S_T1}, v{src}")
                else:
                    a(f"v_lshlrev_b32 v{T+8}, 16, v{src}")
                    a(f"v_and_b32 v{T+9}, s{S_T1}, v{src}")
                    a(f"v_add_f32 v{acc+2*d}, v{acc+2*d}, v{T+8}")
                    a(f"v_add_f32 v{acc+2*d+1}, v{acc+2*d+1}, v{T+9}")
        for d in range(4):
            a(f"v_cvt_pk_bf16_f32 v{acc+8+d}, v{acc+2*d}, v{acc+2*d+1}")
        a(f"buffer_store_dwordx2 {vr(acc+8,2)}, v{T+6}, {sr(SRD_OUT,4)}, s{S_T0} offen")
        a(f"v_cmp_gt_u32 vcc, 4, v{T+4}")
        a(f"s_and_b64 exec, exec, vcc")
        a(f"s_cbranch_execz {endlab}")
        a(f"buffer_store_dwordx2 {vr(acc+10,2)}, v{T+6}, {sr(SRD_OUT,4)}, s{S_T0} offen offset:32")

    def write_stamps(self, a, who, T):
        self.stamp("end", who)
        a("s_mov_b64 exec, -1")
        a("s_waitcnt lgkmcnt(0)")
        if self.ts == "probe":
            if who == "l":
                return
            k = self.stampnames["c"].index(self.opts["probe"])
            e = self.stampnames["c"].index("end")
            a(f"s_sub_u32 s{S_T0}, s{S_TS+2*k}, s{S_TS}")
            a(f"s_mul_i32 s{S_T0}, s{S_T0}, {self.opts.get('mult',1)}")
            a(f"s_add_u32 s{S_T0}, s{S_T0}, s{S_TS+2*e}")
            lab = a.newlabel("L_spin")
            a.label(lab)
            a(f"s_memrealtime s[98:99]")
            a("s_waitcnt lgkmcnt(0)")
            a(f"s_sub_u32 s{S_T1}, s98, s{S_T0}")
            a(f"s_cmp_lt_i32 s{S_T1}, 0")
            a(f"s_cbranch_scc1 {lab}")
            return
        if self.ts == "dbg":
            if who == "l":
                return
            lab = a.newlabel("L_nots")
            a(f"s_cmp_lg_u32 s{S_WAVE}, 0")
            a(f"s_cbranch_scc1 {lab}")
            a(f"s_mov_b32 s{SRD_DBG}, s{S_DBG}")
            a(f"s_mov_b32 s{SRD_DBG+1}, s{S_DBG+1}")
            a(f"s_mov_b32 s{SRD_DBG+2}, 256")
            a(f"s_mov_b32 s{SRD_DBG+3}, 0x20000")
            a("s_mov_b64 exec, 1")
            for k, st in enumerate(self.dbgsel):
                if k == 0:
                    a(f"s_not_b32 s{S_T0}, s{S_TS+2*st}")
                    a(f"v_mov_b32 v{T+1}, s{S_T0}")
                else:
                    a(f"v_mov_b32 v{T+1}, s{S_TS+2*st}")
                a(f"v_mov_b32 v{T}, {32+4*k}")
                a(f"buffer_atomic_umax v{T+1}, v{T}, {sr(SRD_DBG,4)}, 0 offen sc1")
                a("s_nop 1")
            a.label(lab)
            return
        a(f"s_mul_i32 s{S_T0}, s2, {NW}")
        a(f"s_add_u32 s{S_T0}, s{S_T0}, s{S_WAVE}")
        a(f"s_lshl_b32 s{S_T0}, s{S_T0}, 6")
        a(f"s_add_u32 s{S_T0}, s{S_T0}, {WS_TS}")
        a(f"v_mov_b32 v{T}, s{S_T0}")
        a("s_mov_b64 exec, 1")
        for k in range(self.nts[who]):
            a(f"v_mov_b32 v{T+1}, s{S_TS+2*k}")
            a(f"buffer_store_dword v{T+1}, v{T}, {sr(SRD_WS,4)}, 0 offen offset:{4*k}")
            a("s_nop 1")

    def l_poll(self, srd, vaddr, nl, want, cmp="ge"):
        a = self.l
        T = L_T
        lab = a.newlabel("L_poll")
        done = a.newlabel("L_pdone")
        a(f"s_mov_b64 exec, {(1<<nl)-1:#x}")
        a(f"s_mov_b32 s{S_SPIN}, 0")
        a.label(lab)
        a(f"buffer_load_dword v{T+2}, v{vaddr}, {sr(srd,4)}, 0 offen sc1")
        a("s_waitcnt vmcnt(0)")
        if cmp == "bit":
            a(f"v_and_b32 v{T+2}, 1, v{T+2}")
        a(f"v_cmp_le_u32 vcc, {want}, v{T+2}")
        a(f"s_add_u32 s{S_SPIN}, s{S_SPIN}, 1")
        a("s_nop 2")
        a("s_cmp_eq_u64 vcc, exec")
        a(f"s_cbranch_scc1 {done}")
        a(f"s_cmp_lt_u32 s{S_SPIN}, 0x8000")
        a(f"s_cbranch_scc1 {lab}")
        a.label(done)
        a("s_mov_b64 exec, -1")

    def l_signal(self, vflag, fastable=False):
        a = self.l
        T = L_T
        a(f"s_or_b32 s{S_T0}, s{S_XCC}, 1")
        a(f"v_mov_b32 v{T+1}, s{S_T0}")
        a("s_mov_b64 exec, 1")
        if fastable and self.fast:
            slow = a.newlabel("L_fs"); join = a.newlabel("L_fj")
            a(f"s_cmp_eq_u32 s{S_FAST}, 0")
            a(f"s_cbranch_scc1 {slow}")
            a(f"buffer_store_dword v{T+1}, v{vflag}, {sr(SRD_WS,4)}, 0 offen")
            a(f"s_branch {join}")
            a.label(slow)
            a(f"buffer_store_dword v{T+1}, v{vflag}, {sr(SRD_WS,4)}, 0 offen sc1")
            a.label(join)
        else:
            a(f"buffer_store_dword v{T+1}, v{vflag}, {sr(SRD_WS,4)}, 0 offen sc1")
        a("s_mov_b64 exec, -1")

    def loader(self):
        a = self.l
        T = L_T
        L = V_LANE
        a.label("L_loader")
        if self.ts:
            self.nts["l"] = 1 if "start" in self.stampset else 0
            if "start" in self.stampset:
                self.stampnames["l"].append("start")
        self.dma_voffsets(a, T, L_KOFF, L_VOFF, L_WQOFF, L_XOFF)
        a("s_waitcnt lgkmcnt(0)")
        self.srds(a)
        self.issue(a, self.q_item_ops(0), "q0")
        a(f"s_getreg_b32 s{S_XCC}, hwreg(HW_REG_XCC_ID)")
        a(f"s_and_b32 s{S_XCC}, s{S_XCC}, 0xff")
        a(f"s_add_u32 s{S_XCC}, s{S_XCC}, 1")
        a(f"s_lshl_b32 s{S_XCC}, s{S_XCC}, 8")
        self.issue(a, self.q_item_ops(1), "q1")
        self.stamp("ldma0", "l")
        a(f"s_mul_i32 s{S_T0}, s{S_J}, 589824")
        a(f"s_mul_i32 s{S_T1}, s{S_HH}, 288")
        a(f"s_add_u32 s{S_T0}, s{S_T0}, s{S_T1}")
        a(f"s_add_u32 s{SRD_WO}, s{S_WO}, s{S_T0}")
        a(f"s_addc_u32 s{SRD_WO+1}, s{S_WO+1}, 0")
        a(f"s_sub_u32 s{SRD_WO+2}, 4718592, s{S_T0}")
        a(f"s_mov_b32 s{SRD_WO+3}, 0x20000")
        a(f"s_mov_b32 s{SRD_DBG}, s{S_DBG}")
        a(f"s_mov_b32 s{SRD_DBG+1}, s{S_DBG+1}")
        a(f"s_mov_b32 s{SRD_DBG+2}, 256")
        a(f"s_mov_b32 s{SRD_DBG+3}, 0x20000")
        for u in range(9):
            a(f"v_add_u32 v{T}, {64*u}, v{L}")
            a(f"v_mul_u32_u24 v{T+1}, 3641, v{T}")
            a(f"v_lshrrev_b32 v{T+1}, 16, v{T+1}")
            a(f"v_mul_u32_u24 v{T+2}, 18, v{T+1}")
            a(f"v_sub_u32 v{T+2}, v{T}, v{T+2}")
            a(f"v_mul_u32_u24 v{T+1}, 1152, v{T+1}")
            a(f"v_lshl_add_u32 v{T+1}, v{T+2}, 4, v{T+1}")
            a(f"v_subrev_u32 v{L_WOOFF+u}, {1024*(u%4)}, v{T+1}")
        a(f"s_lshl_b32 s{S_T0}, s{S_IDX}, 7")
        a(f"v_mov_b32 v{T+4}, s{S_T0}")
        a(f"v_add_u32 v{T+5}, {WS_FLAG2}, v{T+4}")
        a(f"s_and_b32 s{S_T0}, s{S_IDX}, 0xfc")
        a(f"v_add_u32 v{T+6}, s{S_T0}, v{L}")
        a(f"v_lshlrev_b32 v{T+6}, 7, v{T+6}")
        a(f"s_lshl_b32 s{S_T0}, s{S_B}, 5")
        a(f"s_add_u32 s{S_T0}, s{S_T0}, s{S_HH}")
        a(f"v_lshlrev_b32 v{T+7}, 2, v{L}")
        a(f"v_add_u32 v{T+7}, s{S_T0}, v{T+7}")
        a(f"v_lshlrev_b32 v{T+7}, 7, v{T+7}")
        a(f"v_add_u32 v{T+7}, {WS_FLAG2}, v{T+7}")
        a(f"s_lshl_b32 s{S_T0}, s{S_B}, 2")
        a(f"v_mov_b32 v{T+8}, s{S_T0}")
        nxt = self.early
        for n in range(9):
            a.wait_tag(f"q{n}")
            self.stamp(f"lq{n}", "l")
            a.barrier(f"q{n}")
            if n + 2 <= 8:
                self.issue(a, self.q_item_ops(n + 2), f"q{n+2}")
            if n == 6:
                while nxt <= self.opts.get("first", 2):
                    self.issue(a, self.unit_ops(nxt, "l"), f"u{nxt}"); nxt += 1
        a.barrier("x1")
        a.barrier("x2")
        wo_next = 0
        for i in range(17):
            target = 2 * i + 1 if i <= 13 else {14: 28, 15: 29, 16: 31}[i]
            a.wait_tag(f"u{target}")
            self.stamp(f"law{i}", "l")
            a.barrier(f"a{i}")
            lim = min(31, 2 * i + 1 + self.LA, 2 * i + 9 if i >= 1 else 9)
            while nxt <= lim:
                self.issue(a, self.unit_ops(nxt, "l"), f"u{nxt}"); nxt += 1
            if i == 6:
                a.vmop(f"buffer_load_dword v{L_RDY}, v{T+8}, {sr(SRD_DBG,4)}, 0 offen sc1", "rdy")
            if i == 8:
                a.wait_tag("rdy")
                a(f"v_readfirstlane_b32 s{S_RDYOK}, v{L_RDY}")
                lab = a.newlabel("L_tag")
                a("s_nop 3")
                a(f"s_cmp_eq_u32 s{S_RDYOK}, 0")
                a(f"s_cbranch_scc1 {lab}")
                a(f"v_mov_b32 v{T+1}, s{S_XCC}")
                a("s_mov_b64 exec, 1")
                a(f"buffer_store_dword v{T+1}, v{T+4}, {sr(SRD_WS,4)}, 0 offen sc1")
                a("s_mov_b64 exec, -1")
                a.label(lab)
            if i == 11:
                a.vmop(f"buffer_load_dword v{L_RDY+1}, v{T+6}, {sr(SRD_WS,4)}, 0 offen sc1", "xcc")
            if i == 13:
                a.wait_tag("xcc")
                a(f"v_and_b32 v{L_RDY+1}, 0xffffff00, v{L_RDY+1}")
                a(f"v_cmp_eq_u32 vcc, s{S_XCC}, v{L_RDY+1}")
                a("s_nop 1")
                a(f"s_and_b32 s{S_T0}, vcc_lo, 0xf")
                a(f"s_cmp_eq_u32 s{S_T0}, 0xf")
                a(f"s_cselect_b32 s{S_FAST}, 1, 0")
                a(f"s_cmp_lg_u32 s{S_RDYOK}, 0")
                a(f"s_cselect_b32 s{S_FAST}, s{S_FAST}, 0")
                if not self.fast:
                    a(f"s_mov_b32 s{S_FAST}, 0")
                a(f"v_mov_b32 v{T+1}, s{S_FAST}")
                a(f"v_mov_b32 v{T+2}, {FAST_OFF}")
                a(f"ds_write_b32 v{T+2}, v{T+1}")
                a("s_waitcnt lgkmcnt(0)")
            avail = {14: 2, 15: 4, 16: 7}.get(i, -1)
            if nxt > 31:
                while wo_next <= avail:
                    self.issue(a, self.wo_kstep_ops(wo_next), f"wo{wo_next}"); wo_next += 1
            if i == 15:
                a.wait_tag("u30")
                a.barrier("a15v")
        a.barrier("c2")
        while wo_next <= 11:
            self.issue(a, self.wo_kstep_ops(wo_next), f"wo{wo_next}"); wo_next += 1
        rok = a.newlabel("L_rok")
        a(f"s_cmp_lg_u32 s{S_RDYOK}, 0")
        a(f"s_cbranch_scc1 {rok}")
        self.l_poll(SRD_DBG, T + 8, 1, 1, cmp="ge")
        a.label(rok)
        a.barrier("c3")
        while wo_next <= 15:
            self.issue(a, self.wo_kstep_ops(wo_next), f"wo{wo_next}"); wo_next += 1
        a.wait_tag("wo11")
        self.stamp("lwo", "l")
        a.barrier("e1")
        self.l_signal(T + 4, fastable=True)
        self.l_poll(SRD_WS, T + 6, 4, 1, cmp="bit")
        a.barrier("e2")
        a.barrier("f1")
        self.l_signal(T + 5)
        self.l_poll(SRD_WS, T + 7, 8, 1, cmp="bit")
        a.barrier("f2")
        if self.ts:
            self.write_stamps(a, "l", T)
        a("s_endpgm")

    def build(self):
        a = self.a
        self.prologue()
        self.stamp("pro")
        for n in range(9):
            self.q_step(n)
            self.stamp(f"q{n}")
        self.stamp("qend")
        self.qx_step()
        self.stamp("qx")
        for i in range(17):
            self.att_step(i)
            self.stamp(f"a{i}")
        self.stamp("att")
        self.combine()
        self.oproj()
        self.stamp("ex2")
        if self.ts:
            self.final("L_fin")
            a.label("L_fin")
            self.write_stamps(a, "c", V_T)
        else:
            self.final()
        a.label("L_end")
        a("s_endpgm")
        self.loader()
        assert self.a.bars == self.l.bars, (self.a.bars, self.l.bars)
        hdr = [
            "; fused GQA block: Q projection + attention + output projection (generated)",
            f"; @launch grid=(256,1,1) block=({64*NW},1,1) lds={LDS_BYTES}",
            '.amdgcn_target "amdgcn-amd-amdhsa--gfx950"',
            ".text",
            f".globl {KNAME}",
            ".p2align 8",
            f".type {KNAME},@function",
            f"{KNAME}:",
        ]
        ftr = [
            "L_codeend:",
            "    s_endpgm",
            '.section .rodata,"a"',
            ".p2align 6",
            f".amdhsa_kernel {KNAME}",
            "  .amdhsa_next_free_vgpr 256",
            "  .amdhsa_next_free_sgpr 102",
            f"  .amdhsa_accum_offset {ACC_OFF}",
            "  .amdhsa_group_segment_fixed_size 0",
            "  .amdhsa_kernarg_size 64",
            "  .amdhsa_user_sgpr_count 2",
            "  .amdhsa_user_sgpr_kernarg_segment_ptr 1",
            "  .amdhsa_system_sgpr_workgroup_id_x 1",
            ".end_amdhsa_kernel",
        ]
        body = a.text().replace("    @@LOADER@@\n", self.l.text())
        return "\n".join(hdr) + "\n" + body + "\n".join(ftr) + "\n"


if __name__ == "__main__":
    import argparse
    p = argparse.ArgumentParser()
    p.add_argument("-o", default="standalone__gqa_block_cached__near_ridge.s")
    p.add_argument("--ts", default=False)
    p.add_argument("--kvaux", default="nt")
    p.add_argument("--stamps", default=None)
    p.add_argument("--notouch", action="store_true")
    p.add_argument("--swap", action="store_true")
    p.add_argument("--la", type=int, default=5)
    p.add_argument("--early", type=int, default=0)
    p.add_argument("--nofast", action="store_true")
    p.add_argument("--opt", action="append", default=[])
    p.add_argument("--probe", default=None)
    p.add_argument("--mult", type=int, default=1)
    args = p.parse_args()
    if args.probe:
        args.ts = "probe"
        args.stamps = "start," + args.probe + ",end"
    g = Gen(ts=args.ts, opts=dict({"probe": args.probe, "mult": args.mult}, **{kv.split("=")[0]: int(kv.split("=")[1]) for kv in args.opt}), kvaux=args.kvaux, stampset=args.stamps.split(",") if args.stamps else None,
            touch=not args.notouch, LA=args.la, swap=args.swap, early=args.early, fast=not args.nofast)
    open(args.o, "w").write(g.build())
    print("written", args.o, len(g.a.L) + len(g.l.L), "lines", g.stampnames)
```

```python
import sys, math, struct

KNAME = "standalone__gqa_block_cached__near_ridge_kernel"

UNIT = 16384
LDS_BYTES = 163840
QSLOT = [0, 24576, 49152]
QX_OFF = 65536
SCR_OFF = 65536
FAST2_OFF = 162820
FAST_OFF = 162816
STATS_OFF = 160768
WS_FLAG1 = 0
WS_FLAG2 = 32768
WS_O = 0x100000
WS_P = 0x800000
WS_TS = 0x2000000
PSTRIDE = 20480
C_SCALE = math.log2(math.e) / math.sqrt(128.0)
T_RESCALE = 8.0
NW = 5


def f32bits(x):
    return struct.unpack("<I", struct.pack("<f", x))[0]


def phys(u):
    return (5 + u) % 10


def kunit(i):
    return 0 if i == 0 else 2 * i - 1


def vunit(i):
    return 31 if i == 15 else 2 * i + 2


def unit_desc(u):
    if u == 0:
        return ("K", 0)
    if u == 31:
        return ("V", 15)
    if u & 1:
        return ("K", (u + 1) // 2)
    return ("V", (u - 2) // 2)


def wo_lds(t):
    return 114688 + 9216 * t if t < 5 else 9216 * (t - 5)


class Asm:
    def __init__(self, pfx):
        self.L = []
        self.vm = []
        self.nlabel = 0
        self.pfx = pfx
        self.nbar = 0

    def __call__(self, s):
        self.L.append("    " + s)

    def label(self, name):
        self.L.append(name + ":")

    def c(self, s):
        self.L.append("    ; " + s)

    def newlabel(self, p="L"):
        self.nlabel += 1
        return f"{p}_{self.pfx}{self.nlabel}"

    def vmop(self, s, tag):
        self(s)
        self.vm.append(tag)

    def wait_tag(self, tag):
        idx = [i for i, t in enumerate(self.vm) if t == tag]
        assert idx, tag
        n = min(len(self.vm) - 1 - idx[-1], 63)
        self(f"s_waitcnt vmcnt({n})")

    def barrier(self, name):
        self.nbar += 1
        self.bars = getattr(self, "bars", []) + [name]
        self(f"s_barrier        ; {name}")

    def text(self):
        return "\n".join(self.L) + "\n"


S_X, S_K, S_V, S_WQ, S_WO, S_OUT, S_DBG, S_WS = 4, 6, 8, 10, 12, 14, 16, 18
SRD_X, SRD_WQ, SRD_K, SRD_V, SRD_WO, SRD_WS, SRD_OUT, SRD_DBG = 20, 24, 28, 32, 36, 40, 44, 48
S_WAVE = 52
S_B = 53
S_J = 54
S_HH = 55
S_IDX = 56
S_T0, S_T1, S_T3 = 57, 58, 59
S_T2 = 64
S_SWAP = 61
S_W4K = 63
S_C = 66
S_THR = 67
S_SPIN = 68
S_FAST = 62
S_RDYOK = 71
S_XCC = 65
S_QB = 69
S_KS = 70
S_SLOT = 71
S_SAVE = 72
S_PC = 74
S_TS = 76

ACC_OFF = 152
V_LANE = 1
V_KA = 2
V_VA = 10
V_L16 = 14
V_TMAX = 15
V_MC = 16
V_L = 17
V_T = 18
V_QA = 30
V_QB = 31
V_CST, V_CSR, V_CW, V_CR, V_OST = 35, 36, 37, 38, 39
V_P = 40
V_P2 = 144
S_PEND = 60
S_FAST2 = 61
V_S = 48
V_O = 80
V_DK = 30
V_ACC = 80
V_E = 116
V_WOA = 136
A_Q = 0
A_K = 32
A_V = 64
A_OB = 0
A_W = 64
V_EKOFF = 80
V_EVOFF = 84
V_PFD = 88

L_KOFF = 2
L_VOFF = 6
L_WQOFF = 7
L_XOFF = 8
L_WOOFF = 10
L_T = 20
L_RDY = 32


def vr(b, n=1):
    return f"v{b}" if n == 1 else f"v[{b}:{b+n-1}]"


def ar(b, n=1):
    return f"a{b}" if n == 1 else f"a[{b}:{b+n-1}]"


def sr(b, n=1):
    return f"s{b}" if n == 1 else f"s[{b}:{b+n-1}]"


class Gen:
    def __init__(self, ts=False, kvaux="", stampset=None, touch=True, LA=5, swap=True, early=3, fast=True, opts=None):
        self.a = Asm("c")
        self.l = Asm("l")
        self.ts = ts
        self.nts = {"c": 0, "l": 0}
        self.kvaux = kvaux
        self.touch = touch
        self.LA = LA
        self.swap = swap
        self.fast = fast
        self.dpoll = bool((opts or {}).get('dpoll', 0))
        assert not swap, 'S_SWAP is shared with S_FAST2'
        self.waux = 'nt' if (opts or {}).get('wnt', 0) else ''
        self.early = early
        self.opts = opts or {}
        self.dbgsel = [0, 1, 2, 3, 4, 5, 6, 8]
        self.stampset = stampset or ["start", "qend", "qx", "att", "comb", "ex1", "oproj", "ex2", "end"]
        self.stampnames = {"c": [], "l": []}

    def stamp(self, name="end", who="c"):
        if not self.ts or name not in self.stampset:
            return
        a = self.a if who == "c" else self.l
        self.stampnames[who].append(name)
        r = S_TS + 2 * self.nts[who]
        assert r + 1 <= 101
        if self.opts.get("cyc") and name != "start" and name != "end":
            a(f"s_memtime {sr(r,2)}")
        else:
            a(f"s_memrealtime {sr(r,2)}")
        self.nts[who] += 1

    def bar(self, name):
        self.a.barrier(name)

    def q_item_ops(self, n):
        base = QSLOT[n % 3]
        g = []
        for j in range(16):
            pre = []
            if j % 4 == 0:
                pre.append(f"s_mov_b32 m0, {base + (j//4)*4096}")
            pre.append(f"s_mov_b32 s{S_T3}, {n*64*8192 + j*32768 - (j%4)*1024}")
            pre.append(f"buffer_load_dwordx4 v{L_WQOFF}, {sr(SRD_WQ,4)}, s{S_T3} offen offset:{(j%4)*1024} {self.waux} lds")
            g.append(pre)
        for j in range(8):
            pre = []
            if j % 4 == 0:
                pre.append(f"s_mov_b32 m0, {base + 16384 + (j//4)*4096}")
            pre.append(f"s_mov_b32 s{S_T3}, {128*n + j*9216 - (j%4)*1024}")
            pre.append(f"buffer_load_dwordx4 v{L_XOFF+(j&1)}, {sr(SRD_X,4)}, s{S_T3} offen offset:{(j%4)*1024} lds")
            g.append(pre)
        return g

    def unit_ops(self, u, who):
        kind, i = unit_desc(u)
        base = phys(u) * UNIT
        srd = SRD_K if kind == "K" else SRD_V
        aux = self.kvaux
        g = []
        if who == "l":
            for j in range(16):
                pre = []
                if j == 0 and self.swap:
                    pre.append(f"s_xor_b32 s{S_T2}, s{S_SWAP}, {i*16384}")
                if j % 4 == 0:
                    pre.append(f"s_mov_b32 m0, {base + (j//4)*4096}")
                    if self.swap:
                        pre.append(f"s_add_u32 s{S_T3}, s{S_T2}, {(j//4)*4096}")
                    else:
                        pre.append(f"s_mov_b32 s{S_T3}, {i*16384 + (j//4)*4096}")
                voff = L_KOFF + (j & 3) if kind == "K" else L_VOFF
                pre.append(f"buffer_load_dwordx4 v{voff}, {sr(srd,4)}, s{S_T3} offen offset:{(j%4)*1024} {aux} lds")
                g.append(pre)
        else:
            for jj in range(4):
                pre = []
                if jj == 0:
                    pre.append(f"s_add_u32 m0, s{S_W4K}, {base}")
                    if self.swap:
                        pre.append(f"s_xor_b32 s{S_T3}, s{S_SWAP}, {i*16384}")
                        pre.append(f"s_add_u32 s{S_T3}, s{S_T3}, s{S_W4K}")
                    else:
                        pre.append(f"s_add_u32 s{S_T3}, s{S_W4K}, {i*16384}")
                voff = V_EKOFF + jj if kind == "K" else V_EVOFF
                pre.append(f"buffer_load_dwordx4 v{voff}, {sr(srd,4)}, s{S_T3} offen offset:{jj*1024} {aux} lds")
                g.append(pre)
        return g

    def wo_kstep_ops(self, t):
        g = []
        base = wo_lds(t)
        for u in range(9):
            pre = []
            if u == 0:
                pre.append(f"s_add_u32 s{S_T3}, s{S_HH}, {t//4}")
                pre.append(f"s_and_b32 s{S_T3}, s{S_T3}, 3")
                pre.append(f"s_mul_i32 s{S_T3}, s{S_T3}, {4*36864}")
                if t % 4:
                    pre.append(f"s_add_u32 s{S_T3}, s{S_T3}, {(t%4)*36864}")
            if u % 4 == 0:
                pre.append(f"s_mov_b32 m0, {base + u*1024}")
                pre.append("s_nop 0")
            pre.append(f"buffer_load_dwordx4 v{L_WOOFF+u}, {sr(SRD_WO,4)}, s{S_T3} offen offset:{(u%4)*1024} {self.waux} lds")
            g.append(pre)
        return g

    @staticmethod
    def issue(a, groups, tag):
        for grp in groups:
            for s in grp[:-1]:
                a(s)
            a.vmop(grp[-1], tag)

    def dma_voffsets(self, a, T, koff, voff, wqoff=None, xoff=None):
        L = V_LANE
        a(f"v_lshrrev_b32 v{T}, 4, v{L}")
        a(f"v_and_b32 v{T+1}, 15, v{L}")
        a(f"v_lshlrev_b32 v{T+2}, 2, v{T}")
        a(f"v_xor_b32 v{T+2}, v{T+2}, v{T+1}")
        a(f"v_lshlrev_b32 v{T+2}, 4, v{T+2}")
        a(f"v_lshl_add_u32 v{voff}, v{T}, 8, v{T+2}")
        if wqoff is not None:
            a(f"v_lshl_add_u32 v{wqoff}, v{T}, 13, v{T+2}")
            a(f"v_lshrrev_b32 v{T+3}, 3, v{L}")
            a(f"v_and_b32 v{T+4}, 7, v{L}")
            a(f"v_mul_u32_u24 v{T+3}, 1152, v{T+3}")
            for e in range(2):
                a(f"v_add_u32 v{T+2}, {4*e}, v{T}")
                a(f"v_xor_b32 v{T+2}, v{T+2}, v{T+4}")
                a(f"v_lshl_add_u32 v{xoff+e}, v{T+2}, 4, v{T+3}")
        for jj in range(4):
            a(f"v_add_u32 v{T+2}, {4*jj}, v{T}")
            a(f"v_xor_b32 v{T+2}, v{T+2}, v{T+1}")
            a(f"v_lshlrev_b32 v{T+2}, 4, v{T+2}")
            a(f"v_lshl_add_u32 v{koff+jj}, v{T}, 8, v{T+2}")

    def prologue(self):
        a = self.a
        L, T = V_LANE, V_T
        a("s_cmp_ge_u32 s2, 256")
        a("s_cbranch_scc1 L_end")
        self.stamp("start")
        a("s_load_dwordx16 s[4:19], s[0:1], 0")
        a(f"s_getpc_b64 {sr(S_PC,2)}")
        a.label("L_pcbase")
        a(f"v_lshrrev_b32 v{T+1}, 6, v0")
        a(f"v_and_b32 v{L}, 63, v0")
        a(f"v_readfirstlane_b32 s{S_WAVE}, v{T+1}")
        a(f"s_and_b32 s{S_J}, s2, 7")
        a(f"s_lshr_b32 s{S_SLOT}, s2, 3")
        a(f"s_lshr_b32 s{S_B}, s{S_SLOT}, 2")
        a(f"s_and_b32 s{S_HH}, s{S_SLOT}, 3")
        a(f"s_lshl_b32 s{S_IDX}, s{S_B}, 5")
        a(f"s_lshl_b32 s{S_T1}, s{S_J}, 2")
        a(f"s_add_u32 s{S_IDX}, s{S_IDX}, s{S_T1}")
        a(f"s_add_u32 s{S_IDX}, s{S_IDX}, s{S_HH}")
        a(f"s_and_b32 s{S_SWAP}, s{S_HH}, 1")
        a(f"s_lshl_b32 s{S_SWAP}, s{S_SWAP}, 14")
        a(f"s_mul_i32 s{S_T0}, s{S_B}, 73728")
        a(f"s_lshl_b32 s{S_T1}, s{S_J}, 2")
        a(f"s_add_u32 s{S_T1}, s{S_T1}, s{S_HH}")
        a(f"s_lshl_b32 s{S_T1}, s{S_T1}, 8")
        a(f"s_lshl_b32 s{S_T2}, s{S_B}, 4")
        a(f"s_lshl_b32 s{S_T3}, s{S_J}, 1")
        a(f"s_add_u32 s{S_T2}, s{S_T2}, s{S_T3}")
        a(f"s_lshr_b32 s{S_T3}, s{S_HH}, 1")
        a(f"s_add_u32 s{S_T2}, s{S_T2}, s{S_T3}")
        a(f"s_lshl_b32 s{S_T2}, s{S_T2}, 18")
        a(f"s_mov_b32 s{SRD_X+2}, 73728")
        a(f"s_mov_b32 s{SRD_X+3}, 0x20000")
        a(f"s_sub_u32 s{SRD_WQ+2}, 4718592, s{S_T1}")
        a(f"s_mov_b32 s{SRD_WQ+3}, 0x20000")
        a(f"s_mov_b32 s{SRD_K+2}, 262144")
        a(f"s_mov_b32 s{SRD_K+3}, 0x20000")
        a(f"s_mov_b32 s{SRD_V+2}, 262144")
        a(f"s_mov_b32 s{SRD_V+3}, 0x20000")
        a(f"s_mov_b32 s{SRD_WS+2}, 0x10000000")
        a(f"s_mov_b32 s{SRD_WS+3}, 0x20000")
        a(f"s_cmp_lg_u32 s{S_WAVE}, 4")
        a(f"s_cbranch_scc1 L_compute")
        a("@@LOADER@@")
        a.label("L_compute")
        a(f"s_and_b32 s{S_QB}, s{S_WAVE}, 1")
        a(f"s_lshr_b32 s{S_KS}, s{S_WAVE}, 1")
        a(f"s_lshl_b32 s{S_W4K}, s{S_WAVE}, 12")
        a("s_waitcnt lgkmcnt(0)")
        self.srds(a)
        a(f"s_mov_b32 s{S_C}, {f32bits(C_SCALE):#x}")
        a(f"s_mov_b32 s{S_THR}, {f32bits(T_RESCALE):#x}")
        a(f"s_mov_b32 s{SRD_OUT}, s{S_OUT}")
        a(f"s_mov_b32 s{SRD_OUT+1}, s{S_OUT+1}")
        a(f"s_mov_b32 s{SRD_OUT+2}, 589824")
        a(f"s_mov_b32 s{SRD_OUT+3}, 0x20000")
        a(f"v_lshrrev_b32 v{T}, 4, v{L}")
        a(f"v_and_b32 v{T+1}, 15, v{L}")
        a(f"v_lshrrev_b32 v{T+2}, 2, v{T+1}")
        a(f"v_and_b32 v{T+3}, 3, v{L}")
        a(f"v_and_b32 v{T+4}, 1, v{T}")
        a(f"v_lshrrev_b32 v{T+5}, 1, v{T}")
        a(f"v_lshl_add_u32 v{T+6}, v{T+5}, 3, v{T+2}")
        a(f"v_lshlrev_b32 v{T+6}, 8, v{T+6}")
        a(f"v_xor_b32 v{T+7}, s{S_WAVE}, v{T+2}")
        a(f"v_lshl_add_u32 v{T+6}, v{T+7}, 6, v{T+6}")
        a(f"v_lshl_add_u32 v{T+6}, v{T+4}, 5, v{T+6}")
        a(f"v_and_b32 v{T+7}, 1, v{T+3}")
        a(f"v_lshl_add_u32 v{T+6}, v{T+7}, 4, v{T+6}")
        a(f"v_lshrrev_b32 v{T+7}, 1, v{T+3}")
        a(f"v_lshl_add_u32 v{V_QA}, v{T+7}, 3, v{T+6}")
        a(f"v_and_b32 v{T+8}, 31, v{L}")
        a(f"v_lshrrev_b32 v{T+9}, 5, v{L}")
        a(f"v_lshrrev_b32 v{T+10}, 1, v{T+8}")
        a(f"v_and_b32 v{T+10}, 7, v{T+10}")
        a(f"v_xor_b32 v{T+10}, v{T+10}, v{T+9}")
        a(f"v_lshlrev_b32 v{T+11}, 7, v{T+8}")
        a(f"v_add_u32 v{T+11}, 16384, v{T+11}")
        for s in range(4):
            a(f"v_xor_b32 v{T+9}, {2*s}, v{T+10}")
            a(f"v_lshl_add_u32 v{V_QB+s}, v{T+9}, 4, v{T+11}")
        a(f"v_lshlrev_b32 v{V_L16}, 4, v{L}")
        if self.opts.get("p0", 0):
            self.bar("p0")
            self.touches()
        elif self.opts.get("touch_early", 1):
            self.touches()
        self.dma_voffsets(a, T, V_EKOFF, V_EVOFF)
        self.att_consts()
        if not self.opts.get("p0", 0) and not self.opts.get("touch_early", 1):
            self.touches()
        self.comb_consts()

    def touches(self):
        a = self.a
        L, T = V_LANE, V_T
        if self.touch:
            a(f"v_and_b32 v{T}, 0x7f, v0")
            a(f"v_lshrrev_b32 v{T+1}, 3, v{T}")
            a(f"v_and_b32 v{T+2}, 7, v{T}")
            a(f"s_lshl_b32 s{S_SAVE}, s{S_SLOT}, 4")
            a(f"v_add_u32 v{T+1}, s{S_SAVE}, v{T+1}")
            lb = a.newlabel("L_tx"); lj = a.newlabel("L_tj")
            a(f"s_cmp_ge_u32 s{S_WAVE}, 2")
            a(f"s_cbranch_scc1 {lb}")
            a(f"v_add_u32 v{T+1}, 64, v{T+1}")
            a(f"v_lshlrev_b32 v{T+1}, 13, v{T+1}")
            a(f"v_lshl_add_u32 v{T+1}, v{T+2}, 7, v{T+1}")
            a(f"s_lshl_b32 s{S_SAVE}, s{S_J}, 10")
            a(f"v_add_u32 v{T+1}, s{S_SAVE}, v{T+1}")
            a(f"global_load_dword v{V_PFD}, v{T+1}, {sr(S_WQ,2)} {self.waux}")
            a(f"s_branch {lj}")
            a.label(lb)
            a(f"v_mul_u32_u24 v{T+1}, 1152, v{T+1}")
            a(f"v_lshl_add_u32 v{T+1}, v{T+2}, 7, v{T+1}")
            a(f"global_load_dword v{V_PFD}, v{T+1}, {sr(S_X,2)} offset:128")
            a.label(lj)
        lab = a.newlabel("L_rst")
        a(f"s_and_b32 s{S_SPIN}, s{S_IDX}, 31")
        a(f"s_lshl_b32 s{S_SPIN}, s{S_SPIN}, 2")
        a(f"s_add_u32 s{S_SPIN}, s{S_SPIN}, s{S_WAVE}")
        a(f"s_cmp_lg_u32 s{S_SPIN}, 3")
        a(f"s_cbranch_scc1 {lab}")
        a(f"v_and_b32 v{T}, 31, v{L}")
        a(f"v_add_u32 v{T}, s{S_IDX}, v{T}")
        a(f"v_lshlrev_b32 v{T}, 7, v{T}")
        a(f"v_lshrrev_b32 v{T+1}, 5, v{L}")
        a(f"v_lshl_add_u32 v{T}, v{T+1}, 15, v{T}")
        a(f"v_mov_b32 v{T+1}, 0")
        a(f"buffer_store_dword v{T+1}, v{T}, {sr(SRD_WS,4)}, 0 offen sc1")
        a("s_waitcnt vmcnt(0)")
        a(f"s_mov_b32 s{SRD_DBG}, s{S_DBG}")
        a(f"s_mov_b32 s{SRD_DBG+1}, s{S_DBG+1}")
        a(f"s_mov_b32 s{SRD_DBG+2}, 256")
        a(f"s_mov_b32 s{SRD_DBG+3}, 0x20000")
        a(f"s_lshl_b32 s{S_SPIN}, s{S_B}, 2")
        a(f"v_mov_b32 v{T}, s{S_SPIN}")
        a(f"v_mov_b32 v{T+1}, 1")
        a("s_mov_b64 exec, 1")
        a(f"buffer_store_dword v{T+1}, v{T}, {sr(SRD_DBG,4)}, 0 offen sc1")
        a("s_mov_b64 exec, -1")
        a.label(lab)
        lab = a.newlabel("L_pf")
        a(f"s_cmp_lg_u32 s{S_WAVE}, 0")
        a(f"s_cbranch_scc1 {lab}")
        a(f"s_lshl_b32 s{S_SAVE}, s{S_SLOT}, 11")
        a(f"v_lshlrev_b32 v{T}, 7, v{L}")
        a(f"v_add_u32 v{T}, s{S_SAVE}, v{T}")
        a(f"s_mov_b32 s{S_SPIN}, L_codeend-L_pcbase")
        a(f"v_cmp_gt_u32 vcc, s{S_SPIN}, v{T}")
        a(f"s_and_b64 vcc, vcc, 0xffff")
        a(f"s_and_saveexec_b64 {sr(S_SAVE,2)}, vcc")
        a(f"s_cbranch_execz {lab}_r")
        a(f"global_load_dword v{V_PFD+1}, v{T}, {sr(S_PC,2)}")
        a.label(lab + "_r")
        a(f"s_mov_b64 exec, {sr(S_SAVE,2)}")
        a.label(lab)

    def srds(self, a):
        a(f"s_add_u32 s{SRD_X}, s{S_X}, s{S_T0}")
        a(f"s_addc_u32 s{SRD_X+1}, s{S_X+1}, 0")
        a(f"s_add_u32 s{SRD_WQ}, s{S_WQ}, s{S_T1}")
        a(f"s_addc_u32 s{SRD_WQ+1}, s{S_WQ+1}, 0")
        a(f"s_add_u32 s{SRD_K}, s{S_K}, s{S_T2}")
        a(f"s_addc_u32 s{SRD_K+1}, s{S_K+1}, 0")
        a(f"s_add_u32 s{SRD_V}, s{S_V}, s{S_T2}")
        a(f"s_addc_u32 s{SRD_V+1}, s{S_V+1}, 0")
        a(f"s_mov_b32 s{SRD_WS}, s{S_WS}")
        a(f"s_mov_b32 s{SRD_WS+1}, s{S_WS+1}")

    def att_consts(self):
        a = self.a
        L, T = V_LANE, V_T
        a.c("attention constants (register set 0 = LDS base 0)")
        a(f"v_lshrrev_b32 v{T}, 4, v{L}")
        a(f"v_and_b32 v{T+1}, 15, v{L}")
        a(f"v_lshrrev_b32 v{T+2}, 2, v{T+1}")
        a(f"v_and_b32 v{T+3}, 3, v{L}")
        a(f"v_and_b32 v{T+4}, 1, v{T}")
        a(f"v_lshrrev_b32 v{T+5}, 1, v{T}")
        a(f"v_lshl_add_u32 v{T+6}, v{T+5}, 2, v{T+2}")
        a(f"v_lshlrev_b32 v{T+6}, 8, v{T+6}")
        a(f"v_lshl_add_u32 v{T+6}, v{T+4}, 5, v{T+6}")
        a(f"v_lshl_add_u32 v{T+6}, v{T+3}, 3, v{T+6}")
        a(f"s_lshl_b32 s{S_T0}, s{S_KS}, 13")
        a(f"v_add_u32 v{T+6}, s{S_T0}, v{T+6}")
        a(f"s_lshl_b32 s{S_T1}, s{S_KS}, 1")
        for g in range(4):
            a(f"s_xor_b32 s{S_T2}, s{S_T1}, {g}")
            a(f"v_xor_b32 v{T+7}, s{S_T2}, v{T+2}")
            a(f"v_lshl_add_u32 v{V_VA+g}, v{T+7}, 6, v{T+6}")
        a(f"v_and_b32 v{T+8}, 31, v{L}")
        a(f"v_lshrrev_b32 v{T+9}, 5, v{L}")
        a(f"v_and_b32 v{T+10}, 15, v{T+8}")
        a(f"v_xor_b32 v{T+10}, v{T+10}, v{T+9}")
        a(f"v_lshlrev_b32 v{T+11}, 8, v{T+8}")
        a(f"v_add_u32 v{T+11}, s{S_T0}, v{T+11}")
        for s in range(8):
            a(f"v_xor_b32 v{T+9}, {2*s}, v{T+10}")
            a(f"v_lshl_add_u32 v{V_KA+s}, v{T+9}, 4, v{T+11}")
        self.kset = 0
        self.vset = 0

    def comb_consts(self):
        a = self.a
        L, T = V_LANE, V_T
        a.c("combine constants")
        a(f"v_lshlrev_b32 v{T}, 3, v{L}")
        a(f"s_lshl_b32 s{S_T0}, s{S_WAVE}, 9")
        a(f"s_add_u32 s{S_T0}, s{S_T0}, {STATS_OFF}")
        a(f"v_add_u32 v{V_CST}, s{S_T0}, v{T}")
        a(f"s_xor_b32 s{S_T1}, s{S_WAVE}, 2")
        a(f"s_lshl_b32 s{S_T0}, s{S_T1}, 9")
        a(f"s_add_u32 s{S_T0}, s{S_T0}, {STATS_OFF}")
        a(f"v_add_u32 v{V_CSR}, s{S_T0}, v{T}")
        a(f"s_lshl_b32 s{S_T0}, s{S_WAVE}, 13")
        a(f"s_add_u32 s{S_T0}, s{S_T0}, {SCR_OFF}")
        a(f"v_add_u32 v{V_CW}, s{S_T0}, v{V_L16}")
        a(f"s_lshl_b32 s{S_T0}, s{S_T1}, 13")
        a(f"s_add_u32 s{S_T0}, s{S_T0}, {SCR_OFF}")
        a(f"v_add_u32 v{V_CR}, s{S_T0}, v{V_L16}")
        a(f"v_and_b32 v{T}, 31, v{L}")
        a(f"v_lshrrev_b32 v{T+1}, 4, v{T}")
        a(f"v_lshlrev_b32 v{T+1}, 12, v{T+1}")
        a(f"v_and_b32 v{T+2}, 15, v{T}")
        a(f"v_lshl_add_u32 v{T+1}, v{T+2}, 4, v{T+1}")
        a(f"v_lshrrev_b32 v{T+2}, 5, v{L}")
        a(f"v_lshl_add_u32 v{T+1}, v{T+2}, 8, v{T+1}")
        a(f"s_lshl_b32 s{S_T0}, s{S_IDX}, 14")
        a(f"s_lshl_b32 s{S_T1}, s{S_QB}, 13")
        a(f"s_add_u32 s{S_T0}, s{S_T0}, s{S_T1}")
        a(f"s_lshl_b32 s{S_T1}, s{S_KS}, 11")
        a(f"s_add_u32 s{S_T0}, s{S_T0}, s{S_T1}")
        a(f"s_add_u32 s{S_T0}, s{S_T0}, {WS_O}")
        a(f"v_add_u32 v{V_OST}, s{S_T0}, v{T+1}")

    def early_schedule(self):
        return {1: 0, 3: 1, 5: 2} if self.early == 3 else ({2: 0, 5: 1} if self.early == 2 else ({} if self.early == 0 else {3: 0}))

    def q_mfmas(self, n):
        a = self.a
        A0 = 48 * (n & 1)
        out = []
        for s in range(4):
            for qb in range(2):
                src_c = vr(V_S+16*qb,16) if not (n == 0 and s == 0) else "0"
                out.append(f"v_mfma_f32_32x32x16_bf16 {vr(V_S+16*qb,16)}, {ar(A0+4*s,4)}, {ar(A0+16+8*s+4*qb,4)}, {src_c}")
        return out

    def q_step(self, n):
        a = self.a
        base = QSLOT[n % 3]
        A0 = 48 * (n & 1)
        a.c(f"---- Q step {n}")
        self.bar(f"q{n}")
        self.stamp(f"qb{n}")
        reads = []
        for s in range(4):
            reads.append(f"ds_read_b64_tr_b16 {ar(A0+4*s,2)}, v{V_QA} offset:{base+s*4096}")
            reads.append(f"ds_read_b64_tr_b16 {ar(A0+4*s+2,2)}, v{V_QA} offset:{base+s*4096+1024}")
            for qb in range(2):
                reads.append(f"ds_read_b128 {ar(A0+16+8*s+4*qb,4)}, v{V_QB+s} offset:{base+qb*4096}")
        mf = self.q_mfmas(n - 1) if n >= 1 else []
        es = self.early_schedule()
        dma = self.unit_ops(es[n], "c") if n in es else []
        ri = 0
        for k in range(8):
            for _ in range(2):
                a(reads[ri]); ri += 1
            if mf:
                a(mf[k])
            if dma and k % 2 == 1:
                self.issue(a, [dma[k // 2]], f"u{es[n]}")
        a("s_waitcnt lgkmcnt(0)")
        if n == 8:
            for m in self.q_mfmas(8):
                a(m)

    def qx_step(self):
        a = self.a
        T = V_T
        a.c("---- QX")
        if self.early == 0:
            a("s_waitcnt vmcnt(0)")
        self.bar("x1")
        a(f"s_lshl_b32 s{S_T0}, s{S_WAVE}, 11")
        a(f"s_add_u32 s{S_T0}, s{S_T0}, {QX_OFF}")
        a(f"v_add_u32 v{T}, s{S_T0}, v{V_L16}")
        a(f"s_lshl_b32 s{S_T0}, s{S_QB}, 13")
        a(f"s_add_u32 s{S_T0}, s{S_T0}, {QX_OFF}")
        a(f"v_add_u32 v{T+1}, s{S_T0}, v{V_L16}")
        a("s_nop 7")
        E = V_O + 16
        for qb in range(2):
            for half in range(2):
                for d in range(4):
                    src = V_S + 16 * qb + 8 * half + 2 * d
                    a(f"v_cvt_pk_bf16_f32 v{E+4*(2*qb+half)+d}, v{src}, v{src+1}")
        for qb in range(2):
            for half in range(2):
                a(f"ds_write_b128 v{T}, {vr(E+4*(2*qb+half),4)} offset:{qb*8192+half*1024}")
        a("s_waitcnt lgkmcnt(0)")
        self.bar("x2")
        for s in range(8):
            a(f"ds_read_b128 {ar(A_Q+4*s,4)}, v{T+1} offset:{s*1024}")
        a("s_waitcnt lgkmcnt(0)")

    def set_regs(self, which, want):
        a = self.a
        cur = self.kset if which == "K" else self.vset
        if cur == want:
            return
        d = (want - cur) * 65536
        base, n = (V_KA, 8) if which == "K" else (V_VA, 4)
        for k in range(n):
            if d > 0:
                a(f"v_add_u32 v{base+k}, {d:#x}, v{base+k}")
            else:
                a(f"v_subrev_u32 v{base+k}, {-d:#x}, v{base+k}")
        if which == "K":
            self.kset = want
        else:
            self.vset = want

    @staticmethod
    def pbuf(j):
        return V_P if (j & 1) == 0 else V_P2

    def softmax_valu(self, j, lo=0, hi=16):
        E = V_S + 16 * (j & 1)
        P = self.pbuf(j)
        fm = {k: f"v_fma_f32 v{E+k}, v{E+k}, s{S_C}, -v{V_MC}" for k in range(lo, hi)}
        ex = {k: f"v_exp_f32 v{E+k}, v{E+k}" for k in range(lo, hi)}
        D = min(3, hi - lo)
        seq = [fm[k] for k in range(lo, lo + D)]

        def consume(kk):
            out = []
            if j == 0 and kk == 0:
                out.append(f"v_mov_b32 v{V_L}, v{E+0}")
            else:
                out.append(f"v_add_f32 v{V_L}, v{V_L}, v{E+kk}")
            if kk & 1:
                out.append(f"v_cvt_pk_bf16_f32 v{P+kk//2}, v{E+kk-1}, v{E+kk}")
            return out
        for k in range(lo, hi):
            seq.append(ex[k])
            if k + D < hi:
                seq.append(fm[k + D])
            elif k > lo:
                pass
            if k > lo:
                seq += consume(k - 1)
        seq.append("s_nop 0")
        seq += consume(hi - 1)
        return seq

    def max_chain(self, i):
        Sc = V_S + 16 * (i & 1)
        TM = V_TMAX
        mx = [f"v_max3_f32 v{TM}, v{Sc}, v{Sc+1}, v{Sc+2}", f"v_max3_f32 v{V_T}, v{Sc+3}, v{Sc+4}, v{Sc+5}"]
        mx += [f"v_max3_f32 v{TM}, v{TM}, v{Sc+6}, v{Sc+7}", f"v_max3_f32 v{V_T}, v{V_T}, v{Sc+8}, v{Sc+9}"]
        mx += [f"v_max3_f32 v{TM}, v{TM}, v{Sc+10}, v{Sc+11}", f"v_max3_f32 v{V_T}, v{V_T}, v{Sc+12}, v{Sc+13}"]
        mx += [f"v_max3_f32 v{TM}, v{TM}, v{Sc+14}, v{Sc+15}", f"v_max_f32 v{TM}, v{TM}, v{V_T}"]
        mx += [f"v_mov_b32 v{V_T}, v{TM}", "s_nop 1", f"v_permlane32_swap_b32 v{TM}, v{V_T}", "s_nop 1",
               f"v_max_f32 v{TM}, v{TM}, v{V_T}", f"v_mul_f32 v{TM}, s{S_C}, v{TM}"]
        return mx

    def pstore_base(self, a, sreg):
        a(f"s_lshl_b32 s{sreg}, s{S_B}, 2")
        a(f"s_add_u32 s{sreg}, s{sreg}, s{S_HH}")
        a(f"s_lshl_b32 s{sreg}, s{sreg}, 3")
        a(f"s_add_u32 s{sreg}, s{sreg}, s{S_J}")
        a(f"s_mul_i32 s{sreg}, s{sreg}, {PSTRIDE}")
        a(f"s_mul_i32 s{S_T2}, s{S_WAVE}, 5120")
        a(f"s_add_u32 s{sreg}, s{sreg}, s{S_T2}")
        a(f"s_add_u32 s{sreg}, s{sreg}, {WS_P}")

    def k_reads(self, i):
        ku = phys(kunit(i)) * UNIT
        self.set_regs("K", ku // 65536)
        return [f"ds_read_b128 {ar(A_K+4*s,4)}, v{V_KA+s} offset:{ku % 65536}" for s in range(8)]

    def att_step(self, i):
        a = self.a
        assert self.early == 0
        N1 = self.opts.get("n1", 4)
        a.c(f"---- attention step {i}")
        has_s = i <= 15
        has_pv = i >= 1
        if has_pv:
            vu = phys(vunit(i - 1)) * UNIT
            self.set_regs("V", vu // 65536)
            vimm = vu % 65536
        if self.dpoll and 1 <= i <= 5:
            T = V_T
            p = i - 1
            self.pstore_base(a, S_T0)
            a(f"v_mov_b32 v{T+4}, -1")
            a(f"v_mov_b32 v{T+5}, -1")
            a(f"v_mov_b32 v{T+6}, -1")
            a(f"v_mov_b32 v{T+7}, -1")
            if p == 4:
                a(f"s_add_u32 s{S_T0}, s{S_T0}, 4096")
            a(f"buffer_store_dwordx4 {vr(T+4,4)}, v{V_L16}, {sr(SRD_WS,4)}, s{S_T0} offen offset:{(p%4)*1024} sc1")
        if i == 7 and self.dpoll:
            a("s_waitcnt vmcnt(0)")
        if i == 12 and self.touch:
            T = V_T
            lab = a.newlabel("L_wt")
            a(f"s_mul_i32 s{S_T0}, s{S_J}, 589824")
            a(f"s_mul_i32 s{S_T1}, s{S_SLOT}, {144*128}")
            a(f"s_add_u32 s{S_T0}, s{S_T0}, s{S_T1}")
            a(f"v_lshlrev_b32 v{T}, 7, v0")
            a(f"v_add_u32 v{T}, s{S_T0}, v{T}")
            a(f"v_cmp_gt_u32 vcc, 144, v0")
            a(f"s_and_saveexec_b64 {sr(S_SAVE,2)}, vcc")
            a(f"s_cbranch_execz {lab}")
            a(f"global_load_dword v{V_QB+3}, v{T}, {sr(S_WO,2)} {self.waux}")
            a.label(lab)
            a(f"s_mov_b64 exec, {sr(S_SAVE,2)}")
        if i == 0 or i == 15:
            kr0 = self.k_reads(i)
        self.stamp(f"aw{i}")
        self.bar(f"a{i}")
        self.stamp(f"ab{i}")
        if i == 16:
            return self.last_step(vimm)
        Sc = V_S + 16 * (i & 1)
        if i == 0 or i == 15:
            for r in kr0:
                a(r)
        if i == 0:
            a(f"s_mov_b32 s{S_PEND}, 0")
        vreads = []
        if has_pv:
            for s2 in range(2):
                for g in range(4):
                    for x in range(2):
                        vreads.append(f"ds_read_b64_tr_b16 {ar(A_V+16*s2+4*g+2*x,2)}, v{V_VA+g} offset:{vimm+s2*4096+x*2048}")
        valu = self.softmax_valu(i - 1, N1, 16) if has_pv else []
        per = (len(valu) + 7) // 8
        vi = 0
        if i == 15:
            for _ in range(12):
                a(valu[vi]); vi += 1
            per = (len(valu) - vi + 7) // 8
        for s in range(8):
            if i == 0 or i == 15:
                a(f"s_waitcnt lgkmcnt({7-s})")
            srcc = "0" if s == 0 else vr(Sc,16)
            a(f"v_mfma_f32_32x32x16_bf16 {vr(Sc,16)}, {ar(A_K+4*s,4)}, {ar(A_Q+4*s,4)}, {srcc}")
            if i != 15:
                for r in vreads[2*s:2*s+2]:
                    a(r)
            for _ in range(per):
                if vi < len(valu):
                    a(valu[vi]); vi += 1
        assert vi >= len(valu)
        kr = self.k_reads(i + 1) if i + 1 <= 14 else []
        mx = self.max_chain(i)
        P1 = self.softmax_valu(i, 0, N1 if i < 15 else 16)
        lab = a.newlabel("L_nors")

        def check():
            if i == 0:
                a(f"v_mov_b32 v{V_MC}, v{V_TMAX}")
                return
            a(f"v_sub_f32 v{V_T}, v{V_TMAX}, v{V_MC}")
            a(f"v_cmp_lt_f32 vcc, s{S_THR}, v{V_T}")
            a(f"s_cbranch_vccz {lab}")
            a(f"v_max_f32 v{V_T}, v{V_TMAX}, v{V_MC}")
            a(f"v_sub_f32 v{V_T+1}, v{V_MC}, v{V_T}")
            a(f"v_exp_f32 v{V_T+1}, v{V_T+1}")
            a(f"v_mov_b32 v{V_MC}, v{V_T}")
            a(f"s_mov_b32 s{S_PEND}, 1")
            a(f"v_mul_f32 v{V_L}, v{V_L}, v{V_T+1}")
            a.label(lab)

        if i == 15:
            P = self.pbuf(14)
            mfs = [f"v_mfma_f32_32x32x16_bf16 {vr(V_O+16*g,16)}, {ar(A_V+16*s2+4*g,4)}, {vr(P+4*s2,4)}, {vr(V_O+16*g,16)}"
                   for s2 in range(2) for g in range(4)]
            a("s_nop 7"); a("s_nop 3")
            for s_ in mx:
                a(s_)
            check()
            self.bar("a15v")
            for r in vreads:
                a(r)
            pi = 0
            for _ in range(14):
                a(P1[pi]); pi += 1
            n = (len(P1) - pi + 7) // 8
            for k in range(8):
                a(f"s_waitcnt lgkmcnt({min(15, 2*(7-k))})")
                a(mfs[k])
                for _ in range(n):
                    if pi < len(P1):
                        a(P1[pi]); pi += 1
            assert pi >= len(P1)
            lab2 = a.newlabel("L_nopend")
            a(f"s_cmp_eq_u32 s{S_PEND}, 0")
            a(f"s_cbranch_scc1 {lab2}")
            a("s_nop 7"); a("s_nop 7")
            for k in range(64):
                a(f"v_mul_f32 v{V_O+k}, v{V_O+k}, v{V_T+1}")
            a(f"s_mov_b32 s{S_PEND}, 0")
            a("s_nop 1")
            a.label(lab2)
        elif has_pv:
            P = self.pbuf(i - 1)
            mfs = []
            for s2 in range(2):
                for g in range(4):
                    srcc = "0" if (i == 1 and s2 == 0) else vr(V_O+16*g,16)
                    mfs.append(f"v_mfma_f32_32x32x16_bf16 {vr(V_O+16*g,16)}, {ar(A_V+16*s2+4*g,4)}, {vr(P+4*s2,4)}, {srcc}")
            a("s_waitcnt lgkmcnt(0)")
            a(mfs[0])
            for r in kr[0:3]:
                a(r)
            a(mfs[1])
            for r in kr[3:6]:
                a(r)
            a(mfs[2])
            for r in kr[6:8]:
                a(r)
            if not kr:
                a("s_nop 6")
            for s_ in mx[0:5]:
                a(s_)
            a(mfs[3])
            for s_ in mx[5:10]:
                a(s_)
            a(mfs[4])
            for s_ in mx[10:]:
                a(s_)
            a(mfs[5])
            check()
            n = (len(P1) + 2) // 3 if i < 15 else 6
            pi = 0
            for _ in range(n):
                if pi < len(P1):
                    a(P1[pi]); pi += 1
            a(mfs[6])
            for _ in range(n):
                if pi < len(P1):
                    a(P1[pi]); pi += 1
            a(mfs[7])
            while pi < len(P1):
                a(P1[pi]); pi += 1
            lab2 = a.newlabel("L_nopend")
            a(f"s_cmp_eq_u32 s{S_PEND}, 0")
            a(f"s_cbranch_scc1 {lab2}")
            a("s_nop 7"); a("s_nop 7")
            for k in range(64):
                a(f"v_mul_f32 v{V_O+k}, v{V_O+k}, v{V_T+1}")
            a(f"s_mov_b32 s{S_PEND}, 0")
            a("s_nop 1")
            a.label(lab2)
        else:
            for r in kr:
                a(r)
            a("s_nop 3")
            for s_ in mx:
                a(s_)
            check()
            for s_ in P1:
                a(s_)
        if i == 14:
            a(f"v_mov_b32 v{V_T}, {FAST_OFF}")
            a(f"ds_read_b64 {vr(V_T+2,2)}, v{V_T}")
            a("s_waitcnt lgkmcnt(0)")
            a(f"v_readfirstlane_b32 s{S_FAST}, v{V_T+2}")
            a(f"v_readfirstlane_b32 s{S_FAST2}, v{V_T+3}")
        if i == 15:
            T = V_T
            a(f"v_mov_b32 v{T+3}, v{V_L}")
            a(f"v_mov_b32 v{T+2}, v{V_MC}")
            a("s_nop 0")
            a(f"v_permlane32_swap_b32 v{V_L}, v{T+3}")
            a("s_nop 1")
            a(f"v_add_f32 v{V_L}, v{V_L}, v{T+3}")
            a(f"v_mov_b32 v{T+3}, v{V_L}")
            a(f"ds_write_b64 v{V_CST}, {vr(T+2,2)}")
        a("s_waitcnt lgkmcnt(0)")

    def last_step(self, vimm):
        a = self.a
        T = V_T
        a(f"ds_read_b64 {vr(T+2,2)}, v{V_CSR}")
        order = [2, 3, 0, 1]
        for s2 in range(2):
            for g in order:
                for x in range(2):
                    a(f"ds_read_b64_tr_b16 {ar(A_V+16*s2+4*g+2*x,2)}, v{V_VA+g} offset:{vimm+s2*4096+x*2048}")
        a("s_waitcnt lgkmcnt(15)")
        a(f"v_max_f32 v{T+4}, v{V_MC}, v{T+2}")
        a(f"v_sub_f32 v{T+6}, v{V_MC}, v{T+4}")
        a(f"v_sub_f32 v{T+8}, v{T+2}, v{T+4}")
        a(f"v_exp_f32 v{T+6}, v{T+6}")
        a(f"v_exp_f32 v{T+8}, v{T+8}")
        a("s_nop 0")
        a(f"v_mul_f32 v{T+5}, v{T+6}, v{V_L}")
        a(f"v_fma_f32 v{T+5}, v{T+8}, v{T+3}, v{T+5}")
        a(f"v_rcp_f32 v{T+5}, v{T+5}")
        a("s_nop 0")
        a(f"v_mul_f32 v{T+6}, v{T+6}, v{T+5}")
        a(f"v_mul_f32 v{T+8}, v{T+8}, v{T+5}")
        a(f"v_mov_b32 v{T+7}, v{T+6}")
        a(f"v_mov_b32 v{T+9}, v{T+8}")
        k = 0
        for s2 in range(2):
            for g in order:
                a(f"s_waitcnt lgkmcnt({min(15, 2*(7-k))})")
                a(f"v_mfma_f32_32x32x16_bf16 {vr(V_O+16*g,16)}, {ar(A_V+16*s2+4*g,4)}, {vr(self.pbuf(15)+4*s2,4)}, {vr(V_O+16*g,16)}")
                k += 1

    def combine(self):
        a = self.a
        T = V_T
        E = V_S
        a.c("---- combine the two key halves, publish O")
        L = V_LANE
        a(f"v_lshrrev_b32 v{T+4}, 4, v{L}")
        a(f"v_lshrrev_b32 v{T+5}, 1, v{T+4}")
        a(f"v_lshlrev_b32 v{T+5}, 4, v{T+5}")
        a(f"v_and_b32 v{T+10}, 1, v{T+4}")
        a(f"v_lshl_add_u32 v{T+5}, v{T+10}, 2, v{T+5}")
        a(f"v_and_b32 v{T+10}, 15, v{L}")
        a(f"v_lshrrev_b32 v{T+10}, 2, v{T+10}")
        a(f"v_add_u32 v{T+5}, v{T+5}, v{T+10}")
        a(f"v_mul_u32_u24 v{T+5}, 288, v{T+5}")
        a(f"v_and_b32 v{T+10}, 3, v{L}")
        a(f"v_lshl_add_u32 v{V_QA}, v{T+10}, 3, v{T+5}")
        a(f"v_add_u32 v{V_QA+1}, 0x10000, v{V_QA}")
        a(f"v_add_u32 v{V_QA+2}, 0x20000, v{V_QA}")
        for u in range(8):
            a(f"ds_write_b128 v{V_CW}, {vr(V_O+32+4*u,4)} offset:{u*1024}")
        for k in range(16):
            a(f"v_pk_mul_f32 {vr(V_O+2*k,2)}, {vr(V_O+2*k,2)}, {vr(T+6,2)}")
        a("s_waitcnt lgkmcnt(0)")
        self.bar("c2")
        self.stamp("c2")
        for u in range(8):
            a(f"ds_read_b128 {vr(V_O+32+4*u,4)}, v{V_CR} offset:{u*1024}")
        slow = a.newlabel("L_oslow"); join = a.newlabel("L_ojoin")

        def tail(aux, track):
            for u in range(8):
                a(f"s_waitcnt lgkmcnt({7-u})")
                for k in (2 * u, 2 * u + 1):
                    a(f"v_pk_fma_f32 {vr(V_O+2*k,2)}, {vr(V_O+32+2*k,2)}, {vr(T+8,2)}, {vr(V_O+2*k,2)}")
                for k in (2 * u, 2 * u + 1):
                    a(f"v_cvt_pk_bf16_f32 v{E+k}, v{V_O+2*k}, v{V_O+2*k+1}")
                if u & 1:
                    g, uu = (u >> 2), (u >> 1) & 1
                    ins = f"buffer_store_dwordx4 {vr(E+8*g+4*uu,4)}, v{V_OST}, {sr(SRD_WS,4)}, 0 offen offset:{g*1024+uu*512} {aux}"
                    if track:
                        a.vmop(ins, "ostore")
                    else:
                        a(ins)
        if self.fast:
            a(f"s_cmp_eq_u32 s{S_FAST}, 0")
            a(f"s_cbranch_scc1 {slow}")
            tail("", False)
            a(f"s_branch {join}")
            a.label(slow)
            tail("sc1", True)
            a.label(join)
        else:
            tail("sc1", True)
        self.bar("c3")
        self.stamp("ost")
        a(f"s_and_b32 s{S_T0}, s{S_IDX}, 0xfc")
        a(f"s_lshl_b32 s{S_T0}, s{S_T0}, 14")
        a(f"s_add_u32 s{S_T0}, s{S_T0}, s{S_W4K}")
        a(f"s_add_u32 s{S_T0}, s{S_T0}, {WS_O}")
        a(f"s_lshl_b32 s{S_T1}, s{S_HH}, 14")
        a(f"s_add_u32 s{S_T1}, s{S_T1}, s{S_T0}")
        a("s_waitcnt vmcnt(0)")
        self.stamp("ostack")
        self.bar("e1")
        self.stamp("e1")

    def oproj(self):
        a = self.a
        T = V_T
        WOA = V_QA
        a.c("---- O projection")
        for tp in range(4):
            a.vmop(f"buffer_load_dwordx4 {ar(A_OB+4*tp,4)}, v{V_L16}, {sr(SRD_WS,4)}, s{S_T1} offen offset:{tp*1024} sc1", f"ob{tp}")
        RING = 10
        AHEAD = 7
        seq = [(nb, t) for t in range(4) for nb in range(9)] + [(nb, t) for nb in range(9) for t in range(4, 16)]
        NOWN = 36

        def reads(k):
            nb, t = seq[k]
            out = []
            for x in range(2):
                off = wo_lds(t) + nb * 32 + x * 2304
                rs, imm = off // 65536, off % 65536
                out.append(f"ds_read_b64_tr_b16 {ar(A_W+4*(k%RING)+2*x,2)}, v{WOA+rs} offset:{imm}")
            return out
        issued = 0

        def issue_upto(k, limit):
            nonlocal issued
            while issued <= min(k, limit):
                for s_ in reads(issued):
                    a(s_)
                issued += 1
        issue_upto(AHEAD - 1, NOWN - 1)
        a(f"s_lshl_b32 s{S_T3}, s{S_B}, 2")
        a(f"s_add_u32 s{S_T3}, s{S_T3}, s{S_HH}")
        a(f"s_lshl_b32 s{S_T3}, s{S_T3}, 3")
        a(f"s_add_u32 s{S_T3}, s{S_T3}, s{S_J}")
        a(f"s_mul_i32 s{S_T3}, s{S_T3}, {PSTRIDE}")
        a(f"s_mul_i32 s{S_T2}, s{S_WAVE}, 5120")
        a(f"s_add_u32 s{S_T3}, s{S_T3}, s{S_T2}")
        a(f"s_add_u32 s{S_T3}, s{S_T3}, {WS_P}")
        a(f"v_mov_b32 v{V_E+18}, 0")
        a(f"v_mov_b32 v{V_E+19}, 0")
        seen_t = set()
        NA = self.opts.get("na", 14)
        for k, (nb, t) in enumerate(seq):
            if k == NOWN:
                issue_upto(k + AHEAD - 1, len(seq) - 1)
            if k == NA:
                self.stamp("own")
                self.bar("e2")
                self.stamp("ex1")
                for i in range(1, 4):
                    a(f"s_add_u32 s{S_T1}, s{S_HH}, {i}")
                    a(f"s_and_b32 s{S_T1}, s{S_T1}, 3")
                    a(f"s_lshl_b32 s{S_T1}, s{S_T1}, 14")
                    a(f"s_add_u32 s{S_T1}, s{S_T1}, s{S_T0}")
                    for tp in range(4):
                        tt = 4 * i + tp
                        a.vmop(f"buffer_load_dwordx4 {ar(A_OB+4*tt,4)}, v{V_L16}, {sr(SRD_WS,4)}, s{S_T1} offen offset:{tp*1024} sc1", f"ob{tt}")
            if t not in seen_t:
                a.wait_tag(f"ob{t}")
                seen_t.add(t)
            if k == NOWN + 12:
                self.stamp("op16")
            if k % 2 == 0 or k == NOWN:
                last = min(k + 1, issued - 1) if not (k < NOWN and k + 1 >= NOWN) else k
                outstanding_after = issued - 1 - last
                a(f"s_waitcnt lgkmcnt({min(2*outstanding_after, 15)})")
            srcc = "0" if k < 9 else vr(V_ACC+4*nb,4)
            a(f"v_mfma_f32_16x16x32_bf16 {vr(V_ACC+4*nb,4)}, {ar(A_W+4*(k%RING),4)}, {ar(A_OB+4*t,4)}, {srcc}")
            lim = NOWN - 1 if k < NA else len(seq) - 1
            if k >= NA and k < NOWN:
                lim = len(seq) - 1
            issue_upto(k + AHEAD, lim)
            if k >= NOWN and t == 12 and nb >= 1:
                pb = nb - 1
                p, h = pb // 2, pb % 2
                a(f"v_cvt_pk_bf16_f32 v{V_E+4*p+2*h}, v{V_ACC+4*pb}, v{V_ACC+4*pb+1}")
                a(f"v_cvt_pk_bf16_f32 v{V_E+4*p+2*h+1}, v{V_ACC+4*pb+2}, v{V_ACC+4*pb+3}")
                if self.dpoll:
                    a(f"v_min_u32 v{V_E+4*p+2*h}, -2, v{V_E+4*p+2*h}")
                    a(f"v_min_u32 v{V_E+4*p+2*h+1}, -2, v{V_E+4*p+2*h+1}")
                if h == 1:
                    a.vmop(f"buffer_store_dwordx4 {vr(V_E+4*p,4)}, v{V_L16}, {sr(SRD_WS,4)}, s{S_T3} offen offset:{p*1024} sc1", "pstore")
        a("s_nop 7")
        a(f"v_cvt_pk_bf16_f32 v{V_E+16}, v{V_ACC+32}, v{V_ACC+33}")
        a(f"v_cvt_pk_bf16_f32 v{V_E+17}, v{V_ACC+34}, v{V_ACC+35}")
        if self.dpoll:
            a(f"v_min_u32 v{V_E+16}, -2, v{V_E+16}")
            a(f"v_min_u32 v{V_E+17}, -2, v{V_E+17}")
        a(f"s_add_u32 s{S_T3}, s{S_T3}, 4096")
        a.vmop(f"buffer_store_dwordx4 {vr(V_E+16,4)}, v{V_L16}, {sr(SRD_WS,4)}, s{S_T3} offen sc1", "pstore")
        self.stamp("oproj")

    def final(self, endlab="L_end"):
        a = self.a
        T = V_T
        R = V_S
        acc = V_O
        a.c("---- exchange 2 + final reduce")
        a(f"s_mul_i32 s{S_T0}, s{S_J}, 160")
        a(f"v_add_u32 v{T}, s{S_T0}, v0")
        a(f"v_lshlrev_b32 v{T+1}, 4, v{T}")
        a(f"v_mul_u32_u24 v{T+2}, 3277, v{T}")
        a(f"v_lshrrev_b32 v{T+2}, 20, v{T+2}")
        a(f"v_mul_u32_u24 v{T+3}, 320, v{T+2}")
        a(f"v_sub_u32 v{T+3}, v{T}, v{T+3}")
        a(f"v_lshrrev_b32 v{T+4}, 6, v{T+3}")
        a(f"v_and_b32 v{T+5}, 63, v{T}")
        a(f"v_and_b32 v{T+6}, 15, v{T+5}")
        a(f"v_lshl_add_u32 v{T+6}, v{T+2}, 4, v{T+6}")
        a(f"v_mul_u32_u24 v{T+6}, 1152, v{T+6}")
        a(f"v_lshrrev_b32 v{T+7}, 4, v{T+5}")
        a(f"v_lshlrev_b32 v{T+7}, 3, v{T+7}")
        a(f"v_lshl_add_u32 v{T+7}, v{T+4}, 6, v{T+7}")
        a(f"v_add_u32 v{T+6}, v{T+6}, v{T+7}")
        a(f"s_lshl_b32 s{S_T0}, s{S_B}, 2")
        a(f"s_add_u32 s{S_T0}, s{S_T0}, s{S_HH}")
        a(f"s_mul_i32 s{S_T0}, s{S_T0}, {8*PSTRIDE}")
        a(f"s_add_u32 s{S_T0}, s{S_T0}, {WS_P}")

        def loads():
            a(f"s_mov_b32 s{S_T1}, s{S_T0}")
            for jj in range(8):
                a(f"buffer_load_dwordx4 {vr(R+4*jj,4)}, v{T+1}, {sr(SRD_WS,4)}, s{S_T1} offen sc1")
                if jj < 7:
                    a(f"s_add_u32 s{S_T1}, s{S_T1}, {PSTRIDE}")
        have = a.newlabel("L_have")
        if self.dpoll:
            slow = a.newlabel("L_f2slow")
            a(f"s_cmp_eq_u32 s{S_FAST2}, 0")
            a(f"s_cbranch_scc1 {slow}")
            idle = a.newlabel("L_f2idle")
            a(f"v_cmp_gt_u32 vcc, 160, v0")
            a(f"s_and_saveexec_b64 {sr(S_SAVE,2)}, vcc")
            a(f"s_cbranch_execz {idle}")
            loads()
            a("s_waitcnt vmcnt(0)")
            a(f"s_mov_b64 exec, {sr(S_SAVE,2)}")
            self.bar("f1")
            a.nbar_skip = True
            a(f"v_cmp_gt_u32 vcc, 160, v0")
            a(f"s_and_b64 exec, exec, vcc")
            a(f"s_mov_b32 s{S_SPIN}, 0")
            lp = a.newlabel("L_dp")
            a.label(lp)
            a(f"v_max3_u32 v{T+8}, v{R}, v{R+1}, v{R+2}")
            for k in range(3, 31, 2):
                a(f"v_max3_u32 v{T+8}, v{T+8}, v{R+k}, v{R+k+1}")
            a(f"v_max_u32 v{T+8}, v{T+8}, v{R+31}")
            a(f"v_cmp_eq_u32 vcc, -1, v{T+8}")
            a(f"s_cbranch_vccz {have}")
            a(f"s_add_u32 s{S_SPIN}, s{S_SPIN}, 1")
            a(f"s_cmp_ge_u32 s{S_SPIN}, 0x4000")
            a(f"s_cbranch_scc1 {have}")
            loads()
            a("s_waitcnt vmcnt(0)")
            a(f"s_branch {lp}")
            a.label(idle)
            a(f"s_mov_b64 exec, {sr(S_SAVE,2)}")
            a("s_waitcnt vmcnt(0)")
            a("s_barrier")
            a(f"s_branch {endlab}")
            a.label(slow)
            a("s_waitcnt vmcnt(0)")
            a("s_barrier")
            a("s_barrier")
        else:
            a("s_waitcnt vmcnt(0)")
            self.stamp("pack")
            self.bar("f1")
            self.stamp("f1")
            self.bar("f2")
        self.stamp("ex2")
        a(f"v_cmp_gt_u32 vcc, 160, v0")
        a(f"s_and_saveexec_b64 {sr(S_SAVE,2)}, vcc")
        a(f"s_cbranch_execz {endlab}")
        loads()
        if self.dpoll:
            a("s_waitcnt vmcnt(0)")
        a.label(have)
        a(f"s_mul_i32 s{S_T0}, s{S_B}, 73728")
        a(f"s_mul_i32 s{S_T1}, s{S_HH}, 288")
        a(f"s_add_u32 s{S_T0}, s{S_T0}, s{S_T1}")
        a(f"s_mov_b32 s{S_T1}, 0xffff0000")
        for jj in range(8):
            if not self.dpoll:
                a(f"s_waitcnt vmcnt({7-jj})")
            for d in range(4):
                src = R + 4 * jj + d
                if jj == 0:
                    a(f"v_lshlrev_b32 v{acc+2*d}, 16, v{src}")
                    a(f"v_and_b32 v{acc+2*d+1}, s{S_T1}, v{src}")
                else:
                    tt = T + 8 + 2 * (d & 1)
                    a(f"v_lshlrev_b32 v{tt}, 16, v{src}")
                    a(f"v_and_b32 v{tt+1}, s{S_T1}, v{src}")
                    a(f"v_pk_add_f32 {vr(acc+2*d,2)}, {vr(acc+2*d,2)}, {vr(tt,2)}")
        for d in range(4):
            a(f"v_cvt_pk_bf16_f32 v{acc+8+d}, v{acc+2*d}, v{acc+2*d+1}")
        a(f"buffer_store_dwordx2 {vr(acc+8,2)}, v{T+6}, {sr(SRD_OUT,4)}, s{S_T0} offen")
        a(f"v_cmp_gt_u32 vcc, 4, v{T+4}")
        a(f"s_and_b64 exec, exec, vcc")
        a(f"s_cbranch_execz {endlab}")
        a(f"buffer_store_dwordx2 {vr(acc+10,2)}, v{T+6}, {sr(SRD_OUT,4)}, s{S_T0} offen offset:32")

    def write_stamps(self, a, who, T):
        self.stamp("end", who)
        a("s_mov_b64 exec, -1")
        a("s_waitcnt lgkmcnt(0)")
        if self.ts == "probe":
            if who == "l":
                return
            k = self.stampnames["c"].index(self.opts["probe"])
            e = self.stampnames["c"].index("end")
            a(f"s_sub_u32 s{S_T0}, s{S_TS+2*k}, s{S_TS}")
            a(f"s_mul_i32 s{S_T0}, s{S_T0}, {self.opts.get('mult',1)}")
            a(f"s_add_u32 s{S_T0}, s{S_T0}, s{S_TS+2*e}")
            lab = a.newlabel("L_spin")
            a.label(lab)
            a(f"s_memrealtime s[98:99]")
            a("s_waitcnt lgkmcnt(0)")
            a(f"s_sub_u32 s{S_T1}, s98, s{S_T0}")
            a(f"s_cmp_lt_i32 s{S_T1}, 0")
            a(f"s_cbranch_scc1 {lab}")
            return
        if self.ts == "dbg":
            if who == "l":
                return
            lab = a.newlabel("L_nots")
            a(f"s_cmp_lg_u32 s{S_WAVE}, 0")
            a(f"s_cbranch_scc1 {lab}")
            a(f"s_mov_b32 s{SRD_DBG}, s{S_DBG}")
            a(f"s_mov_b32 s{SRD_DBG+1}, s{S_DBG+1}")
            a(f"s_mov_b32 s{SRD_DBG+2}, 256")
            a(f"s_mov_b32 s{SRD_DBG+3}, 0x20000")
            a("s_mov_b64 exec, 1")
            for k, st in enumerate(self.dbgsel):
                if k == 0:
                    a(f"s_not_b32 s{S_T0}, s{S_TS+2*st}")
                    a(f"v_mov_b32 v{T+1}, s{S_T0}")
                else:
                    a(f"v_mov_b32 v{T+1}, s{S_TS+2*st}")
                a(f"v_mov_b32 v{T}, {32+4*k}")
                a(f"buffer_atomic_umax v{T+1}, v{T}, {sr(SRD_DBG,4)}, 0 offen sc1")
                a("s_nop 1")
            a.label(lab)
            return
        a(f"s_mul_i32 s{S_T0}, s2, {NW}")
        a(f"s_add_u32 s{S_T0}, s{S_T0}, s{S_WAVE}")
        a(f"s_lshl_b32 s{S_T0}, s{S_T0}, 6")
        a(f"s_add_u32 s{S_T0}, s{S_T0}, {WS_TS}")
        a(f"v_mov_b32 v{T}, s{S_T0}")
        a("s_mov_b64 exec, 1")
        for k in range(self.nts[who]):
            a(f"v_mov_b32 v{T+1}, s{S_TS+2*k}")
            a(f"buffer_store_dword v{T+1}, v{T}, {sr(SRD_WS,4)}, 0 offen offset:{4*k}")
            a("s_nop 1")

    def l_poll(self, srd, vaddr, nl, want, cmp="ge"):
        a = self.l
        T = L_T
        lab = a.newlabel("L_poll")
        done = a.newlabel("L_pdone")
        a(f"s_mov_b64 exec, {(1<<nl)-1:#x}")
        a(f"s_mov_b32 s{S_SPIN}, 0")
        a.label(lab)
        a(f"buffer_load_dword v{T+2}, v{vaddr}, {sr(srd,4)}, 0 offen sc1")
        a("s_waitcnt vmcnt(0)")
        if cmp == "bit":
            a(f"v_and_b32 v{T+2}, 1, v{T+2}")
        a(f"v_cmp_le_u32 vcc, {want}, v{T+2}")
        a(f"s_add_u32 s{S_SPIN}, s{S_SPIN}, 1")
        a("s_nop 2")
        a("s_cmp_eq_u64 vcc, exec")
        a(f"s_cbranch_scc1 {done}")
        a(f"s_cmp_lt_u32 s{S_SPIN}, 0x8000")
        a(f"s_cbranch_scc1 {lab}")
        a.label(done)
        a("s_mov_b64 exec, -1")

    def l_signal(self, vflag, fastable=False):
        a = self.l
        T = L_T
        a(f"s_or_b32 s{S_T0}, s{S_XCC}, 1")
        a(f"v_mov_b32 v{T+1}, s{S_T0}")
        a("s_mov_b64 exec, 1")
        if fastable and self.fast:
            slow = a.newlabel("L_fs"); join = a.newlabel("L_fj")
            a(f"s_cmp_eq_u32 s{S_FAST}, 0")
            a(f"s_cbranch_scc1 {slow}")
            a(f"buffer_store_dword v{T+1}, v{vflag}, {sr(SRD_WS,4)}, 0 offen")
            a(f"s_branch {join}")
            a.label(slow)
            a(f"buffer_store_dword v{T+1}, v{vflag}, {sr(SRD_WS,4)}, 0 offen sc1")
            a.label(join)
        else:
            a(f"buffer_store_dword v{T+1}, v{vflag}, {sr(SRD_WS,4)}, 0 offen sc1")
        a("s_mov_b64 exec, -1")

    def loader(self, cls=0):
        a = self.l
        T = L_T
        L = V_LANE
        npre = self.opts.get("npre", 5) if cls == 1 else 0
        a.label(f"L_loader{cls}")
        self.stampnames["l"] = []
        if self.ts:
            self.nts["l"] = 1 if "start" in self.stampset else 0
            if "start" in self.stampset:
                self.stampnames["l"].append("start")
        self.dma_voffsets(a, T, L_KOFF, L_VOFF, L_WQOFF, L_XOFF)
        a("s_waitcnt lgkmcnt(0)")
        self.srds(a)
        for u in range(npre):
            self.issue(a, self.unit_ops(u, "l"), f"u{u}")
        self.issue(a, self.q_item_ops(0), "q0")
        a(f"s_getreg_b32 s{S_XCC}, hwreg(HW_REG_XCC_ID)")
        a(f"s_and_b32 s{S_XCC}, s{S_XCC}, 0xff")
        a(f"s_add_u32 s{S_XCC}, s{S_XCC}, 1")
        a(f"s_lshl_b32 s{S_XCC}, s{S_XCC}, 8")
        self.issue(a, self.q_item_ops(1), "q1")
        if self.opts.get("p0", 0):
            a.barrier("p0")
        self.stamp("ldma0", "l")
        a(f"s_mul_i32 s{S_T0}, s{S_J}, 589824")
        a(f"s_mul_i32 s{S_T1}, s{S_HH}, 288")
        a(f"s_add_u32 s{S_T0}, s{S_T0}, s{S_T1}")
        a(f"s_add_u32 s{SRD_WO}, s{S_WO}, s{S_T0}")
        a(f"s_addc_u32 s{SRD_WO+1}, s{S_WO+1}, 0")
        a(f"s_sub_u32 s{SRD_WO+2}, 4718592, s{S_T0}")
        a(f"s_mov_b32 s{SRD_WO+3}, 0x20000")
        a(f"s_mov_b32 s{SRD_DBG}, s{S_DBG}")
        a(f"s_mov_b32 s{SRD_DBG+1}, s{S_DBG+1}")
        a(f"s_mov_b32 s{SRD_DBG+2}, 256")
        a(f"s_mov_b32 s{SRD_DBG+3}, 0x20000")
        for u in range(9):
            a(f"v_add_u32 v{T}, {64*u}, v{L}")
            a(f"v_mul_u32_u24 v{T+1}, 3641, v{T}")
            a(f"v_lshrrev_b32 v{T+1}, 16, v{T+1}")
            a(f"v_mul_u32_u24 v{T+2}, 18, v{T+1}")
            a(f"v_sub_u32 v{T+2}, v{T}, v{T+2}")
            a(f"v_mul_u32_u24 v{T+1}, 1152, v{T+1}")
            a(f"v_lshl_add_u32 v{T+1}, v{T+2}, 4, v{T+1}")
            a(f"v_subrev_u32 v{L_WOOFF+u}, {1024*(u%4)}, v{T+1}")
        a(f"s_lshl_b32 s{S_T0}, s{S_IDX}, 7")
        a(f"v_mov_b32 v{T+4}, s{S_T0}")
        a(f"v_add_u32 v{T+5}, {WS_FLAG2}, v{T+4}")
        a(f"s_and_b32 s{S_T0}, s{S_IDX}, 0xfc")
        a(f"v_add_u32 v{T+6}, s{S_T0}, v{L}")
        a(f"v_lshlrev_b32 v{T+6}, 7, v{T+6}")
        a(f"s_lshl_b32 s{S_T0}, s{S_B}, 5")
        a(f"s_add_u32 s{S_T0}, s{S_T0}, s{S_HH}")
        a(f"v_lshlrev_b32 v{T+7}, 2, v{L}")
        a(f"v_add_u32 v{T+7}, s{S_T0}, v{T+7}")
        a(f"v_lshlrev_b32 v{T+7}, 7, v{T+7}")
        a(f"v_add_u32 v{T+7}, {WS_FLAG2}, v{T+7}")
        a(f"s_lshl_b32 s{S_T0}, s{S_B}, 2")
        a(f"v_mov_b32 v{T+8}, s{S_T0}")
        nxt = npre
        for n in range(9):
            a.wait_tag(f"q{n}")
            self.stamp(f"lq{n}", "l")
            a.barrier(f"q{n}")
            if n + 2 <= 8:
                self.issue(a, self.q_item_ops(n + 2), f"q{n+2}")
            if n == 6:
                while nxt <= min(4, max(self.opts.get("first", 2), npre + 2 if npre else 0)):
                    self.issue(a, self.unit_ops(nxt, "l"), f"u{nxt}"); nxt += 1
            if cls == 1 and n == 7:
                while nxt <= min(5, npre + 2):
                    self.issue(a, self.unit_ops(nxt, "l"), f"u{nxt}"); nxt += 1
            if cls == 1 and n == 8:
                while nxt <= min(7, npre + 2):
                    self.issue(a, self.unit_ops(nxt, "l"), f"u{nxt}"); nxt += 1
        a.barrier("x1")
        a.barrier("x2")
        wo_next = 0
        for i in range(17):
            target = 2 * i + 1 if i <= 13 else {14: 28, 15: 29, 16: 31}[i]
            a.wait_tag(f"u{target}")
            self.stamp(f"law{i}", "l")
            a.barrier(f"a{i}")
            lim = min(31, 2 * i + 1 + self.LA, 2 * i + 9 if i >= 1 else 9)
            while nxt <= lim:
                self.issue(a, self.unit_ops(nxt, "l"), f"u{nxt}"); nxt += 1
            if i == 6:
                a.vmop(f"buffer_load_dword v{L_RDY}, v{T+8}, {sr(SRD_DBG,4)}, 0 offen sc1", "rdy")
            if i == 8:
                a.wait_tag("rdy")
                a(f"v_readfirstlane_b32 s{S_RDYOK}, v{L_RDY}")
                lab = a.newlabel("L_tag")
                a("s_nop 3")
                a(f"s_cmp_eq_u32 s{S_RDYOK}, 0")
                a(f"s_cbranch_scc1 {lab}")
                a(f"v_mov_b32 v{T+1}, s{S_XCC}")
                a("s_mov_b64 exec, 1")
                a(f"buffer_store_dword v{T+1}, v{T+4}, {sr(SRD_WS,4)}, 0 offen sc1")
                a("s_mov_b64 exec, -1")
                a.label(lab)
            if i == 11:
                a.vmop(f"buffer_load_dword v{L_RDY+1}, v{T+6}, {sr(SRD_WS,4)}, 0 offen sc1", "xcc")
                if self.dpoll:
                    a(f"v_subrev_u32 v{T+9}, {WS_FLAG2}, v{T+7}")
                    a.vmop(f"buffer_load_dword v{L_RDY+2}, v{T+9}, {sr(SRD_WS,4)}, 0 offen sc1", "xcc")
            if i == 13:
                a.wait_tag("xcc")
                a(f"v_and_b32 v{L_RDY+1}, 0xffffff00, v{L_RDY+1}")
                a(f"v_cmp_eq_u32 vcc, s{S_XCC}, v{L_RDY+1}")
                a("s_nop 1")
                a(f"s_and_b32 s{S_T0}, vcc_lo, 0xf")
                a(f"s_cmp_eq_u32 s{S_T0}, 0xf")
                a(f"s_cselect_b32 s{S_FAST}, 1, 0")
                a(f"s_cmp_lg_u32 s{S_RDYOK}, 0")
                a(f"s_cselect_b32 s{S_FAST}, s{S_FAST}, 0")
                if not self.fast:
                    a(f"s_mov_b32 s{S_FAST}, 0")
                if self.dpoll:
                    a(f"v_cmp_ne_u32 vcc, 0, v{L_RDY+2}")
                    a("s_nop 1")
                    a(f"s_and_b32 s{S_T0}, vcc_lo, 0xff")
                    a(f"s_cmp_eq_u32 s{S_T0}, 0xff")
                    a(f"s_cselect_b32 s{S_FAST2}, 1, 0")
                    a(f"s_cmp_lg_u32 s{S_RDYOK}, 0")
                    a(f"s_cselect_b32 s{S_FAST2}, s{S_FAST2}, 0")
                else:
                    a(f"s_mov_b32 s{S_FAST2}, 0")
                a(f"v_mov_b32 v{T+10}, s{S_FAST}")
                a(f"v_mov_b32 v{T+11}, s{S_FAST2}")
                a(f"v_mov_b32 v{T+2}, {FAST_OFF}")
                a(f"ds_write_b64 v{T+2}, {vr(T+10,2)}")
                a("s_waitcnt lgkmcnt(0)")
            avail = {14: 2, 15: 4, 16: 7}.get(i, -1)
            if nxt > 31:
                while wo_next <= avail:
                    self.issue(a, self.wo_kstep_ops(wo_next), f"wo{wo_next}"); wo_next += 1
            if i == 15:
                a.wait_tag("u30")
                a.barrier("a15v")
        a.barrier("c2")
        while wo_next <= 11:
            self.issue(a, self.wo_kstep_ops(wo_next), f"wo{wo_next}"); wo_next += 1
        rok = a.newlabel("L_rok")
        a(f"s_cmp_lg_u32 s{S_RDYOK}, 0")
        a(f"s_cbranch_scc1 {rok}")
        self.l_poll(SRD_DBG, T + 8, 1, 1, cmp="ge")
        a.label(rok)
        a.barrier("c3")
        while wo_next <= 15:
            self.issue(a, self.wo_kstep_ops(wo_next), f"wo{wo_next}"); wo_next += 1
        a.wait_tag("wo11")
        self.stamp("lwo", "l")
        a.barrier("e1")
        self.l_signal(T + 4, fastable=True)
        self.l_poll(SRD_WS, T + 6, 4, 1, cmp="bit")
        a.barrier("e2")
        a.barrier("f1")
        self.l_signal(T + 5)
        if self.dpoll:
            lab = a.newlabel("L_lend")
            a(f"s_cmp_lg_u32 s{S_FAST2}, 0")
            a(f"s_cbranch_scc1 {lab}")
            self.l_poll(SRD_WS, T + 7, 8, 1, cmp="bit")
            a("s_barrier")
            a.label(lab)
        else:
            self.l_poll(SRD_WS, T + 7, 8, 1, cmp="bit")
            a.barrier("f2")
        if self.ts:
            self.write_stamps(a, "l", T)
        a("s_endpgm")

    def build(self):
        a = self.a
        self.prologue()
        self.stamp("pro")
        for n in range(9):
            self.q_step(n)
            self.stamp(f"q{n}")
        self.stamp("qend")
        self.qx_step()
        self.stamp("qx")
        for i in range(17):
            self.att_step(i)
            self.stamp(f"a{i}")
        self.stamp("att")
        self.combine()
        self.oproj()
        self.stamp("ex2")
        if self.ts:
            self.final("L_fin")
            a.label("L_fin")
            self.write_stamps(a, "c", V_T)
        else:
            self.final()
        a.label("L_end")
        a("s_endpgm")
        self.loader(0)
        assert self.a.bars == self.l.bars, (self.a.bars, self.l.bars)
        ltext = self.l.text()
        if self.opts.get("stag", 0):
            self.l = Asm("m")
            self.loader(1)
            assert self.a.bars == self.l.bars
            ltext = (f"    s_cmp_ge_u32 s{S_HH}, 2\n    s_cbranch_scc1 L_loader1\n" + ltext + self.l.text())
        self.ltext = ltext
        hdr = [
            "; fused GQA block: Q projection + attention + output projection (generated)",
            f"; @launch grid=(256,1,1) block=({64*NW},1,1) lds={LDS_BYTES}",
            '.amdgcn_target "amdgcn-amd-amdhsa--gfx950"',
            ".text",
            f".globl {KNAME}",
            ".p2align 8",
            f".type {KNAME},@function",
            f"{KNAME}:",
        ]
        ftr = [
            "L_codeend:",
            "    s_endpgm",
            '.section .rodata,"a"',
            ".p2align 6",
            f".amdhsa_kernel {KNAME}",
            "  .amdhsa_next_free_vgpr 256",
            "  .amdhsa_next_free_sgpr 102",
            f"  .amdhsa_accum_offset {ACC_OFF}",
            "  .amdhsa_group_segment_fixed_size 0",
            "  .amdhsa_kernarg_size 64",
            "  .amdhsa_user_sgpr_count 2",
            "  .amdhsa_user_sgpr_kernarg_segment_ptr 1",
            "  .amdhsa_system_sgpr_workgroup_id_x 1",
            ".end_amdhsa_kernel",
        ]
        body = a.text().replace("    @@LOADER@@\n", self.ltext)
        return "\n".join(hdr) + "\n" + body + "\n".join(ftr) + "\n"


if __name__ == "__main__":
    import argparse
    p = argparse.ArgumentParser()
    p.add_argument("-o", default="standalone__gqa_block_cached__near_ridge.s")
    p.add_argument("--ts", default=False)
    p.add_argument("--kvaux", default="nt")
    p.add_argument("--stamps", default=None)
    p.add_argument("--notouch", action="store_true")
    p.add_argument("--swap", action="store_true")
    p.add_argument("--la", type=int, default=5)
    p.add_argument("--early", type=int, default=0)
    p.add_argument("--nofast", action="store_true")
    p.add_argument("--opt", action="append", default=[])
    p.add_argument("--probe", default=None)
    p.add_argument("--mult", type=int, default=1)
    args = p.parse_args()
    if args.probe:
        args.ts = "probe"
        args.stamps = "start," + args.probe + ",end"
    g = Gen(ts=args.ts, opts=dict({"probe": args.probe, "mult": args.mult}, **{kv.split("=")[0]: int(kv.split("=")[1]) for kv in args.opt}), kvaux=args.kvaux, stampset=args.stamps.split(",") if args.stamps else None,
            touch=not args.notouch, LA=args.la, swap=args.swap, early=args.early, fast=not args.nofast)
    open(args.o, "w").write(g.build())
    print("written", args.o, len(g.a.L) + len(g.l.L), "lines", g.stampnames)
```

```python
import sys, math, struct

KNAME = "standalone__gqa_block_cached__near_ridge_kernel"

UNIT = 16384
LDS_BYTES = 163840
QSLOT = [0, 24576, 49152]
QX_OFF = 65536
SCR_OFF = 65536
FAST2_OFF = 162820
FAST_OFF = 162816
STATS_OFF = 160768
WS_FLAG1 = 0
WS_FLAG2 = 32768
WS_O = 0x100000
WS_P = 0x800000
WS_TS = 0x2000000
PSTRIDE = 20480
C_SCALE = math.log2(math.e) / math.sqrt(128.0)
T_RESCALE = 8.0
NW = 5


def f32bits(x):
    return struct.unpack("<I", struct.pack("<f", x))[0]


def phys(u):
    return (5 + u) % 10


def kunit(i):
    return 0 if i == 0 else 2 * i - 1


def vunit(i):
    return 31 if i == 15 else 2 * i + 2


def unit_desc(u):
    if u == 0:
        return ("K", 0)
    if u == 31:
        return ("V", 15)
    if u & 1:
        return ("K", (u + 1) // 2)
    return ("V", (u - 2) // 2)


def wo_lds(t):
    return 114688 + 9216 * t if t < 5 else 9216 * (t - 5)


class Asm:
    def __init__(self, pfx):
        self.L = []
        self.vm = []
        self.nlabel = 0
        self.pfx = pfx
        self.nbar = 0

    def __call__(self, s):
        self.L.append("    " + s)

    def label(self, name):
        self.L.append(name + ":")

    def c(self, s):
        self.L.append("    ; " + s)

    def newlabel(self, p="L"):
        self.nlabel += 1
        return f"{p}_{self.pfx}{self.nlabel}"

    def vmop(self, s, tag):
        self(s)
        self.vm.append(tag)

    def wait_tag(self, tag):
        idx = [i for i, t in enumerate(self.vm) if t == tag]
        assert idx, tag
        n = min(len(self.vm) - 1 - idx[-1], 63)
        self(f"s_waitcnt vmcnt({n})")

    def barrier(self, name):
        self.nbar += 1
        self.bars = getattr(self, "bars", []) + [name]
        self(f"s_barrier        ; {name}")

    def text(self):
        return "\n".join(self.L) + "\n"


S_X, S_K, S_V, S_WQ, S_WO, S_OUT, S_DBG, S_WS = 4, 6, 8, 10, 12, 14, 16, 18
SRD_X, SRD_WQ, SRD_K, SRD_V, SRD_WO, SRD_WS, SRD_OUT, SRD_DBG = 20, 24, 28, 32, 36, 40, 44, 48
S_WAVE = 52
S_B = 53
S_J = 54
S_HH = 55
S_IDX = 56
S_T0, S_T1, S_T3 = 57, 58, 59
S_T2 = 64
S_SWAP = 61
S_W4K = 63
S_C = 66
S_THR = 67
S_SPIN = 68
S_FAST = 62
S_RDYOK = 71
S_XCC = 65
S_QB = 69
S_KS = 70
S_SLOT = 71
S_SAVE = 72
S_PC = 74
S_TS = 76

ACC_OFF = 152
V_LANE = 1
V_KA = 2
V_VA = 10
V_L16 = 14
V_TMAX = 15
V_MC = 16
V_L = 17
V_T = 18
V_QA = 30
V_QB = 31
V_CST, V_CSR, V_CW, V_CR, V_OST = 35, 36, 37, 38, 39
V_P = 40
V_P2 = 144
S_PEND = 60
S_FAST2 = 61
V_S = 48
V_O = 80
V_DK = 30
V_ACC = 80
V_E = 116
V_WOA = 136
A_Q = 0
A_K = 32
A_V = 64
A_OB = 0
A_W = 64
V_EKOFF = 80
V_EVOFF = 84
V_PFD = 88

L_KOFF = 2
L_VOFF = 6
L_WQOFF = 7
L_XOFF = 8
L_WOOFF = 10
L_T = 20
L_RDY = 32


def vr(b, n=1):
    return f"v{b}" if n == 1 else f"v[{b}:{b+n-1}]"


def ar(b, n=1):
    return f"a{b}" if n == 1 else f"a[{b}:{b+n-1}]"


def sr(b, n=1):
    return f"s{b}" if n == 1 else f"s[{b}:{b+n-1}]"


class Gen:
    def __init__(self, ts=False, kvaux="", stampset=None, touch=True, LA=5, swap=True, early=3, fast=True, opts=None):
        self.a = Asm("c")
        self.l = Asm("l")
        self.ts = ts
        self.nts = {"c": 0, "l": 0}
        self.kvaux = kvaux
        self.touch = touch
        self.LA = LA
        self.swap = swap
        self.fast = fast
        self.dpoll = bool((opts or {}).get('dpoll', 0))
        assert not swap, 'S_SWAP is shared with S_FAST2'
        self.waux = 'nt' if (opts or {}).get('wnt', 0) else ''
        self.early = early
        self.opts = opts or {}
        self.dbgsel = [0, 1, 2, 3, 4, 5, 6, 8]
        self.stampset = stampset or ["start", "qend", "qx", "att", "comb", "ex1", "oproj", "ex2", "end"]
        self.stampnames = {"c": [], "l": []}

    def stamp(self, name="end", who="c"):
        if not self.ts or name not in self.stampset:
            return
        a = self.a if who == "c" else self.l
        self.stampnames[who].append(name)
        r = S_TS + 2 * self.nts[who]
        assert r + 1 <= 101
        if self.opts.get("cyc") and name != "start" and name != "end":
            a(f"s_memtime {sr(r,2)}")
        else:
            a(f"s_memrealtime {sr(r,2)}")
        self.nts[who] += 1

    def bar(self, name):
        self.a.barrier(name)

    def q_item_ops(self, n):
        base = QSLOT[n % 3]
        g = []
        for j in range(16):
            pre = []
            if j % 4 == 0:
                pre.append(f"s_mov_b32 m0, {base + (j//4)*4096}")
            pre.append(f"s_mov_b32 s{S_T3}, {n*64*8192 + j*32768 - (j%4)*1024}")
            pre.append(f"buffer_load_dwordx4 v{L_WQOFF}, {sr(SRD_WQ,4)}, s{S_T3} offen offset:{(j%4)*1024} {self.waux} lds")
            g.append(pre)
        for j in range(8):
            pre = []
            if j % 4 == 0:
                pre.append(f"s_mov_b32 m0, {base + 16384 + (j//4)*4096}")
            pre.append(f"s_mov_b32 s{S_T3}, {128*n + j*9216 - (j%4)*1024}")
            pre.append(f"buffer_load_dwordx4 v{L_XOFF+(j&1)}, {sr(SRD_X,4)}, s{S_T3} offen offset:{(j%4)*1024} lds")
            g.append(pre)
        return g

    def unit_ops(self, u, who):
        kind, i = unit_desc(u)
        base = phys(u) * UNIT
        srd = SRD_K if kind == "K" else SRD_V
        aux = self.kvaux
        g = []
        if who == "l":
            for j in range(16):
                pre = []
                if j == 0 and self.swap:
                    pre.append(f"s_xor_b32 s{S_T2}, s{S_SWAP}, {i*16384}")
                if j % 4 == 0:
                    pre.append(f"s_mov_b32 m0, {base + (j//4)*4096}")
                    if self.swap:
                        pre.append(f"s_add_u32 s{S_T3}, s{S_T2}, {(j//4)*4096}")
                    else:
                        pre.append(f"s_mov_b32 s{S_T3}, {i*16384 + (j//4)*4096}")
                voff = L_KOFF + (j & 3) if kind == "K" else L_VOFF
                pre.append(f"buffer_load_dwordx4 v{voff}, {sr(srd,4)}, s{S_T3} offen offset:{(j%4)*1024} {aux} lds")
                g.append(pre)
        else:
            for jj in range(4):
                pre = []
                if jj == 0:
                    pre.append(f"s_add_u32 m0, s{S_W4K}, {base}")
                    if self.swap:
                        pre.append(f"s_xor_b32 s{S_T3}, s{S_SWAP}, {i*16384}")
                        pre.append(f"s_add_u32 s{S_T3}, s{S_T3}, s{S_W4K}")
                    else:
                        pre.append(f"s_add_u32 s{S_T3}, s{S_W4K}, {i*16384}")
                voff = V_EKOFF + jj if kind == "K" else V_EVOFF
                pre.append(f"buffer_load_dwordx4 v{voff}, {sr(srd,4)}, s{S_T3} offen offset:{jj*1024} {aux} lds")
                g.append(pre)
        return g

    def wo_kstep_ops(self, t):
        g = []
        base = wo_lds(t)
        for u in range(9):
            pre = []
            if u == 0:
                pre.append(f"s_add_u32 s{S_T3}, s{S_HH}, {t//4}")
                pre.append(f"s_and_b32 s{S_T3}, s{S_T3}, 3")
                pre.append(f"s_mul_i32 s{S_T3}, s{S_T3}, {4*36864}")
                if t % 4:
                    pre.append(f"s_add_u32 s{S_T3}, s{S_T3}, {(t%4)*36864}")
            if u % 4 == 0:
                pre.append(f"s_mov_b32 m0, {base + u*1024}")
                pre.append("s_nop 0")
            pre.append(f"buffer_load_dwordx4 v{L_WOOFF+u}, {sr(SRD_WO,4)}, s{S_T3} offen offset:{(u%4)*1024} {self.waux} lds")
            g.append(pre)
        return g

    @staticmethod
    def issue(a, groups, tag):
        for grp in groups:
            for s in grp[:-1]:
                a(s)
            a.vmop(grp[-1], tag)

    def dma_voffsets(self, a, T, koff, voff, wqoff=None, xoff=None):
        L = V_LANE
        a(f"v_lshrrev_b32 v{T}, 4, v{L}")
        a(f"v_and_b32 v{T+1}, 15, v{L}")
        a(f"v_lshlrev_b32 v{T+2}, 2, v{T}")
        a(f"v_xor_b32 v{T+2}, v{T+2}, v{T+1}")
        a(f"v_lshlrev_b32 v{T+2}, 4, v{T+2}")
        a(f"v_lshl_add_u32 v{voff}, v{T}, 8, v{T+2}")
        if wqoff is not None:
            a(f"v_lshl_add_u32 v{wqoff}, v{T}, 13, v{T+2}")
            a(f"v_lshrrev_b32 v{T+3}, 3, v{L}")
            a(f"v_and_b32 v{T+4}, 7, v{L}")
            a(f"v_mul_u32_u24 v{T+3}, 1152, v{T+3}")
            for e in range(2):
                a(f"v_add_u32 v{T+2}, {4*e}, v{T}")
                a(f"v_xor_b32 v{T+2}, v{T+2}, v{T+4}")
                a(f"v_lshl_add_u32 v{xoff+e}, v{T+2}, 4, v{T+3}")
        for jj in range(4):
            a(f"v_add_u32 v{T+2}, {4*jj}, v{T}")
            a(f"v_xor_b32 v{T+2}, v{T+2}, v{T+1}")
            a(f"v_lshlrev_b32 v{T+2}, 4, v{T+2}")
            a(f"v_lshl_add_u32 v{koff+jj}, v{T}, 8, v{T+2}")

    def prologue(self):
        a = self.a
        L, T = V_LANE, V_T
        a("s_cmp_ge_u32 s2, 256")
        a("s_cbranch_scc1 L_end")
        self.stamp("start")
        a("s_load_dwordx16 s[4:19], s[0:1], 0")
        a(f"s_getpc_b64 {sr(S_PC,2)}")
        a.label("L_pcbase")
        a(f"v_lshrrev_b32 v{T+1}, 6, v0")
        a(f"v_and_b32 v{L}, 63, v0")
        a(f"v_readfirstlane_b32 s{S_WAVE}, v{T+1}")
        a(f"s_and_b32 s{S_J}, s2, 7")
        a(f"s_lshr_b32 s{S_SLOT}, s2, 3")
        a(f"s_lshr_b32 s{S_B}, s{S_SLOT}, 2")
        a(f"s_and_b32 s{S_HH}, s{S_SLOT}, 3")
        a(f"s_lshl_b32 s{S_IDX}, s{S_B}, 5")
        a(f"s_lshl_b32 s{S_T1}, s{S_J}, 2")
        a(f"s_add_u32 s{S_IDX}, s{S_IDX}, s{S_T1}")
        a(f"s_add_u32 s{S_IDX}, s{S_IDX}, s{S_HH}")
        a(f"s_and_b32 s{S_SWAP}, s{S_HH}, 1")
        a(f"s_lshl_b32 s{S_SWAP}, s{S_SWAP}, 14")
        a(f"s_mul_i32 s{S_T0}, s{S_B}, 73728")
        a(f"s_lshl_b32 s{S_T1}, s{S_J}, 2")
        a(f"s_add_u32 s{S_T1}, s{S_T1}, s{S_HH}")
        a(f"s_lshl_b32 s{S_T1}, s{S_T1}, 8")
        a(f"s_lshl_b32 s{S_T2}, s{S_B}, 4")
        a(f"s_lshl_b32 s{S_T3}, s{S_J}, 1")
        a(f"s_add_u32 s{S_T2}, s{S_T2}, s{S_T3}")
        a(f"s_lshr_b32 s{S_T3}, s{S_HH}, 1")
        a(f"s_add_u32 s{S_T2}, s{S_T2}, s{S_T3}")
        a(f"s_lshl_b32 s{S_T2}, s{S_T2}, 18")
        a(f"s_mov_b32 s{SRD_X+2}, 73728")
        a(f"s_mov_b32 s{SRD_X+3}, 0x20000")
        a(f"s_sub_u32 s{SRD_WQ+2}, 4718592, s{S_T1}")
        a(f"s_mov_b32 s{SRD_WQ+3}, 0x20000")
        a(f"s_mov_b32 s{SRD_K+2}, 262144")
        a(f"s_mov_b32 s{SRD_K+3}, 0x20000")
        a(f"s_mov_b32 s{SRD_V+2}, 262144")
        a(f"s_mov_b32 s{SRD_V+3}, 0x20000")
        a(f"s_mov_b32 s{SRD_WS+2}, 0x10000000")
        a(f"s_mov_b32 s{SRD_WS+3}, 0x20000")
        if self.opts.get("inl", 1):
            a(f"s_cmp_eq_u32 s{S_WAVE}, 4")
            a(f"s_cbranch_scc1 L_ldr")
            a("s_waitcnt lgkmcnt(0)")
            self.touches(part="data")
            a("s_branch L_compute")
            a.label("L_ldr")
        else:
            a(f"s_cmp_lg_u32 s{S_WAVE}, 4")
            a(f"s_cbranch_scc1 L_compute")
        a("@@LOADER@@")
        a.label("L_compute")
        a(f"s_and_b32 s{S_QB}, s{S_WAVE}, 1")
        a(f"s_lshr_b32 s{S_KS}, s{S_WAVE}, 1")
        a(f"s_lshl_b32 s{S_W4K}, s{S_WAVE}, 12")
        a("s_waitcnt lgkmcnt(0)")
        self.srds(a)
        a(f"s_mov_b32 s{S_C}, {f32bits(C_SCALE):#x}")
        a(f"s_mov_b32 s{S_THR}, {f32bits(T_RESCALE):#x}")
        a(f"s_mov_b32 s{SRD_OUT}, s{S_OUT}")
        a(f"s_mov_b32 s{SRD_OUT+1}, s{S_OUT+1}")
        a(f"s_mov_b32 s{SRD_OUT+2}, 589824")
        a(f"s_mov_b32 s{SRD_OUT+3}, 0x20000")
        a(f"v_lshrrev_b32 v{T}, 4, v{L}")
        a(f"v_and_b32 v{T+1}, 15, v{L}")
        a(f"v_lshrrev_b32 v{T+2}, 2, v{T+1}")
        a(f"v_and_b32 v{T+3}, 3, v{L}")
        a(f"v_and_b32 v{T+4}, 1, v{T}")
        a(f"v_lshrrev_b32 v{T+5}, 1, v{T}")
        a(f"v_lshl_add_u32 v{T+6}, v{T+5}, 3, v{T+2}")
        a(f"v_lshlrev_b32 v{T+6}, 8, v{T+6}")
        a(f"v_xor_b32 v{T+7}, s{S_WAVE}, v{T+2}")
        a(f"v_lshl_add_u32 v{T+6}, v{T+7}, 6, v{T+6}")
        a(f"v_lshl_add_u32 v{T+6}, v{T+4}, 5, v{T+6}")
        a(f"v_and_b32 v{T+7}, 1, v{T+3}")
        a(f"v_lshl_add_u32 v{T+6}, v{T+7}, 4, v{T+6}")
        a(f"v_lshrrev_b32 v{T+7}, 1, v{T+3}")
        a(f"v_lshl_add_u32 v{V_QA}, v{T+7}, 3, v{T+6}")
        a(f"v_and_b32 v{T+8}, 31, v{L}")
        a(f"v_lshrrev_b32 v{T+9}, 5, v{L}")
        a(f"v_lshrrev_b32 v{T+10}, 1, v{T+8}")
        a(f"v_and_b32 v{T+10}, 7, v{T+10}")
        a(f"v_xor_b32 v{T+10}, v{T+10}, v{T+9}")
        a(f"v_lshlrev_b32 v{T+11}, 7, v{T+8}")
        a(f"v_add_u32 v{T+11}, 16384, v{T+11}")
        for s in range(4):
            a(f"v_xor_b32 v{T+9}, {2*s}, v{T+10}")
            a(f"v_lshl_add_u32 v{V_QB+s}, v{T+9}, 4, v{T+11}")
        a(f"v_lshlrev_b32 v{V_L16}, 4, v{L}")
        if self.opts.get("inl", 1):
            self.touches(part="reset")
        elif self.opts.get("p0", 0):
            self.bar("p0")
            self.touches()
        else:
            self.touches()
        self.att_consts()
        self.comb_consts()

    def touches(self, part="all"):
        a = self.a
        L, T = V_LANE, V_T
        if self.touch and part in ("all", "data"):
            a(f"v_and_b32 v{T}, 0x7f, v0")
            a(f"v_lshrrev_b32 v{T+1}, 3, v{T}")
            a(f"v_and_b32 v{T+2}, 7, v{T}")
            a(f"s_lshl_b32 s{S_SAVE}, s{S_SLOT}, 4")
            a(f"v_add_u32 v{T+1}, s{S_SAVE}, v{T+1}")
            lb = a.newlabel("L_tx"); lj = a.newlabel("L_tj")
            a(f"s_cmp_ge_u32 s{S_WAVE}, 2")
            a(f"s_cbranch_scc1 {lb}")
            a(f"v_add_u32 v{T+1}, 64, v{T+1}")
            a(f"v_lshlrev_b32 v{T+1}, 13, v{T+1}")
            a(f"v_lshl_add_u32 v{T+1}, v{T+2}, 7, v{T+1}")
            a(f"s_lshl_b32 s{S_SAVE}, s{S_J}, 10")
            a(f"v_add_u32 v{T+1}, s{S_SAVE}, v{T+1}")
            a(f"global_load_dword v{V_PFD}, v{T+1}, {sr(S_WQ,2)} {self.waux}")
            a(f"s_branch {lj}")
            a.label(lb)
            a(f"v_mul_u32_u24 v{T+1}, 1152, v{T+1}")
            a(f"v_lshl_add_u32 v{T+1}, v{T+2}, 7, v{T+1}")
            a(f"global_load_dword v{V_PFD}, v{T+1}, {sr(S_X,2)} offset:128")
            a.label(lj)
        if part in ("all", "reset"):
            self.flag_reset()
        if part in ("all", "data"):
            self.code_prefetch()

    def flag_reset(self):
        a = self.a
        L, T = V_LANE, V_T
        lab = a.newlabel("L_rst")
        a(f"s_and_b32 s{S_SPIN}, s{S_IDX}, 31")
        a(f"s_lshl_b32 s{S_SPIN}, s{S_SPIN}, 2")
        a(f"s_add_u32 s{S_SPIN}, s{S_SPIN}, s{S_WAVE}")
        a(f"s_cmp_lg_u32 s{S_SPIN}, 3")
        a(f"s_cbranch_scc1 {lab}")
        a(f"v_and_b32 v{T}, 31, v{L}")
        a(f"v_add_u32 v{T}, s{S_IDX}, v{T}")
        a(f"v_lshlrev_b32 v{T}, 7, v{T}")
        a(f"v_lshrrev_b32 v{T+1}, 5, v{L}")
        a(f"v_lshl_add_u32 v{T}, v{T+1}, 15, v{T}")
        a(f"v_mov_b32 v{T+1}, 0")
        a(f"buffer_store_dword v{T+1}, v{T}, {sr(SRD_WS,4)}, 0 offen sc1")
        a("s_waitcnt vmcnt(0)")
        a(f"s_mov_b32 s{SRD_DBG}, s{S_DBG}")
        a(f"s_mov_b32 s{SRD_DBG+1}, s{S_DBG+1}")
        a(f"s_mov_b32 s{SRD_DBG+2}, 256")
        a(f"s_mov_b32 s{SRD_DBG+3}, 0x20000")
        a(f"s_lshl_b32 s{S_SPIN}, s{S_B}, 2")
        a(f"v_mov_b32 v{T}, s{S_SPIN}")
        a(f"v_mov_b32 v{T+1}, 1")
        a("s_mov_b64 exec, 1")
        a(f"buffer_store_dword v{T+1}, v{T}, {sr(SRD_DBG,4)}, 0 offen sc1")
        a("s_mov_b64 exec, -1")
        a.label(lab)

    def code_prefetch(self):
        a = self.a
        L, T = V_LANE, V_T
        lab = a.newlabel("L_pf")
        a(f"s_cmp_lg_u32 s{S_WAVE}, 0")
        a(f"s_cbranch_scc1 {lab}")
        a(f"s_lshl_b32 s{S_SAVE}, s{S_SLOT}, 11")
        a(f"v_lshlrev_b32 v{T}, 7, v{L}")
        a(f"v_add_u32 v{T}, s{S_SAVE}, v{T}")
        a(f"s_mov_b32 s{S_SPIN}, L_codeend-L_pcbase")
        a(f"v_cmp_gt_u32 vcc, s{S_SPIN}, v{T}")
        a(f"s_and_b64 vcc, vcc, 0xffff")
        a(f"s_and_saveexec_b64 {sr(S_SAVE,2)}, vcc")
        a(f"s_cbranch_execz {lab}_r")
        a(f"global_load_dword v{V_PFD+1}, v{T}, {sr(S_PC,2)}")
        a.label(lab + "_r")
        a(f"s_mov_b64 exec, {sr(S_SAVE,2)}")
        a.label(lab)

    def srds(self, a):
        a(f"s_add_u32 s{SRD_X}, s{S_X}, s{S_T0}")
        a(f"s_addc_u32 s{SRD_X+1}, s{S_X+1}, 0")
        a(f"s_add_u32 s{SRD_WQ}, s{S_WQ}, s{S_T1}")
        a(f"s_addc_u32 s{SRD_WQ+1}, s{S_WQ+1}, 0")
        a(f"s_add_u32 s{SRD_K}, s{S_K}, s{S_T2}")
        a(f"s_addc_u32 s{SRD_K+1}, s{S_K+1}, 0")
        a(f"s_add_u32 s{SRD_V}, s{S_V}, s{S_T2}")
        a(f"s_addc_u32 s{SRD_V+1}, s{S_V+1}, 0")
        a(f"s_mov_b32 s{SRD_WS}, s{S_WS}")
        a(f"s_mov_b32 s{SRD_WS+1}, s{S_WS+1}")

    def att_consts(self):
        a = self.a
        L, T = V_LANE, V_T
        a.c("attention constants (register set 0 = LDS base 0)")
        a(f"v_lshrrev_b32 v{T}, 4, v{L}")
        a(f"v_and_b32 v{T+1}, 15, v{L}")
        a(f"v_lshrrev_b32 v{T+2}, 2, v{T+1}")
        a(f"v_and_b32 v{T+3}, 3, v{L}")
        a(f"v_and_b32 v{T+4}, 1, v{T}")
        a(f"v_lshrrev_b32 v{T+5}, 1, v{T}")
        a(f"v_lshl_add_u32 v{T+6}, v{T+5}, 2, v{T+2}")
        a(f"v_lshlrev_b32 v{T+6}, 8, v{T+6}")
        a(f"v_lshl_add_u32 v{T+6}, v{T+4}, 5, v{T+6}")
        a(f"v_lshl_add_u32 v{T+6}, v{T+3}, 3, v{T+6}")
        a(f"s_lshl_b32 s{S_T0}, s{S_KS}, 13")
        a(f"v_add_u32 v{T+6}, s{S_T0}, v{T+6}")
        a(f"s_lshl_b32 s{S_T1}, s{S_KS}, 1")
        for g in range(4):
            a(f"s_xor_b32 s{S_T2}, s{S_T1}, {g}")
            a(f"v_xor_b32 v{T+7}, s{S_T2}, v{T+2}")
            a(f"v_lshl_add_u32 v{V_VA+g}, v{T+7}, 6, v{T+6}")
        a(f"v_and_b32 v{T+8}, 31, v{L}")
        a(f"v_lshrrev_b32 v{T+9}, 5, v{L}")
        a(f"v_and_b32 v{T+10}, 15, v{T+8}")
        a(f"v_xor_b32 v{T+10}, v{T+10}, v{T+9}")
        a(f"v_lshlrev_b32 v{T+11}, 8, v{T+8}")
        a(f"v_add_u32 v{T+11}, s{S_T0}, v{T+11}")
        for s in range(8):
            a(f"v_xor_b32 v{T+9}, {2*s}, v{T+10}")
            a(f"v_lshl_add_u32 v{V_KA+s}, v{T+9}, 4, v{T+11}")
        self.kset = 0
        self.vset = 0

    def comb_consts(self):
        a = self.a
        L, T = V_LANE, V_T
        a.c("combine constants")
        a(f"v_lshlrev_b32 v{T}, 3, v{L}")
        a(f"s_lshl_b32 s{S_T0}, s{S_WAVE}, 9")
        a(f"s_add_u32 s{S_T0}, s{S_T0}, {STATS_OFF}")
        a(f"v_add_u32 v{V_CST}, s{S_T0}, v{T}")
        a(f"s_xor_b32 s{S_T1}, s{S_WAVE}, 2")
        a(f"s_lshl_b32 s{S_T0}, s{S_T1}, 9")
        a(f"s_add_u32 s{S_T0}, s{S_T0}, {STATS_OFF}")
        a(f"v_add_u32 v{V_CSR}, s{S_T0}, v{T}")
        a(f"s_lshl_b32 s{S_T0}, s{S_WAVE}, 13")
        a(f"s_add_u32 s{S_T0}, s{S_T0}, {SCR_OFF}")
        a(f"v_add_u32 v{V_CW}, s{S_T0}, v{V_L16}")
        a(f"s_lshl_b32 s{S_T0}, s{S_T1}, 13")
        a(f"s_add_u32 s{S_T0}, s{S_T0}, {SCR_OFF}")
        a(f"v_add_u32 v{V_CR}, s{S_T0}, v{V_L16}")
        a(f"v_and_b32 v{T}, 31, v{L}")
        a(f"v_lshrrev_b32 v{T+1}, 4, v{T}")
        a(f"v_lshlrev_b32 v{T+1}, 12, v{T+1}")
        a(f"v_and_b32 v{T+2}, 15, v{T}")
        a(f"v_lshl_add_u32 v{T+1}, v{T+2}, 4, v{T+1}")
        a(f"v_lshrrev_b32 v{T+2}, 5, v{L}")
        a(f"v_lshl_add_u32 v{T+1}, v{T+2}, 8, v{T+1}")
        a(f"s_lshl_b32 s{S_T0}, s{S_IDX}, 14")
        a(f"s_lshl_b32 s{S_T1}, s{S_QB}, 13")
        a(f"s_add_u32 s{S_T0}, s{S_T0}, s{S_T1}")
        a(f"s_lshl_b32 s{S_T1}, s{S_KS}, 11")
        a(f"s_add_u32 s{S_T0}, s{S_T0}, s{S_T1}")
        a(f"s_add_u32 s{S_T0}, s{S_T0}, {WS_O}")
        a(f"v_add_u32 v{V_OST}, s{S_T0}, v{T+1}")

    def early_schedule(self):
        return {1: 0, 3: 1, 5: 2} if self.early == 3 else ({2: 0, 5: 1} if self.early == 2 else ({} if self.early == 0 else {3: 0}))

    def q_mfmas(self, n):
        a = self.a
        A0 = 48 * (n & 1)
        out = []
        for s in range(4):
            for qb in range(2):
                src_c = vr(V_S+16*qb,16) if not (n == 0 and s == 0) else "0"
                out.append(f"v_mfma_f32_32x32x16_bf16 {vr(V_S+16*qb,16)}, {ar(A0+4*s,4)}, {ar(A0+16+8*s+4*qb,4)}, {src_c}")
        return out

    def q_step(self, n):
        a = self.a
        base = QSLOT[n % 3]
        A0 = 48 * (n & 1)
        a.c(f"---- Q step {n}")
        self.bar(f"q{n}")
        self.stamp(f"qb{n}")
        reads = []
        for s in range(4):
            reads.append(f"ds_read_b64_tr_b16 {ar(A0+4*s,2)}, v{V_QA} offset:{base+s*4096}")
            reads.append(f"ds_read_b64_tr_b16 {ar(A0+4*s+2,2)}, v{V_QA} offset:{base+s*4096+1024}")
            for qb in range(2):
                reads.append(f"ds_read_b128 {ar(A0+16+8*s+4*qb,4)}, v{V_QB+s} offset:{base+qb*4096}")
        mf = self.q_mfmas(n - 1) if n >= 1 else []
        es = self.early_schedule()
        dma = self.unit_ops(es[n], "c") if n in es else []
        ri = 0
        for k in range(8):
            for _ in range(2):
                a(reads[ri]); ri += 1
            if mf:
                a(mf[k])
            if dma and k % 2 == 1:
                self.issue(a, [dma[k // 2]], f"u{es[n]}")
        a("s_waitcnt lgkmcnt(0)")
        if n == 8:
            for m in self.q_mfmas(8):
                a(m)

    def qx_step(self):
        a = self.a
        T = V_T
        a.c("---- QX")
        if self.early == 0:
            a("s_waitcnt vmcnt(0)")
        self.bar("x1")
        a(f"s_lshl_b32 s{S_T0}, s{S_WAVE}, 11")
        a(f"s_add_u32 s{S_T0}, s{S_T0}, {QX_OFF}")
        a(f"v_add_u32 v{T}, s{S_T0}, v{V_L16}")
        a(f"s_lshl_b32 s{S_T0}, s{S_QB}, 13")
        a(f"s_add_u32 s{S_T0}, s{S_T0}, {QX_OFF}")
        a(f"v_add_u32 v{T+1}, s{S_T0}, v{V_L16}")
        a("s_nop 7")
        E = V_O + 16
        for qb in range(2):
            for half in range(2):
                for d in range(4):
                    src = V_S + 16 * qb + 8 * half + 2 * d
                    a(f"v_cvt_pk_bf16_f32 v{E+4*(2*qb+half)+d}, v{src}, v{src+1}")
        for qb in range(2):
            for half in range(2):
                a(f"ds_write_b128 v{T}, {vr(E+4*(2*qb+half),4)} offset:{qb*8192+half*1024}")
        a("s_waitcnt lgkmcnt(0)")
        self.bar("x2")
        for s in range(8):
            a(f"ds_read_b128 {ar(A_Q+4*s,4)}, v{T+1} offset:{s*1024}")
        a("s_waitcnt lgkmcnt(0)")

    def set_regs(self, which, want):
        a = self.a
        cur = self.kset if which == "K" else self.vset
        if cur == want:
            return
        d = (want - cur) * 65536
        base, n = (V_KA, 8) if which == "K" else (V_VA, 4)
        for k in range(n):
            if d > 0:
                a(f"v_add_u32 v{base+k}, {d:#x}, v{base+k}")
            else:
                a(f"v_subrev_u32 v{base+k}, {-d:#x}, v{base+k}")
        if which == "K":
            self.kset = want
        else:
            self.vset = want

    @staticmethod
    def pbuf(j):
        return V_P if (j & 1) == 0 else V_P2

    def softmax_valu(self, j, lo=0, hi=16):
        E = V_S + 16 * (j & 1)
        P = self.pbuf(j)
        fm = {k: f"v_fma_f32 v{E+k}, v{E+k}, s{S_C}, -v{V_MC}" for k in range(lo, hi)}
        ex = {k: f"v_exp_f32 v{E+k}, v{E+k}" for k in range(lo, hi)}
        D = min(3, hi - lo)
        seq = [fm[k] for k in range(lo, lo + D)]

        def consume(kk):
            out = []
            if j == 0 and kk == 0:
                out.append(f"v_mov_b32 v{V_L}, v{E+0}")
            else:
                out.append(f"v_add_f32 v{V_L}, v{V_L}, v{E+kk}")
            if kk & 1:
                out.append(f"v_cvt_pk_bf16_f32 v{P+kk//2}, v{E+kk-1}, v{E+kk}")
            return out
        for k in range(lo, hi):
            seq.append(ex[k])
            if k + D < hi:
                seq.append(fm[k + D])
            elif k > lo:
                pass
            if k > lo:
                seq += consume(k - 1)
        seq.append("s_nop 0")
        seq += consume(hi - 1)
        return seq

    def max_chain(self, i):
        Sc = V_S + 16 * (i & 1)
        TM = V_TMAX
        mx = [f"v_max3_f32 v{TM}, v{Sc}, v{Sc+1}, v{Sc+2}", f"v_max3_f32 v{V_T}, v{Sc+3}, v{Sc+4}, v{Sc+5}"]
        mx += [f"v_max3_f32 v{TM}, v{TM}, v{Sc+6}, v{Sc+7}", f"v_max3_f32 v{V_T}, v{V_T}, v{Sc+8}, v{Sc+9}"]
        mx += [f"v_max3_f32 v{TM}, v{TM}, v{Sc+10}, v{Sc+11}", f"v_max3_f32 v{V_T}, v{V_T}, v{Sc+12}, v{Sc+13}"]
        mx += [f"v_max3_f32 v{TM}, v{TM}, v{Sc+14}, v{Sc+15}", f"v_max_f32 v{TM}, v{TM}, v{V_T}"]
        mx += [f"v_mov_b32 v{V_T}, v{TM}", "s_nop 1", f"v_permlane32_swap_b32 v{TM}, v{V_T}", "s_nop 1",
               f"v_max_f32 v{TM}, v{TM}, v{V_T}", f"v_mul_f32 v{TM}, s{S_C}, v{TM}"]
        return mx

    def pstore_base(self, a, sreg):
        a(f"s_lshl_b32 s{sreg}, s{S_B}, 2")
        a(f"s_add_u32 s{sreg}, s{sreg}, s{S_HH}")
        a(f"s_lshl_b32 s{sreg}, s{sreg}, 3")
        a(f"s_add_u32 s{sreg}, s{sreg}, s{S_J}")
        a(f"s_mul_i32 s{sreg}, s{sreg}, {PSTRIDE}")
        a(f"s_mul_i32 s{S_T2}, s{S_WAVE}, 5120")
        a(f"s_add_u32 s{sreg}, s{sreg}, s{S_T2}")
        a(f"s_add_u32 s{sreg}, s{sreg}, {WS_P}")

    def k_reads(self, i):
        ku = phys(kunit(i)) * UNIT
        self.set_regs("K", ku // 65536)
        return [f"ds_read_b128 {ar(A_K+4*s,4)}, v{V_KA+s} offset:{ku % 65536}" for s in range(8)]

    def att_step(self, i):
        a = self.a
        assert self.early == 0
        N1 = self.opts.get("n1", 4)
        a.c(f"---- attention step {i}")
        has_s = i <= 15
        has_pv = i >= 1
        if has_pv:
            vu = phys(vunit(i - 1)) * UNIT
            self.set_regs("V", vu // 65536)
            vimm = vu % 65536
        if self.dpoll and 1 <= i <= 5:
            T = V_T
            p = i - 1
            self.pstore_base(a, S_T0)
            a(f"v_mov_b32 v{T+4}, -1")
            a(f"v_mov_b32 v{T+5}, -1")
            a(f"v_mov_b32 v{T+6}, -1")
            a(f"v_mov_b32 v{T+7}, -1")
            if p == 4:
                a(f"s_add_u32 s{S_T0}, s{S_T0}, 4096")
            a(f"buffer_store_dwordx4 {vr(T+4,4)}, v{V_L16}, {sr(SRD_WS,4)}, s{S_T0} offen offset:{(p%4)*1024} sc1")
        if i == 7 and self.dpoll:
            a("s_waitcnt vmcnt(0)")
        if i == 12 and self.touch:
            T = V_T
            lab = a.newlabel("L_wt")
            a(f"s_mul_i32 s{S_T0}, s{S_J}, 589824")
            a(f"s_mul_i32 s{S_T1}, s{S_SLOT}, {144*128}")
            a(f"s_add_u32 s{S_T0}, s{S_T0}, s{S_T1}")
            a(f"v_lshlrev_b32 v{T}, 7, v0")
            a(f"v_add_u32 v{T}, s{S_T0}, v{T}")
            a(f"v_cmp_gt_u32 vcc, 144, v0")
            a(f"s_and_saveexec_b64 {sr(S_SAVE,2)}, vcc")
            a(f"s_cbranch_execz {lab}")
            a(f"global_load_dword v{V_QB+3}, v{T}, {sr(S_WO,2)} {self.waux}")
            a.label(lab)
            a(f"s_mov_b64 exec, {sr(S_SAVE,2)}")
        if i == 0 or i == 15:
            kr0 = self.k_reads(i)
        self.stamp(f"aw{i}")
        self.bar(f"a{i}")
        self.stamp(f"ab{i}")
        if i == 16:
            return self.last_step(vimm)
        Sc = V_S + 16 * (i & 1)
        if i == 0 or i == 15:
            for r in kr0:
                a(r)
        if i == 0:
            a(f"s_mov_b32 s{S_PEND}, 0")
        vreads = []
        if has_pv:
            for s2 in range(2):
                for g in range(4):
                    for x in range(2):
                        vreads.append(f"ds_read_b64_tr_b16 {ar(A_V+16*s2+4*g+2*x,2)}, v{V_VA+g} offset:{vimm+s2*4096+x*2048}")
        valu = self.softmax_valu(i - 1, N1, 16) if has_pv else []
        per = (len(valu) + 7) // 8
        vi = 0
        if i == 15:
            for _ in range(12):
                a(valu[vi]); vi += 1
            per = (len(valu) - vi + 7) // 8
        for s in range(8):
            if i == 0 or i == 15:
                a(f"s_waitcnt lgkmcnt({7-s})")
            srcc = "0" if s == 0 else vr(Sc,16)
            a(f"v_mfma_f32_32x32x16_bf16 {vr(Sc,16)}, {ar(A_K+4*s,4)}, {ar(A_Q+4*s,4)}, {srcc}")
            if i != 15:
                for r in vreads[2*s:2*s+2]:
                    a(r)
            for _ in range(per):
                if vi < len(valu):
                    a(valu[vi]); vi += 1
        assert vi >= len(valu)
        kr = self.k_reads(i + 1) if i + 1 <= 14 else []
        mx = self.max_chain(i)
        P1 = self.softmax_valu(i, 0, N1 if i < 15 else 16)
        lab = a.newlabel("L_nors")

        def check():
            if i == 0:
                a(f"v_mov_b32 v{V_MC}, v{V_TMAX}")
                return
            a(f"v_sub_f32 v{V_T}, v{V_TMAX}, v{V_MC}")
            a(f"v_cmp_lt_f32 vcc, s{S_THR}, v{V_T}")
            a(f"s_cbranch_vccz {lab}")
            a(f"v_max_f32 v{V_T}, v{V_TMAX}, v{V_MC}")
            a(f"v_sub_f32 v{V_T+1}, v{V_MC}, v{V_T}")
            a(f"v_exp_f32 v{V_T+1}, v{V_T+1}")
            a(f"v_mov_b32 v{V_MC}, v{V_T}")
            a(f"s_mov_b32 s{S_PEND}, 1")
            a(f"v_mul_f32 v{V_L}, v{V_L}, v{V_T+1}")
            a.label(lab)

        if i == 15:
            P = self.pbuf(14)
            mfs = [f"v_mfma_f32_32x32x16_bf16 {vr(V_O+16*g,16)}, {ar(A_V+16*s2+4*g,4)}, {vr(P+4*s2,4)}, {vr(V_O+16*g,16)}"
                   for s2 in range(2) for g in range(4)]
            a("s_nop 7"); a("s_nop 3")
            for s_ in mx:
                a(s_)
            check()
            self.bar("a15v")
            for r in vreads:
                a(r)
            pi = 0
            for _ in range(14):
                a(P1[pi]); pi += 1
            n = (len(P1) - pi + 7) // 8
            for k in range(8):
                a(f"s_waitcnt lgkmcnt({min(15, 2*(7-k))})")
                a(mfs[k])
                for _ in range(n):
                    if pi < len(P1):
                        a(P1[pi]); pi += 1
            assert pi >= len(P1)
            lab2 = a.newlabel("L_nopend")
            a(f"s_cmp_eq_u32 s{S_PEND}, 0")
            a(f"s_cbranch_scc1 {lab2}")
            a("s_nop 7"); a("s_nop 7")
            for k in range(64):
                a(f"v_mul_f32 v{V_O+k}, v{V_O+k}, v{V_T+1}")
            a(f"s_mov_b32 s{S_PEND}, 0")
            a("s_nop 1")
            a.label(lab2)
        elif has_pv:
            P = self.pbuf(i - 1)
            mfs = []
            for s2 in range(2):
                for g in range(4):
                    srcc = "0" if (i == 1 and s2 == 0) else vr(V_O+16*g,16)
                    mfs.append(f"v_mfma_f32_32x32x16_bf16 {vr(V_O+16*g,16)}, {ar(A_V+16*s2+4*g,4)}, {vr(P+4*s2,4)}, {srcc}")
            a("s_waitcnt lgkmcnt(0)")
            a(mfs[0])
            for r in kr[0:3]:
                a(r)
            a(mfs[1])
            for r in kr[3:6]:
                a(r)
            a(mfs[2])
            for r in kr[6:8]:
                a(r)
            if not kr:
                a("s_nop 6")
            for s_ in mx[0:5]:
                a(s_)
            a(mfs[3])
            for s_ in mx[5:10]:
                a(s_)
            a(mfs[4])
            for s_ in mx[10:]:
                a(s_)
            a(mfs[5])
            check()
            n = (len(P1) + 2) // 3 if i < 15 else 6
            pi = 0
            for _ in range(n):
                if pi < len(P1):
                    a(P1[pi]); pi += 1
            a(mfs[6])
            for _ in range(n):
                if pi < len(P1):
                    a(P1[pi]); pi += 1
            a(mfs[7])
            while pi < len(P1):
                a(P1[pi]); pi += 1
            lab2 = a.newlabel("L_nopend")
            a(f"s_cmp_eq_u32 s{S_PEND}, 0")
            a(f"s_cbranch_scc1 {lab2}")
            a("s_nop 7"); a("s_nop 7")
            for k in range(64):
                a(f"v_mul_f32 v{V_O+k}, v{V_O+k}, v{V_T+1}")
            a(f"s_mov_b32 s{S_PEND}, 0")
            a("s_nop 1")
            a.label(lab2)
        else:
            for r in kr:
                a(r)
            a("s_nop 3")
            for s_ in mx:
                a(s_)
            check()
            for s_ in P1:
                a(s_)
        if i == 14:
            a(f"v_mov_b32 v{V_T}, {FAST_OFF}")
            a(f"ds_read_b64 {vr(V_T+2,2)}, v{V_T}")
            a("s_waitcnt lgkmcnt(0)")
            a(f"v_readfirstlane_b32 s{S_FAST}, v{V_T+2}")
            a(f"v_readfirstlane_b32 s{S_FAST2}, v{V_T+3}")
        if i == 15:
            T = V_T
            a(f"v_mov_b32 v{T+3}, v{V_L}")
            a(f"v_mov_b32 v{T+2}, v{V_MC}")
            a("s_nop 0")
            a(f"v_permlane32_swap_b32 v{V_L}, v{T+3}")
            a("s_nop 1")
            a(f"v_add_f32 v{V_L}, v{V_L}, v{T+3}")
            a(f"v_mov_b32 v{T+3}, v{V_L}")
            a(f"ds_write_b64 v{V_CST}, {vr(T+2,2)}")
        a("s_waitcnt lgkmcnt(0)")

    def last_step(self, vimm):
        a = self.a
        T = V_T
        a(f"ds_read_b64 {vr(T+2,2)}, v{V_CSR}")
        order = [2, 3, 0, 1]
        for s2 in range(2):
            for g in order:
                for x in range(2):
                    a(f"ds_read_b64_tr_b16 {ar(A_V+16*s2+4*g+2*x,2)}, v{V_VA+g} offset:{vimm+s2*4096+x*2048}")
        a("s_waitcnt lgkmcnt(15)")
        a(f"v_max_f32 v{T+4}, v{V_MC}, v{T+2}")
        a(f"v_sub_f32 v{T+6}, v{V_MC}, v{T+4}")
        a(f"v_sub_f32 v{T+8}, v{T+2}, v{T+4}")
        a(f"v_exp_f32 v{T+6}, v{T+6}")
        a(f"v_exp_f32 v{T+8}, v{T+8}")
        a("s_nop 0")
        a(f"v_mul_f32 v{T+5}, v{T+6}, v{V_L}")
        a(f"v_fma_f32 v{T+5}, v{T+8}, v{T+3}, v{T+5}")
        a(f"v_rcp_f32 v{T+5}, v{T+5}")
        a("s_nop 0")
        a(f"v_mul_f32 v{T+6}, v{T+6}, v{T+5}")
        a(f"v_mul_f32 v{T+8}, v{T+8}, v{T+5}")
        a(f"v_mov_b32 v{T+7}, v{T+6}")
        a(f"v_mov_b32 v{T+9}, v{T+8}")
        k = 0
        for s2 in range(2):
            for g in order:
                a(f"s_waitcnt lgkmcnt({min(15, 2*(7-k))})")
                a(f"v_mfma_f32_32x32x16_bf16 {vr(V_O+16*g,16)}, {ar(A_V+16*s2+4*g,4)}, {vr(self.pbuf(15)+4*s2,4)}, {vr(V_O+16*g,16)}")
                k += 1

    def combine(self):
        a = self.a
        T = V_T
        E = V_S
        a.c("---- combine the two key halves, publish O")
        L = V_LANE
        a(f"v_lshrrev_b32 v{T+4}, 4, v{L}")
        a(f"v_lshrrev_b32 v{T+5}, 1, v{T+4}")
        a(f"v_lshlrev_b32 v{T+5}, 4, v{T+5}")
        a(f"v_and_b32 v{T+10}, 1, v{T+4}")
        a(f"v_lshl_add_u32 v{T+5}, v{T+10}, 2, v{T+5}")
        a(f"v_and_b32 v{T+10}, 15, v{L}")
        a(f"v_lshrrev_b32 v{T+10}, 2, v{T+10}")
        a(f"v_add_u32 v{T+5}, v{T+5}, v{T+10}")
        a(f"v_mul_u32_u24 v{T+5}, 288, v{T+5}")
        a(f"v_and_b32 v{T+10}, 3, v{L}")
        a(f"v_lshl_add_u32 v{V_QA}, v{T+10}, 3, v{T+5}")
        a(f"v_add_u32 v{V_QA+1}, 0x10000, v{V_QA}")
        a(f"v_add_u32 v{V_QA+2}, 0x20000, v{V_QA}")
        for u in range(8):
            a(f"ds_write_b128 v{V_CW}, {vr(V_O+32+4*u,4)} offset:{u*1024}")
        for k in range(16):
            a(f"v_pk_mul_f32 {vr(V_O+2*k,2)}, {vr(V_O+2*k,2)}, {vr(T+6,2)}")
        a("s_waitcnt lgkmcnt(0)")
        self.bar("c2")
        self.stamp("c2")
        for u in range(8):
            a(f"ds_read_b128 {vr(V_O+32+4*u,4)}, v{V_CR} offset:{u*1024}")
        slow = a.newlabel("L_oslow"); join = a.newlabel("L_ojoin")

        def tail(aux, track):
            for u in range(8):
                a(f"s_waitcnt lgkmcnt({7-u})")
                for k in (2 * u, 2 * u + 1):
                    a(f"v_pk_fma_f32 {vr(V_O+2*k,2)}, {vr(V_O+32+2*k,2)}, {vr(T+8,2)}, {vr(V_O+2*k,2)}")
                for k in (2 * u, 2 * u + 1):
                    a(f"v_cvt_pk_bf16_f32 v{E+k}, v{V_O+2*k}, v{V_O+2*k+1}")
                if u & 1:
                    g, uu = (u >> 2), (u >> 1) & 1
                    ins = f"buffer_store_dwordx4 {vr(E+8*g+4*uu,4)}, v{V_OST}, {sr(SRD_WS,4)}, 0 offen offset:{g*1024+uu*512} {aux}"
                    if track:
                        a.vmop(ins, "ostore")
                    else:
                        a(ins)
        if self.fast:
            a(f"s_cmp_eq_u32 s{S_FAST}, 0")
            a(f"s_cbranch_scc1 {slow}")
            tail("", False)
            a(f"s_branch {join}")
            a.label(slow)
            tail("sc1", True)
            a.label(join)
        else:
            tail("sc1", True)
        self.bar("c3")
        self.stamp("ost")
        a(f"s_and_b32 s{S_T0}, s{S_IDX}, 0xfc")
        a(f"s_lshl_b32 s{S_T0}, s{S_T0}, 14")
        a(f"s_add_u32 s{S_T0}, s{S_T0}, s{S_W4K}")
        a(f"s_add_u32 s{S_T0}, s{S_T0}, {WS_O}")
        a(f"s_lshl_b32 s{S_T1}, s{S_HH}, 14")
        a(f"s_add_u32 s{S_T1}, s{S_T1}, s{S_T0}")
        a("s_waitcnt vmcnt(0)")
        self.stamp("ostack")
        self.bar("e1")
        self.stamp("e1")

    def oproj(self):
        a = self.a
        T = V_T
        WOA = V_QA
        a.c("---- O projection")
        for tp in range(4):
            a.vmop(f"buffer_load_dwordx4 {ar(A_OB+4*tp,4)}, v{V_L16}, {sr(SRD_WS,4)}, s{S_T1} offen offset:{tp*1024} sc1", f"ob{tp}")
        RING = 10
        AHEAD = 7
        seq = [(nb, t) for t in range(4) for nb in range(9)] + [(nb, t) for nb in range(9) for t in range(4, 16)]
        NOWN = 36

        def reads(k):
            nb, t = seq[k]
            out = []
            for x in range(2):
                off = wo_lds(t) + nb * 32 + x * 2304
                rs, imm = off // 65536, off % 65536
                out.append(f"ds_read_b64_tr_b16 {ar(A_W+4*(k%RING)+2*x,2)}, v{WOA+rs} offset:{imm}")
            return out
        issued = 0

        def issue_upto(k, limit):
            nonlocal issued
            while issued <= min(k, limit):
                for s_ in reads(issued):
                    a(s_)
                issued += 1
        issue_upto(AHEAD - 1, NOWN - 1)
        a(f"s_lshl_b32 s{S_T3}, s{S_B}, 2")
        a(f"s_add_u32 s{S_T3}, s{S_T3}, s{S_HH}")
        a(f"s_lshl_b32 s{S_T3}, s{S_T3}, 3")
        a(f"s_add_u32 s{S_T3}, s{S_T3}, s{S_J}")
        a(f"s_mul_i32 s{S_T3}, s{S_T3}, {PSTRIDE}")
        a(f"s_mul_i32 s{S_T2}, s{S_WAVE}, 5120")
        a(f"s_add_u32 s{S_T3}, s{S_T3}, s{S_T2}")
        a(f"s_add_u32 s{S_T3}, s{S_T3}, {WS_P}")
        a(f"v_mov_b32 v{V_E+18}, 0")
        a(f"v_mov_b32 v{V_E+19}, 0")
        seen_t = set()
        covered = -1
        NA = self.opts.get("na", 14)
        for k, (nb, t) in enumerate(seq):
            if k == NOWN:
                issue_upto(k + AHEAD - 1, len(seq) - 1)
            if k == NA:
                self.stamp("own")
                self.bar("e2")
                self.stamp("ex1")
                for i in range(1, 4):
                    a(f"s_add_u32 s{S_T1}, s{S_HH}, {i}")
                    a(f"s_and_b32 s{S_T1}, s{S_T1}, 3")
                    a(f"s_lshl_b32 s{S_T1}, s{S_T1}, 14")
                    a(f"s_add_u32 s{S_T1}, s{S_T1}, s{S_T0}")
                    for tp in range(4):
                        tt = 4 * i + tp
                        a.vmop(f"buffer_load_dwordx4 {ar(A_OB+4*tt,4)}, v{V_L16}, {sr(SRD_WS,4)}, s{S_T1} offen offset:{tp*1024} sc1", f"ob{tt}")
            if t not in seen_t:
                a.wait_tag(f"ob{t}")
                seen_t.add(t)
            if k == NOWN + 12:
                self.stamp("op16")
            G = self.opts.get("wgrp", 4)
            if k % G == 0:
                last = min(k + G - 1, issued - 1)
                outstanding_after = issued - 1 - last
                a(f"s_waitcnt lgkmcnt({min(2*outstanding_after, 15)})")
                covered = last
            elif k > covered:
                outstanding_after = issued - 1 - k
                a(f"s_waitcnt lgkmcnt({min(2*outstanding_after, 15)})")
                covered = k
            srcc = "0" if k < 9 else vr(V_ACC+4*nb,4)
            a(f"v_mfma_f32_16x16x32_bf16 {vr(V_ACC+4*nb,4)}, {ar(A_W+4*(k%RING),4)}, {ar(A_OB+4*t,4)}, {srcc}")
            lim = NOWN - 1 if k < NA else len(seq) - 1
            if k >= NA and k < NOWN:
                lim = len(seq) - 1
            issue_upto(k + AHEAD, lim)
            if k >= NOWN and t == 12 and nb >= 1:
                pb = nb - 1
                p, h = pb // 2, pb % 2
                a(f"v_cvt_pk_bf16_f32 v{V_E+4*p+2*h}, v{V_ACC+4*pb}, v{V_ACC+4*pb+1}")
                a(f"v_cvt_pk_bf16_f32 v{V_E+4*p+2*h+1}, v{V_ACC+4*pb+2}, v{V_ACC+4*pb+3}")
                if self.dpoll:
                    a(f"v_min_u32 v{V_E+4*p+2*h}, -2, v{V_E+4*p+2*h}")
                    a(f"v_min_u32 v{V_E+4*p+2*h+1}, -2, v{V_E+4*p+2*h+1}")
                if h == 1:
                    a.vmop(f"buffer_store_dwordx4 {vr(V_E+4*p,4)}, v{V_L16}, {sr(SRD_WS,4)}, s{S_T3} offen offset:{p*1024} sc1", "pstore")
        a("s_nop 7")
        a(f"v_cvt_pk_bf16_f32 v{V_E+16}, v{V_ACC+32}, v{V_ACC+33}")
        a(f"v_cvt_pk_bf16_f32 v{V_E+17}, v{V_ACC+34}, v{V_ACC+35}")
        if self.dpoll:
            a(f"v_min_u32 v{V_E+16}, -2, v{V_E+16}")
            a(f"v_min_u32 v{V_E+17}, -2, v{V_E+17}")
        a(f"s_add_u32 s{S_T3}, s{S_T3}, 4096")
        a.vmop(f"buffer_store_dwordx4 {vr(V_E+16,4)}, v{V_L16}, {sr(SRD_WS,4)}, s{S_T3} offen sc1", "pstore")
        self.stamp("oproj")

    def final(self, endlab="L_end"):
        a = self.a
        T = V_T
        R = V_S
        acc = V_O
        a.c("---- exchange 2 + final reduce")
        a(f"s_mul_i32 s{S_T0}, s{S_J}, 160")
        a(f"v_add_u32 v{T}, s{S_T0}, v0")
        a(f"v_lshlrev_b32 v{T+1}, 4, v{T}")
        a(f"v_mul_u32_u24 v{T+2}, 3277, v{T}")
        a(f"v_lshrrev_b32 v{T+2}, 20, v{T+2}")
        a(f"v_mul_u32_u24 v{T+3}, 320, v{T+2}")
        a(f"v_sub_u32 v{T+3}, v{T}, v{T+3}")
        a(f"v_lshrrev_b32 v{T+4}, 6, v{T+3}")
        a(f"v_and_b32 v{T+5}, 63, v{T}")
        a(f"v_and_b32 v{T+6}, 15, v{T+5}")
        a(f"v_lshl_add_u32 v{T+6}, v{T+2}, 4, v{T+6}")
        a(f"v_mul_u32_u24 v{T+6}, 1152, v{T+6}")
        a(f"v_lshrrev_b32 v{T+7}, 4, v{T+5}")
        a(f"v_lshlrev_b32 v{T+7}, 3, v{T+7}")
        a(f"v_lshl_add_u32 v{T+7}, v{T+4}, 6, v{T+7}")
        a(f"v_add_u32 v{T+6}, v{T+6}, v{T+7}")
        a(f"s_lshl_b32 s{S_T0}, s{S_B}, 2")
        a(f"s_add_u32 s{S_T0}, s{S_T0}, s{S_HH}")
        a(f"s_mul_i32 s{S_T0}, s{S_T0}, {8*PSTRIDE}")
        a(f"s_add_u32 s{S_T0}, s{S_T0}, {WS_P}")

        def loads():
            a(f"s_mov_b32 s{S_T1}, s{S_T0}")
            for jj in range(8):
                a(f"buffer_load_dwordx4 {vr(R+4*jj,4)}, v{T+1}, {sr(SRD_WS,4)}, s{S_T1} offen sc1")
                if jj < 7:
                    a(f"s_add_u32 s{S_T1}, s{S_T1}, {PSTRIDE}")
        have = a.newlabel("L_have")
        if self.dpoll:
            slow = a.newlabel("L_f2slow")
            a(f"s_cmp_eq_u32 s{S_FAST2}, 0")
            a(f"s_cbranch_scc1 {slow}")
            idle = a.newlabel("L_f2idle")
            a(f"v_cmp_gt_u32 vcc, 160, v0")
            a(f"s_and_saveexec_b64 {sr(S_SAVE,2)}, vcc")
            a(f"s_cbranch_execz {idle}")
            loads()
            a("s_waitcnt vmcnt(0)")
            a(f"s_mov_b64 exec, {sr(S_SAVE,2)}")
            self.bar("f1")
            a.nbar_skip = True
            a(f"v_cmp_gt_u32 vcc, 160, v0")
            a(f"s_and_b64 exec, exec, vcc")
            a(f"s_mov_b32 s{S_SPIN}, 0")
            lp = a.newlabel("L_dp")
            a.label(lp)
            a(f"v_max3_u32 v{T+8}, v{R}, v{R+1}, v{R+2}")
            for k in range(3, 31, 2):
                a(f"v_max3_u32 v{T+8}, v{T+8}, v{R+k}, v{R+k+1}")
            a(f"v_max_u32 v{T+8}, v{T+8}, v{R+31}")
            a(f"v_cmp_eq_u32 vcc, -1, v{T+8}")
            a(f"s_cbranch_vccz {have}")
            a(f"s_add_u32 s{S_SPIN}, s{S_SPIN}, 1")
            a(f"s_cmp_ge_u32 s{S_SPIN}, 0x4000")
            a(f"s_cbranch_scc1 {have}")
            loads()
            a("s_waitcnt vmcnt(0)")
            a(f"s_branch {lp}")
            a.label(idle)
            a(f"s_mov_b64 exec, {sr(S_SAVE,2)}")
            a("s_waitcnt vmcnt(0)")
            a("s_barrier")
            a(f"s_branch {endlab}")
            a.label(slow)
            a("s_waitcnt vmcnt(0)")
            a("s_barrier")
            a("s_barrier")
        else:
            a("s_waitcnt vmcnt(0)")
            self.stamp("pack")
            self.bar("f1")
            self.stamp("f1")
            self.bar("f2")
        self.stamp("ex2")
        a(f"v_cmp_gt_u32 vcc, 160, v0")
        a(f"s_and_saveexec_b64 {sr(S_SAVE,2)}, vcc")
        a(f"s_cbranch_execz {endlab}")
        loads()
        if self.dpoll:
            a("s_waitcnt vmcnt(0)")
        a.label(have)
        a(f"s_mul_i32 s{S_T0}, s{S_B}, 73728")
        a(f"s_mul_i32 s{S_T1}, s{S_HH}, 288")
        a(f"s_add_u32 s{S_T0}, s{S_T0}, s{S_T1}")
        a(f"s_mov_b32 s{S_T1}, 0xffff0000")
        for jj in range(8):
            if not self.dpoll:
                a(f"s_waitcnt vmcnt({7-jj})")
            for d in range(4):
                src = R + 4 * jj + d
                if jj == 0:
                    a(f"v_lshlrev_b32 v{acc+2*d}, 16, v{src}")
                    a(f"v_and_b32 v{acc+2*d+1}, s{S_T1}, v{src}")
                else:
                    tt = T + 8 + 2 * (d & 1)
                    a(f"v_lshlrev_b32 v{tt}, 16, v{src}")
                    a(f"v_and_b32 v{tt+1}, s{S_T1}, v{src}")
                    a(f"v_pk_add_f32 {vr(acc+2*d,2)}, {vr(acc+2*d,2)}, {vr(tt,2)}")
        for d in range(4):
            a(f"v_cvt_pk_bf16_f32 v{acc+8+d}, v{acc+2*d}, v{acc+2*d+1}")
        a(f"buffer_store_dwordx2 {vr(acc+8,2)}, v{T+6}, {sr(SRD_OUT,4)}, s{S_T0} offen")
        a(f"v_cmp_gt_u32 vcc, 4, v{T+4}")
        a(f"s_and_b64 exec, exec, vcc")
        a(f"s_cbranch_execz {endlab}")
        a(f"buffer_store_dwordx2 {vr(acc+10,2)}, v{T+6}, {sr(SRD_OUT,4)}, s{S_T0} offen offset:32")

    def write_stamps(self, a, who, T):
        self.stamp("end", who)
        a("s_mov_b64 exec, -1")
        a("s_waitcnt lgkmcnt(0)")
        if self.ts == "probe":
            if who == "l":
                return
            k = self.stampnames["c"].index(self.opts["probe"])
            e = self.stampnames["c"].index("end")
            a(f"s_sub_u32 s{S_T0}, s{S_TS+2*k}, s{S_TS}")
            a(f"s_mul_i32 s{S_T0}, s{S_T0}, {self.opts.get('mult',1)}")
            a(f"s_add_u32 s{S_T0}, s{S_T0}, s{S_TS+2*e}")
            lab = a.newlabel("L_spin")
            a.label(lab)
            a(f"s_memrealtime s[98:99]")
            a("s_waitcnt lgkmcnt(0)")
            a(f"s_sub_u32 s{S_T1}, s98, s{S_T0}")
            a(f"s_cmp_lt_i32 s{S_T1}, 0")
            a(f"s_cbranch_scc1 {lab}")
            return
        if self.ts == "dbg":
            if who == "l":
                return
            lab = a.newlabel("L_nots")
            a(f"s_cmp_lg_u32 s{S_WAVE}, 0")
            a(f"s_cbranch_scc1 {lab}")
            a(f"s_mov_b32 s{SRD_DBG}, s{S_DBG}")
            a(f"s_mov_b32 s{SRD_DBG+1}, s{S_DBG+1}")
            a(f"s_mov_b32 s{SRD_DBG+2}, 256")
            a(f"s_mov_b32 s{SRD_DBG+3}, 0x20000")
            a("s_mov_b64 exec, 1")
            for k, st in enumerate(self.dbgsel):
                if k == 0:
                    a(f"s_not_b32 s{S_T0}, s{S_TS+2*st}")
                    a(f"v_mov_b32 v{T+1}, s{S_T0}")
                else:
                    a(f"v_mov_b32 v{T+1}, s{S_TS+2*st}")
                a(f"v_mov_b32 v{T}, {32+4*k}")
                a(f"buffer_atomic_umax v{T+1}, v{T}, {sr(SRD_DBG,4)}, 0 offen sc1")
                a("s_nop 1")
            a.label(lab)
            return
        a(f"s_mul_i32 s{S_T0}, s2, {NW}")
        a(f"s_add_u32 s{S_T0}, s{S_T0}, s{S_WAVE}")
        a(f"s_lshl_b32 s{S_T0}, s{S_T0}, 6")
        a(f"s_add_u32 s{S_T0}, s{S_T0}, {WS_TS}")
        a(f"v_mov_b32 v{T}, s{S_T0}")
        a("s_mov_b64 exec, 1")
        for k in range(self.nts[who]):
            a(f"v_mov_b32 v{T+1}, s{S_TS+2*k}")
            a(f"buffer_store_dword v{T+1}, v{T}, {sr(SRD_WS,4)}, 0 offen offset:{4*k}")
            a("s_nop 1")

    def l_poll(self, srd, vaddr, nl, want, cmp="ge"):
        a = self.l
        T = L_T
        lab = a.newlabel("L_poll")
        done = a.newlabel("L_pdone")
        a(f"s_mov_b64 exec, {(1<<nl)-1:#x}")
        a(f"s_mov_b32 s{S_SPIN}, 0")
        a.label(lab)
        a(f"buffer_load_dword v{T+2}, v{vaddr}, {sr(srd,4)}, 0 offen sc1")
        a("s_waitcnt vmcnt(0)")
        if cmp == "bit":
            a(f"v_and_b32 v{T+2}, 1, v{T+2}")
        a(f"v_cmp_le_u32 vcc, {want}, v{T+2}")
        a(f"s_add_u32 s{S_SPIN}, s{S_SPIN}, 1")
        a("s_nop 2")
        a("s_cmp_eq_u64 vcc, exec")
        a(f"s_cbranch_scc1 {done}")
        a(f"s_cmp_lt_u32 s{S_SPIN}, 0x8000")
        a(f"s_cbranch_scc1 {lab}")
        a.label(done)
        a("s_mov_b64 exec, -1")

    def l_signal(self, vflag, fastable=False):
        a = self.l
        T = L_T
        a(f"s_or_b32 s{S_T0}, s{S_XCC}, 1")
        a(f"v_mov_b32 v{T+1}, s{S_T0}")
        a("s_mov_b64 exec, 1")
        if fastable and self.fast:
            slow = a.newlabel("L_fs"); join = a.newlabel("L_fj")
            a(f"s_cmp_eq_u32 s{S_FAST}, 0")
            a(f"s_cbranch_scc1 {slow}")
            a(f"buffer_store_dword v{T+1}, v{vflag}, {sr(SRD_WS,4)}, 0 offen")
            a(f"s_branch {join}")
            a.label(slow)
            a(f"buffer_store_dword v{T+1}, v{vflag}, {sr(SRD_WS,4)}, 0 offen sc1")
            a.label(join)
        else:
            a(f"buffer_store_dword v{T+1}, v{vflag}, {sr(SRD_WS,4)}, 0 offen sc1")
        a("s_mov_b64 exec, -1")

    def loader(self, cls=0):
        a = self.l
        T = L_T
        L = V_LANE
        npre = self.opts.get("npre", 5) if cls == 1 else 0
        a.label(f"L_loader{cls}")
        self.stampnames["l"] = []
        if self.ts:
            self.nts["l"] = 1 if "start" in self.stampset else 0
            if "start" in self.stampset:
                self.stampnames["l"].append("start")
        self.dma_voffsets(a, T, L_KOFF, L_VOFF, L_WQOFF, L_XOFF)
        a("s_waitcnt lgkmcnt(0)")
        self.srds(a)
        for u in range(npre):
            self.issue(a, self.unit_ops(u, "l"), f"u{u}")
        self.issue(a, self.q_item_ops(0), "q0")
        a(f"s_getreg_b32 s{S_XCC}, hwreg(HW_REG_XCC_ID)")
        a(f"s_and_b32 s{S_XCC}, s{S_XCC}, 0xff")
        a(f"s_add_u32 s{S_XCC}, s{S_XCC}, 1")
        a(f"s_lshl_b32 s{S_XCC}, s{S_XCC}, 8")
        self.issue(a, self.q_item_ops(1), "q1")
        if self.opts.get("p0", 0):
            a.barrier("p0")
        self.stamp("ldma0", "l")
        a(f"s_mul_i32 s{S_T0}, s{S_J}, 589824")
        a(f"s_mul_i32 s{S_T1}, s{S_HH}, 288")
        a(f"s_add_u32 s{S_T0}, s{S_T0}, s{S_T1}")
        a(f"s_add_u32 s{SRD_WO}, s{S_WO}, s{S_T0}")
        a(f"s_addc_u32 s{SRD_WO+1}, s{S_WO+1}, 0")
        a(f"s_sub_u32 s{SRD_WO+2}, 4718592, s{S_T0}")
        a(f"s_mov_b32 s{SRD_WO+3}, 0x20000")
        a(f"s_mov_b32 s{SRD_DBG}, s{S_DBG}")
        a(f"s_mov_b32 s{SRD_DBG+1}, s{S_DBG+1}")
        a(f"s_mov_b32 s{SRD_DBG+2}, 256")
        a(f"s_mov_b32 s{SRD_DBG+3}, 0x20000")
        for u in range(9):
            a(f"v_add_u32 v{T}, {64*u}, v{L}")
            a(f"v_mul_u32_u24 v{T+1}, 3641, v{T}")
            a(f"v_lshrrev_b32 v{T+1}, 16, v{T+1}")
            a(f"v_mul_u32_u24 v{T+2}, 18, v{T+1}")
            a(f"v_sub_u32 v{T+2}, v{T}, v{T+2}")
            a(f"v_mul_u32_u24 v{T+1}, 1152, v{T+1}")
            a(f"v_lshl_add_u32 v{T+1}, v{T+2}, 4, v{T+1}")
            a(f"v_subrev_u32 v{L_WOOFF+u}, {1024*(u%4)}, v{T+1}")
        a(f"s_lshl_b32 s{S_T0}, s{S_IDX}, 7")
        a(f"v_mov_b32 v{T+4}, s{S_T0}")
        a(f"v_add_u32 v{T+5}, {WS_FLAG2}, v{T+4}")
        a(f"s_and_b32 s{S_T0}, s{S_IDX}, 0xfc")
        a(f"v_add_u32 v{T+6}, s{S_T0}, v{L}")
        a(f"v_lshlrev_b32 v{T+6}, 7, v{T+6}")
        a(f"s_lshl_b32 s{S_T0}, s{S_B}, 5")
        a(f"s_add_u32 s{S_T0}, s{S_T0}, s{S_HH}")
        a(f"v_lshlrev_b32 v{T+7}, 2, v{L}")
        a(f"v_add_u32 v{T+7}, s{S_T0}, v{T+7}")
        a(f"v_lshlrev_b32 v{T+7}, 7, v{T+7}")
        a(f"v_add_u32 v{T+7}, {WS_FLAG2}, v{T+7}")
        a(f"s_lshl_b32 s{S_T0}, s{S_B}, 2")
        a(f"v_mov_b32 v{T+8}, s{S_T0}")
        nxt = npre
        for n in range(9):
            a.wait_tag(f"q{n}")
            self.stamp(f"lq{n}", "l")
            a.barrier(f"q{n}")
            if n + 2 <= 8:
                self.issue(a, self.q_item_ops(n + 2), f"q{n+2}")
            if n == 6:
                while nxt <= min(4, max(self.opts.get("first", 2), npre + 2 if npre else 0)):
                    self.issue(a, self.unit_ops(nxt, "l"), f"u{nxt}"); nxt += 1
            if cls == 1 and n == 7:
                while nxt <= min(5, npre + 2):
                    self.issue(a, self.unit_ops(nxt, "l"), f"u{nxt}"); nxt += 1
            if cls == 1 and n == 8:
                while nxt <= min(7, npre + 2):
                    self.issue(a, self.unit_ops(nxt, "l"), f"u{nxt}"); nxt += 1
        a.barrier("x1")
        a.barrier("x2")
        wo_next = 0
        for i in range(17):
            target = 2 * i + 1 if i <= 13 else {14: 28, 15: 29, 16: 31}[i]
            a.wait_tag(f"u{target}")
            self.stamp(f"law{i}", "l")
            a.barrier(f"a{i}")
            lim = min(31, 2 * i + 1 + self.LA, 2 * i + 9 if i >= 1 else 9)
            while nxt <= lim:
                self.issue(a, self.unit_ops(nxt, "l"), f"u{nxt}"); nxt += 1
            if i == 6:
                a.vmop(f"buffer_load_dword v{L_RDY}, v{T+8}, {sr(SRD_DBG,4)}, 0 offen sc1", "rdy")
            if i == 8:
                a.wait_tag("rdy")
                a(f"v_readfirstlane_b32 s{S_RDYOK}, v{L_RDY}")
                lab = a.newlabel("L_tag")
                a("s_nop 3")
                a(f"s_cmp_eq_u32 s{S_RDYOK}, 0")
                a(f"s_cbranch_scc1 {lab}")
                a(f"v_mov_b32 v{T+1}, s{S_XCC}")
                a("s_mov_b64 exec, 1")
                a(f"buffer_store_dword v{T+1}, v{T+4}, {sr(SRD_WS,4)}, 0 offen sc1")
                a("s_mov_b64 exec, -1")
                a.label(lab)
            if i == 11:
                a.vmop(f"buffer_load_dword v{L_RDY+1}, v{T+6}, {sr(SRD_WS,4)}, 0 offen sc1", "xcc")
                if self.dpoll:
                    a(f"v_subrev_u32 v{T+9}, {WS_FLAG2}, v{T+7}")
                    a.vmop(f"buffer_load_dword v{L_RDY+2}, v{T+9}, {sr(SRD_WS,4)}, 0 offen sc1", "xcc")
            if i == 13:
                a.wait_tag("xcc")
                a(f"v_and_b32 v{L_RDY+1}, 0xffffff00, v{L_RDY+1}")
                a(f"v_cmp_eq_u32 vcc, s{S_XCC}, v{L_RDY+1}")
                a("s_nop 1")
                a(f"s_and_b32 s{S_T0}, vcc_lo, 0xf")
                a(f"s_cmp_eq_u32 s{S_T0}, 0xf")
                a(f"s_cselect_b32 s{S_FAST}, 1, 0")
                a(f"s_cmp_lg_u32 s{S_RDYOK}, 0")
                a(f"s_cselect_b32 s{S_FAST}, s{S_FAST}, 0")
                if not self.fast:
                    a(f"s_mov_b32 s{S_FAST}, 0")
                if self.dpoll:
                    a(f"v_cmp_ne_u32 vcc, 0, v{L_RDY+2}")
                    a("s_nop 1")
                    a(f"s_and_b32 s{S_T0}, vcc_lo, 0xff")
                    a(f"s_cmp_eq_u32 s{S_T0}, 0xff")
                    a(f"s_cselect_b32 s{S_FAST2}, 1, 0")
                    a(f"s_cmp_lg_u32 s{S_RDYOK}, 0")
                    a(f"s_cselect_b32 s{S_FAST2}, s{S_FAST2}, 0")
                else:
                    a(f"s_mov_b32 s{S_FAST2}, 0")
                a(f"v_mov_b32 v{T+10}, s{S_FAST}")
                a(f"v_mov_b32 v{T+11}, s{S_FAST2}")
                a(f"v_mov_b32 v{T+2}, {FAST_OFF}")
                a(f"ds_write_b64 v{T+2}, {vr(T+10,2)}")
                a("s_waitcnt lgkmcnt(0)")
            avail = {14: 2, 15: 4, 16: 7}.get(i, -1)
            if nxt > 31:
                while wo_next <= avail:
                    self.issue(a, self.wo_kstep_ops(wo_next), f"wo{wo_next}"); wo_next += 1
            if i == 15:
                a.wait_tag("u30")
                a.barrier("a15v")
        a.barrier("c2")
        while wo_next <= 11:
            self.issue(a, self.wo_kstep_ops(wo_next), f"wo{wo_next}"); wo_next += 1
        rok = a.newlabel("L_rok")
        a(f"s_cmp_lg_u32 s{S_RDYOK}, 0")
        a(f"s_cbranch_scc1 {rok}")
        self.l_poll(SRD_DBG, T + 8, 1, 1, cmp="ge")
        a.label(rok)
        a.barrier("c3")
        while wo_next <= 15:
            self.issue(a, self.wo_kstep_ops(wo_next), f"wo{wo_next}"); wo_next += 1
        a.wait_tag("wo11")
        self.stamp("lwo", "l")
        a.barrier("e1")
        self.l_signal(T + 4, fastable=True)
        self.l_poll(SRD_WS, T + 6, 4, 1, cmp="bit")
        a.barrier("e2")
        a.barrier("f1")
        self.l_signal(T + 5)
        if self.dpoll:
            lab = a.newlabel("L_lend")
            a(f"s_cmp_lg_u32 s{S_FAST2}, 0")
            a(f"s_cbranch_scc1 {lab}")
            self.l_poll(SRD_WS, T + 7, 8, 1, cmp="bit")
            a("s_barrier")
            a.label(lab)
        else:
            self.l_poll(SRD_WS, T + 7, 8, 1, cmp="bit")
            a.barrier("f2")
        if self.ts:
            self.write_stamps(a, "l", T)
        a("s_endpgm")

    def build(self):
        a = self.a
        self.prologue()
        self.stamp("pro")
        for n in range(9):
            self.q_step(n)
            self.stamp(f"q{n}")
        self.stamp("qend")
        self.qx_step()
        self.stamp("qx")
        for i in range(17):
            self.att_step(i)
            self.stamp(f"a{i}")
        self.stamp("att")
        self.combine()
        self.oproj()
        self.stamp("ex2")
        if self.ts:
            self.final("L_fin")
            a.label("L_fin")
            self.write_stamps(a, "c", V_T)
        else:
            self.final()
        a.label("L_end")
        a("s_endpgm")
        self.loader(0)
        assert self.a.bars == self.l.bars, (self.a.bars, self.l.bars)
        ltext = self.l.text()
        if self.opts.get("stag", 0):
            self.l = Asm("m")
            self.loader(1)
            assert self.a.bars == self.l.bars
            ltext = (f"    s_cmp_ge_u32 s{S_HH}, 2\n    s_cbranch_scc1 L_loader1\n" + ltext + self.l.text())
        self.ltext = ltext
        hdr = [
            "; fused GQA block: Q projection + attention + output projection (generated)",
            f"; @launch grid=(256,1,1) block=({64*NW},1,1) lds={LDS_BYTES}",
            '.amdgcn_target "amdgcn-amd-amdhsa--gfx950"',
            ".text",
            f".globl {KNAME}",
            ".p2align 8",
            f".type {KNAME},@function",
            f"{KNAME}:",
        ]
        ftr = [
            "L_codeend:",
            "    s_endpgm",
            '.section .rodata,"a"',
            ".p2align 6",
            f".amdhsa_kernel {KNAME}",
            "  .amdhsa_next_free_vgpr 256",
            "  .amdhsa_next_free_sgpr 102",
            f"  .amdhsa_accum_offset {ACC_OFF}",
            "  .amdhsa_group_segment_fixed_size 0",
            "  .amdhsa_kernarg_size 64",
            "  .amdhsa_user_sgpr_count 2",
            "  .amdhsa_user_sgpr_kernarg_segment_ptr 1",
            "  .amdhsa_system_sgpr_workgroup_id_x 1",
            ".end_amdhsa_kernel",
        ]
        body = a.text().replace("    @@LOADER@@\n", self.ltext)
        return "\n".join(hdr) + "\n" + body + "\n".join(ftr) + "\n"


if __name__ == "__main__":
    import argparse
    p = argparse.ArgumentParser()
    p.add_argument("-o", default="standalone__gqa_block_cached__near_ridge.s")
    p.add_argument("--ts", default=False)
    p.add_argument("--kvaux", default="nt")
    p.add_argument("--stamps", default=None)
    p.add_argument("--notouch", action="store_true")
    p.add_argument("--swap", action="store_true")
    p.add_argument("--la", type=int, default=5)
    p.add_argument("--early", type=int, default=0)
    p.add_argument("--nofast", action="store_true")
    p.add_argument("--opt", action="append", default=[])
    p.add_argument("--probe", default=None)
    p.add_argument("--mult", type=int, default=1)
    args = p.parse_args()
    if args.probe:
        args.ts = "probe"
        args.stamps = "start," + args.probe + ",end"
    g = Gen(ts=args.ts, opts=dict({"probe": args.probe, "mult": args.mult}, **{kv.split("=")[0]: int(kv.split("=")[1]) for kv in args.opt}), kvaux=args.kvaux, stampset=args.stamps.split(",") if args.stamps else None,
            touch=not args.notouch, LA=args.la, swap=args.swap, early=args.early, fast=not args.nofast)
    open(args.o, "w").write(g.build())
    print("written", args.o, len(g.a.L) + len(g.l.L), "lines", g.stampnames)
```

```python
import sys, math, struct

KNAME = "standalone__gqa_block_cached__near_ridge_kernel"

UNIT = 16384
LDS_BYTES = 163840
QSLOT = [0, 24576, 49152]
QX_OFF = 65536
SCR_OFF = 65536
FAST2_OFF = 162820
FAST_OFF = 162816
STATS_OFF = 160768
WS_FLAG1 = 0
WS_FLAG2 = 32768
WS_O = 0x100000
WS_P = 0x800000
WS_TS = 0x2000000
PSTRIDE = 20480
C_SCALE = math.log2(math.e) / math.sqrt(128.0)
T_RESCALE = 8.0
NW = 5


def f32bits(x):
    return struct.unpack("<I", struct.pack("<f", x))[0]


def phys(u):
    return (5 + u) % 10


def kunit(i):
    return 0 if i == 0 else 2 * i - 1


def vunit(i):
    return 31 if i == 15 else 2 * i + 2


def unit_desc(u):
    if u == 0:
        return ("K", 0)
    if u == 31:
        return ("V", 15)
    if u & 1:
        return ("K", (u + 1) // 2)
    return ("V", (u - 2) // 2)


def wo_lds(t):
    return 114688 + 9216 * t if t < 5 else 9216 * (t - 5)


class Asm:
    def __init__(self, pfx):
        self.L = []
        self.vm = []
        self.nlabel = 0
        self.pfx = pfx
        self.nbar = 0

    def __call__(self, s):
        self.L.append("    " + s)

    def label(self, name):
        self.L.append(name + ":")

    def c(self, s):
        self.L.append("    ; " + s)

    def newlabel(self, p="L"):
        self.nlabel += 1
        return f"{p}_{self.pfx}{self.nlabel}"

    def vmop(self, s, tag):
        self(s)
        self.vm.append(tag)

    def wait_tag(self, tag):
        idx = [i for i, t in enumerate(self.vm) if t == tag]
        assert idx, tag
        n = min(len(self.vm) - 1 - idx[-1], 63)
        self(f"s_waitcnt vmcnt({n})")

    def barrier(self, name):
        self.nbar += 1
        self.bars = getattr(self, "bars", []) + [name]
        self(f"s_barrier        ; {name}")

    def text(self):
        return "\n".join(self.L) + "\n"


S_X, S_K, S_V, S_WQ, S_WO, S_OUT, S_DBG, S_WS = 4, 6, 8, 10, 12, 14, 16, 18
SRD_X, SRD_WQ, SRD_K, SRD_V, SRD_WO, SRD_WS, SRD_OUT, SRD_DBG = 20, 24, 28, 32, 36, 40, 44, 48
S_WAVE = 52
S_B = 53
S_J = 54
S_HH = 55
S_IDX = 56
S_T0, S_T1, S_T3 = 57, 58, 59
S_T2 = 64
S_SWAP = 61
S_W4K = 63
S_C = 66
S_THR = 67
S_SPIN = 68
S_FAST = 62
S_RDYOK = 71
S_XCC = 65
S_QB = 69
S_KS = 70
S_SLOT = 71
S_SAVE = 72
S_PC = 74
S_TS = 76

ACC_OFF = 152
V_LANE = 1
V_KA = 2
V_VA = 10
V_L16 = 14
V_TMAX = 15
V_MC = 16
V_L = 17
V_T = 18
V_QA = 30
V_QB = 31
V_CST, V_CSR, V_CW, V_CR, V_OST = 35, 36, 37, 38, 39
V_P = 40
V_P2 = 144
S_PEND = 60
S_FAST2 = 61
S_LFAST2 = 63
V_S = 48
V_O = 80
V_DK = 30
V_ACC = 80
V_E = 116
V_WOA = 136
A_Q = 0
A_K = 32
A_V = 64
A_OB = 0
A_W = 64
V_EKOFF = 80
V_EVOFF = 84
V_PFD = 88

L_KOFF = 2
L_VOFF = 6
L_WQOFF = 7
L_XOFF = 8
L_WOOFF = 10
L_T = 20
L_RDY = 32


def vr(b, n=1):
    return f"v{b}" if n == 1 else f"v[{b}:{b+n-1}]"


def ar(b, n=1):
    return f"a{b}" if n == 1 else f"a[{b}:{b+n-1}]"


def sr(b, n=1):
    return f"s{b}" if n == 1 else f"s[{b}:{b+n-1}]"


class Gen:
    def __init__(self, ts=False, kvaux="", stampset=None, touch=True, LA=5, swap=True, early=3, fast=True, opts=None):
        self.a = Asm("c")
        self.l = Asm("l")
        self.ts = ts
        self.nts = {"c": 0, "l": 0}
        self.kvaux = kvaux
        self.touch = touch
        self.LA = LA
        self.swap = swap or bool((opts or {}).get('rot', 0))
        self.hs = bool((opts or {}).get('hs', 0)) and not self.swap
        self.fast = fast
        self.dpoll = bool((opts or {}).get('dpoll', 0))
        self.waux = 'nt' if (opts or {}).get('wnt', 0) else ''
        self.early = early
        self.opts = opts or {}
        self.dbgsel = [0, 1, 2, 3, 4, 5, 6, 8]
        self.stampset = stampset or ["start", "qend", "qx", "att", "comb", "ex1", "oproj", "ex2", "end"]
        self.stampnames = {"c": [], "l": []}

    def stamp(self, name="end", who="c"):
        if not self.ts or name not in self.stampset:
            return
        a = self.a if who == "c" else self.l
        self.stampnames[who].append(name)
        r = S_TS + 2 * self.nts[who]
        assert r + 1 <= 101
        if self.opts.get("cyc") and name != "start" and name != "end":
            a(f"s_memtime {sr(r,2)}")
        else:
            a(f"s_memrealtime {sr(r,2)}")
        self.nts[who] += 1

    def bar(self, name):
        self.a.barrier(name)

    def q_item_ops(self, n):
        base = QSLOT[n % 3]
        g = []
        for j in range(16):
            pre = []
            if j % 4 == 0:
                pre.append(f"s_mov_b32 m0, {base + (j//4)*4096}")
            pre.append(f"s_mov_b32 s{S_T3}, {n*64*8192 + j*32768 - (j%4)*1024}")
            pre.append(f"buffer_load_dwordx4 v{L_WQOFF}, {sr(SRD_WQ,4)}, s{S_T3} offen offset:{(j%4)*1024} {self.waux} lds")
            g.append(pre)
        for j in range(8):
            pre = []
            if j % 4 == 0:
                pre.append(f"s_mov_b32 m0, {base + 16384 + (j//4)*4096}")
            pre.append(f"s_mov_b32 s{S_T3}, {128*n + j*9216 - (j%4)*1024}")
            pre.append(f"buffer_load_dwordx4 v{L_XOFF+(j&1)}, {sr(SRD_X,4)}, s{S_T3} offen offset:{(j%4)*1024} lds")
            g.append(pre)
        return g

    def unit_ops(self, u, who):
        kind, i = unit_desc(u)
        base = phys(u) * UNIT
        srd = SRD_K if kind == "K" else SRD_V
        aux = self.kvaux
        g = []
        if who == "l":
            for j in range(16):
                pre = []
                if j == 0 and self.swap:
                    pre.append(f"s_xor_b32 s{S_T2}, s{S_SWAP}, {i*16384}")
                if j % 4 == 0:
                    pre.append(f"s_mov_b32 m0, {base + (j//4)*4096}")
                    if self.swap:
                        pre.append(f"s_add_u32 s{S_T3}, s{S_T2}, {(j//4)*4096}")
                    else:
                        pre.append(f"s_mov_b32 s{S_T3}, {i*16384 + (j//4)*4096}")
                voff = L_KOFF + (j & 3) if kind == "K" else L_VOFF
                pre.append(f"buffer_load_dwordx4 v{voff}, {sr(srd,4)}, s{S_T3} offen offset:{(j%4)*1024} {aux} lds")
                g.append(pre)
        else:
            for jj in range(4):
                pre = []
                if jj == 0:
                    pre.append(f"s_add_u32 m0, s{S_W4K}, {base}")
                    if self.swap:
                        pre.append(f"s_xor_b32 s{S_T3}, s{S_SWAP}, {i*16384}")
                        pre.append(f"s_add_u32 s{S_T3}, s{S_T3}, s{S_W4K}")
                    else:
                        pre.append(f"s_add_u32 s{S_T3}, s{S_W4K}, {i*16384}")
                voff = V_EKOFF + jj if kind == "K" else V_EVOFF
                pre.append(f"buffer_load_dwordx4 v{voff}, {sr(srd,4)}, s{S_T3} offen offset:{jj*1024} {aux} lds")
                g.append(pre)
        return g

    def unit_half(self, u, h):
        kind, i = unit_desc(u)
        base = phys(u) * UNIT
        srd = SRD_K if kind == "K" else SRD_V
        g = []
        for jj in range(8):
            pre = []
            inner = h * 8192 + (jj // 4) * 4096
            if jj % 4 == 0:
                pre.append(f"s_xor_b32 m0, s{S_SWAP}, {base + inner}")
                pre.append(f"s_xor_b32 s{S_T3}, s{S_SWAP}, {i*16384 + inner}")
            voff = L_KOFF + (jj & 3) if kind == "K" else L_VOFF
            pre.append(f"buffer_load_dwordx4 v{voff}, {sr(srd,4)}, s{S_T3} offen offset:{(jj%4)*1024} {self.kvaux} lds")
            g.append(pre)
        return g

    def issue_units(self, a, units):
        if not self.hs:
            for u in units:
                self.issue(a, self.unit_ops(u, "l"), f"u{u}")
            return
        k = 0
        while k < len(units):
            grp = units[k:k + 2]
            for h in range(2):
                for u in grp:
                    self.issue(a, self.unit_half(u, h), f"u{u}")
            k += 2

    def unit_tail(self, u):
        ops = self.unit_ops(u, "l")
        tail = [list(g) for g in ops[8:]]
        if self.swap:
            kind, i = unit_desc(u)
            tail[0] = [f"s_xor_b32 s{S_T2}, s{S_SWAP}, {i*16384}"] + tail[0]
        return tail

    def wo_kstep_ops(self, t):
        g = []
        base = wo_lds(t)
        for u in range(9):
            pre = []
            if u == 0:
                pre.append(f"s_add_u32 s{S_T3}, s{S_HH}, {t//4}")
                pre.append(f"s_and_b32 s{S_T3}, s{S_T3}, 3")
                pre.append(f"s_mul_i32 s{S_T3}, s{S_T3}, {4*36864}")
                if t % 4:
                    pre.append(f"s_add_u32 s{S_T3}, s{S_T3}, {(t%4)*36864}")
            if u % 4 == 0:
                pre.append(f"s_mov_b32 m0, {base + u*1024}")
                pre.append("s_nop 0")
            pre.append(f"buffer_load_dwordx4 v{L_WOOFF+u}, {sr(SRD_WO,4)}, s{S_T3} offen offset:{(u%4)*1024} {self.waux} lds")
            g.append(pre)
        return g

    @staticmethod
    def issue(a, groups, tag):
        for grp in groups:
            for s in grp[:-1]:
                a(s)
            a.vmop(grp[-1], tag)

    def dma_voffsets(self, a, T, koff, voff, wqoff=None, xoff=None):
        L = V_LANE
        a(f"v_lshrrev_b32 v{T}, 4, v{L}")
        a(f"v_and_b32 v{T+1}, 15, v{L}")
        a(f"v_lshlrev_b32 v{T+2}, 2, v{T}")
        a(f"v_xor_b32 v{T+2}, v{T+2}, v{T+1}")
        a(f"v_lshlrev_b32 v{T+2}, 4, v{T+2}")
        a(f"v_lshl_add_u32 v{voff}, v{T}, 8, v{T+2}")
        if wqoff is not None:
            a(f"v_lshl_add_u32 v{wqoff}, v{T}, 13, v{T+2}")
            a(f"v_lshrrev_b32 v{T+3}, 3, v{L}")
            a(f"v_and_b32 v{T+4}, 7, v{L}")
            a(f"v_mul_u32_u24 v{T+3}, 1152, v{T+3}")
            for e in range(2):
                a(f"v_add_u32 v{T+2}, {4*e}, v{T}")
                a(f"v_xor_b32 v{T+2}, v{T+2}, v{T+4}")
                a(f"v_lshl_add_u32 v{xoff+e}, v{T+2}, 4, v{T+3}")
        for jj in range(4):
            a(f"v_add_u32 v{T+2}, {4*jj}, v{T}")
            a(f"v_xor_b32 v{T+2}, v{T+2}, v{T+1}")
            a(f"v_lshlrev_b32 v{T+2}, 4, v{T+2}")
            a(f"v_lshl_add_u32 v{koff+jj}, v{T}, 8, v{T+2}")

    def prologue(self):
        a = self.a
        L, T = V_LANE, V_T
        a("s_cmp_ge_u32 s2, 256")
        a("s_cbranch_scc1 L_end")
        self.stamp("start")
        a("s_load_dwordx16 s[4:19], s[0:1], 0")
        a(f"s_getpc_b64 {sr(S_PC,2)}")
        a.label("L_pcbase")
        a(f"v_lshrrev_b32 v{T+1}, 6, v0")
        a(f"v_and_b32 v{L}, 63, v0")
        a(f"v_readfirstlane_b32 s{S_WAVE}, v{T+1}")
        a(f"s_and_b32 s{S_J}, s2, 7")
        a(f"s_lshr_b32 s{S_SLOT}, s2, 3")
        a(f"s_lshr_b32 s{S_B}, s{S_SLOT}, 2")
        a(f"s_and_b32 s{S_HH}, s{S_SLOT}, 3")
        a(f"s_lshl_b32 s{S_IDX}, s{S_B}, 5")
        a(f"s_lshl_b32 s{S_T1}, s{S_J}, 2")
        a(f"s_add_u32 s{S_IDX}, s{S_IDX}, s{S_T1}")
        a(f"s_add_u32 s{S_IDX}, s{S_IDX}, s{S_HH}")
        rot = self.opts.get("rot", 0)
        if rot == 0:
            a(f"s_and_b32 s{S_SWAP}, s{S_HH}, 1")
        elif rot == 1:
            a(f"s_lshr_b32 s{S_SWAP}, s{S_SLOT}, 1")
            a(f"s_add_u32 s{S_SWAP}, s{S_SWAP}, s{S_J}")
            a(f"s_and_b32 s{S_SWAP}, s{S_SWAP}, 15")
        elif rot == 2:
            a(f"s_lshr_b32 s{S_SWAP}, s{S_SLOT}, 1")
            a(f"s_and_b32 s{S_SWAP}, s{S_SWAP}, 15")
        elif rot == 3:
            a(f"s_lshr_b32 s{S_SWAP}, s{S_SLOT}, 1")
            a(f"s_mul_i32 s{S_SWAP}, s{S_SWAP}, 5")
            a(f"s_mul_i32 s{S_T0}, s{S_J}, 3")
            a(f"s_add_u32 s{S_SWAP}, s{S_SWAP}, s{S_T0}")
            a(f"s_and_b32 s{S_SWAP}, s{S_SWAP}, 15")
        a(f"s_lshl_b32 s{S_SWAP}, s{S_SWAP}, {13 if self.hs else 14}")
        a(f"s_mul_i32 s{S_T0}, s{S_B}, 73728")
        a(f"s_lshl_b32 s{S_T1}, s{S_J}, 2")
        a(f"s_add_u32 s{S_T1}, s{S_T1}, s{S_HH}")
        a(f"s_lshl_b32 s{S_T1}, s{S_T1}, 8")
        a(f"s_lshl_b32 s{S_T2}, s{S_B}, 4")
        a(f"s_lshl_b32 s{S_T3}, s{S_J}, 1")
        a(f"s_add_u32 s{S_T2}, s{S_T2}, s{S_T3}")
        a(f"s_lshr_b32 s{S_T3}, s{S_HH}, 1")
        a(f"s_add_u32 s{S_T2}, s{S_T2}, s{S_T3}")
        a(f"s_lshl_b32 s{S_T2}, s{S_T2}, 18")
        a(f"s_mov_b32 s{SRD_X+2}, 73728")
        a(f"s_mov_b32 s{SRD_X+3}, 0x20000")
        a(f"s_sub_u32 s{SRD_WQ+2}, 4718592, s{S_T1}")
        a(f"s_mov_b32 s{SRD_WQ+3}, 0x20000")
        a(f"s_mov_b32 s{SRD_K+2}, 262144")
        a(f"s_mov_b32 s{SRD_K+3}, 0x20000")
        a(f"s_mov_b32 s{SRD_V+2}, 262144")
        a(f"s_mov_b32 s{SRD_V+3}, 0x20000")
        a(f"s_mov_b32 s{SRD_WS+2}, 0x10000000")
        a(f"s_mov_b32 s{SRD_WS+3}, 0x20000")
        if self.opts.get("inl", 1):
            a(f"s_cmp_eq_u32 s{S_WAVE}, 4")
            a(f"s_cbranch_scc1 L_ldr")
            a("s_waitcnt lgkmcnt(0)")
            self.touches(part="data")
            a("s_branch L_compute")
            a.label("L_ldr")
        else:
            a(f"s_cmp_lg_u32 s{S_WAVE}, 4")
            a(f"s_cbranch_scc1 L_compute")
        a("@@LOADER@@")
        a.label("L_compute")
        a(f"s_and_b32 s{S_QB}, s{S_WAVE}, 1")
        a(f"s_lshr_b32 s{S_KS}, s{S_WAVE}, 1")
        a(f"s_lshl_b32 s{S_W4K}, s{S_WAVE}, 12")
        a("s_waitcnt lgkmcnt(0)")
        self.srds(a)
        if self.opts.get("dpoll") == 2:
            self.pstore_base(a, S_T0)
            a(f"v_lshlrev_b32 v{T}, 4, v{L}")
            for k in range(4):
                a(f"v_mov_b32 v{T+4+k}, -1")
            for p in range(5):
                if p == 4:
                    a(f"s_add_u32 s{S_T0}, s{S_T0}, 4096")
                a(f"buffer_store_dwordx4 {vr(T+4,4)}, v{T}, {sr(SRD_WS,4)}, s{S_T0} offen offset:{(p%4)*1024} sc1")
            a("s_nop 1")
        a(f"s_mov_b32 s{S_C}, {f32bits(C_SCALE):#x}")
        a(f"s_mov_b32 s{S_THR}, {f32bits(T_RESCALE):#x}")
        a(f"s_mov_b32 s{SRD_OUT}, s{S_OUT}")
        a(f"s_mov_b32 s{SRD_OUT+1}, s{S_OUT+1}")
        a(f"s_mov_b32 s{SRD_OUT+2}, 589824")
        a(f"s_mov_b32 s{SRD_OUT+3}, 0x20000")
        a(f"v_lshrrev_b32 v{T}, 4, v{L}")
        a(f"v_and_b32 v{T+1}, 15, v{L}")
        a(f"v_lshrrev_b32 v{T+2}, 2, v{T+1}")
        a(f"v_and_b32 v{T+3}, 3, v{L}")
        a(f"v_and_b32 v{T+4}, 1, v{T}")
        a(f"v_lshrrev_b32 v{T+5}, 1, v{T}")
        a(f"v_lshl_add_u32 v{T+6}, v{T+5}, 3, v{T+2}")
        a(f"v_lshlrev_b32 v{T+6}, 8, v{T+6}")
        a(f"v_xor_b32 v{T+7}, s{S_WAVE}, v{T+2}")
        a(f"v_lshl_add_u32 v{T+6}, v{T+7}, 6, v{T+6}")
        a(f"v_lshl_add_u32 v{T+6}, v{T+4}, 5, v{T+6}")
        a(f"v_and_b32 v{T+7}, 1, v{T+3}")
        a(f"v_lshl_add_u32 v{T+6}, v{T+7}, 4, v{T+6}")
        a(f"v_lshrrev_b32 v{T+7}, 1, v{T+3}")
        a(f"v_lshl_add_u32 v{V_QA}, v{T+7}, 3, v{T+6}")
        a(f"v_and_b32 v{T+8}, 31, v{L}")
        a(f"v_lshrrev_b32 v{T+9}, 5, v{L}")
        a(f"v_lshrrev_b32 v{T+10}, 1, v{T+8}")
        a(f"v_and_b32 v{T+10}, 7, v{T+10}")
        a(f"v_xor_b32 v{T+10}, v{T+10}, v{T+9}")
        a(f"v_lshlrev_b32 v{T+11}, 7, v{T+8}")
        a(f"v_add_u32 v{T+11}, 16384, v{T+11}")
        for s in range(4):
            a(f"v_xor_b32 v{T+9}, {2*s}, v{T+10}")
            a(f"v_lshl_add_u32 v{V_QB+s}, v{T+9}, 4, v{T+11}")
        a(f"v_lshlrev_b32 v{V_L16}, 4, v{L}")
        if self.opts.get("inl", 1):
            self.touches(part="reset")
        elif self.opts.get("p0", 0):
            self.bar("p0")
            self.touches()
        else:
            self.touches()
        self.att_consts()
        self.comb_consts()

    def touches(self, part="all"):
        a = self.a
        L, T = V_LANE, V_T
        if self.touch and part in ("all", "data"):
            a(f"v_and_b32 v{T}, 0x7f, v0")
            a(f"v_lshrrev_b32 v{T+1}, 3, v{T}")
            a(f"v_and_b32 v{T+2}, 7, v{T}")
            a(f"s_lshl_b32 s{S_SAVE}, s{S_SLOT}, 4")
            a(f"v_add_u32 v{T+1}, s{S_SAVE}, v{T+1}")
            lb = a.newlabel("L_tx"); lj = a.newlabel("L_tj")
            a(f"s_cmp_ge_u32 s{S_WAVE}, 2")
            a(f"s_cbranch_scc1 {lb}")
            a(f"v_add_u32 v{T+1}, 64, v{T+1}")
            a(f"v_lshlrev_b32 v{T+1}, 13, v{T+1}")
            a(f"v_lshl_add_u32 v{T+1}, v{T+2}, 7, v{T+1}")
            a(f"s_lshl_b32 s{S_SAVE}, s{S_J}, 10")
            a(f"v_add_u32 v{T+1}, s{S_SAVE}, v{T+1}")
            a(f"global_load_dword v{V_PFD}, v{T+1}, {sr(S_WQ,2)} {self.waux}")
            if self.opts.get("xpf", 0):
                lx = a.newlabel("L_xpf")
                a(f"s_cmp_ge_u32 s{S_J}, 4")
                a(f"s_cbranch_scc1 {lx}")
                a(f"v_add_u32 v{T+3}, 4096, v{T+1}")
                a(f"global_load_dword v{V_PFD+2}, v{T+3}, {sr(S_WQ,2)}")
                a(f"s_cmp_lg_u32 s{S_WAVE}, 0")
                a(f"s_cbranch_scc1 {lx}")
                a(f"v_lshrrev_b32 v{T+3}, 3, v{L}")
                a(f"s_lshl_b32 s{S_SAVE}, s{S_SLOT}, 1")
                a(f"v_add_u32 v{T+3}, s{S_SAVE}, v{T+3}")
                a(f"v_lshlrev_b32 v{T+3}, 13, v{T+3}")
                a(f"v_and_b32 v{T+4}, 7, v{L}")
                a(f"v_lshl_add_u32 v{T+3}, v{T+4}, 7, v{T+3}")
                a(f"s_lshl_b32 s{S_SAVE}, s{S_J}, 10")
                a(f"s_add_u32 s{S_SAVE}, s{S_SAVE}, 4096")
                a(f"v_add_u32 v{T+3}, s{S_SAVE}, v{T+3}")
                a("s_mov_b64 exec, 0xffff")
                a(f"global_load_dword v{V_PFD+3}, v{T+3}, {sr(S_WQ,2)}")
                a("s_mov_b64 exec, -1")
                a.label(lx)
            a(f"s_branch {lj}")
            a.label(lb)
            a(f"v_mul_u32_u24 v{T+1}, 1152, v{T+1}")
            a(f"v_lshl_add_u32 v{T+1}, v{T+2}, 7, v{T+1}")
            a(f"global_load_dword v{V_PFD}, v{T+1}, {sr(S_X,2)} offset:128")
            a.label(lj)
        if part in ("all", "reset"):
            self.flag_reset()
        if part in ("all", "data"):
            self.code_prefetch()

    def flag_reset(self):
        a = self.a
        L, T = V_LANE, V_T
        lab = a.newlabel("L_rst")
        a(f"s_and_b32 s{S_SPIN}, s{S_IDX}, 31")
        a(f"s_lshl_b32 s{S_SPIN}, s{S_SPIN}, 2")
        a(f"s_add_u32 s{S_SPIN}, s{S_SPIN}, s{S_WAVE}")
        a(f"s_cmp_lg_u32 s{S_SPIN}, 3")
        a(f"s_cbranch_scc1 {lab}")
        a(f"v_and_b32 v{T}, 31, v{L}")
        a(f"v_add_u32 v{T}, s{S_IDX}, v{T}")
        a(f"v_lshlrev_b32 v{T}, 7, v{T}")
        a(f"v_lshrrev_b32 v{T+1}, 5, v{L}")
        a(f"v_lshl_add_u32 v{T}, v{T+1}, 15, v{T}")
        a(f"v_mov_b32 v{T+1}, 0")
        a(f"buffer_store_dword v{T+1}, v{T}, {sr(SRD_WS,4)}, 0 offen sc1")
        a("s_waitcnt vmcnt(0)")
        a(f"s_mov_b32 s{SRD_DBG}, s{S_DBG}")
        a(f"s_mov_b32 s{SRD_DBG+1}, s{S_DBG+1}")
        a(f"s_mov_b32 s{SRD_DBG+2}, 256")
        a(f"s_mov_b32 s{SRD_DBG+3}, 0x20000")
        a(f"s_lshl_b32 s{S_SPIN}, s{S_B}, 2")
        a(f"v_mov_b32 v{T}, s{S_SPIN}")
        a(f"v_mov_b32 v{T+1}, 1")
        a("s_mov_b64 exec, 1")
        a(f"buffer_store_dword v{T+1}, v{T}, {sr(SRD_DBG,4)}, 0 offen sc1")
        a("s_mov_b64 exec, -1")
        a.label(lab)

    def code_prefetch(self):
        a = self.a
        L, T = V_LANE, V_T
        lab = a.newlabel("L_pf")
        a(f"s_cmp_lg_u32 s{S_WAVE}, 0")
        a(f"s_cbranch_scc1 {lab}")
        a(f"s_lshl_b32 s{S_SAVE}, s{S_SLOT}, 11")
        a(f"v_lshlrev_b32 v{T}, 7, v{L}")
        a(f"v_add_u32 v{T}, s{S_SAVE}, v{T}")
        a(f"s_mov_b32 s{S_SPIN}, L_codeend-L_pcbase")
        a(f"v_cmp_gt_u32 vcc, s{S_SPIN}, v{T}")
        a(f"s_and_b64 vcc, vcc, 0xffff")
        a(f"s_and_saveexec_b64 {sr(S_SAVE,2)}, vcc")
        a(f"s_cbranch_execz {lab}_r")
        a(f"global_load_dword v{V_PFD+1}, v{T}, {sr(S_PC,2)}")
        a.label(lab + "_r")
        a(f"s_mov_b64 exec, {sr(S_SAVE,2)}")
        a.label(lab)

    def srds(self, a):
        a(f"s_add_u32 s{SRD_X}, s{S_X}, s{S_T0}")
        a(f"s_addc_u32 s{SRD_X+1}, s{S_X+1}, 0")
        a(f"s_add_u32 s{SRD_WQ}, s{S_WQ}, s{S_T1}")
        a(f"s_addc_u32 s{SRD_WQ+1}, s{S_WQ+1}, 0")
        a(f"s_add_u32 s{SRD_K}, s{S_K}, s{S_T2}")
        a(f"s_addc_u32 s{SRD_K+1}, s{S_K+1}, 0")
        a(f"s_add_u32 s{SRD_V}, s{S_V}, s{S_T2}")
        a(f"s_addc_u32 s{SRD_V+1}, s{S_V+1}, 0")
        a(f"s_mov_b32 s{SRD_WS}, s{S_WS}")
        a(f"s_mov_b32 s{SRD_WS+1}, s{S_WS+1}")

    def att_consts(self):
        a = self.a
        L, T = V_LANE, V_T
        a.c("attention constants (register set 0 = LDS base 0)")
        a(f"v_lshrrev_b32 v{T}, 4, v{L}")
        a(f"v_and_b32 v{T+1}, 15, v{L}")
        a(f"v_lshrrev_b32 v{T+2}, 2, v{T+1}")
        a(f"v_and_b32 v{T+3}, 3, v{L}")
        a(f"v_and_b32 v{T+4}, 1, v{T}")
        a(f"v_lshrrev_b32 v{T+5}, 1, v{T}")
        a(f"v_lshl_add_u32 v{T+6}, v{T+5}, 2, v{T+2}")
        a(f"v_lshlrev_b32 v{T+6}, 8, v{T+6}")
        a(f"v_lshl_add_u32 v{T+6}, v{T+4}, 5, v{T+6}")
        a(f"v_lshl_add_u32 v{T+6}, v{T+3}, 3, v{T+6}")
        a(f"s_lshl_b32 s{S_T0}, s{S_KS}, 13")
        a(f"v_add_u32 v{T+6}, s{S_T0}, v{T+6}")
        a(f"s_lshl_b32 s{S_T1}, s{S_KS}, 1")
        for g in range(4):
            a(f"s_xor_b32 s{S_T2}, s{S_T1}, {g}")
            a(f"v_xor_b32 v{T+7}, s{S_T2}, v{T+2}")
            a(f"v_lshl_add_u32 v{V_VA+g}, v{T+7}, 6, v{T+6}")
        a(f"v_and_b32 v{T+8}, 31, v{L}")
        a(f"v_lshrrev_b32 v{T+9}, 5, v{L}")
        a(f"v_and_b32 v{T+10}, 15, v{T+8}")
        a(f"v_xor_b32 v{T+10}, v{T+10}, v{T+9}")
        a(f"v_lshlrev_b32 v{T+11}, 8, v{T+8}")
        a(f"v_add_u32 v{T+11}, s{S_T0}, v{T+11}")
        for s in range(8):
            a(f"v_xor_b32 v{T+9}, {2*s}, v{T+10}")
            a(f"v_lshl_add_u32 v{V_KA+s}, v{T+9}, 4, v{T+11}")
        self.kset = 0
        self.vset = 0

    def comb_consts(self):
        a = self.a
        L, T = V_LANE, V_T
        a.c("combine constants")
        a(f"v_lshlrev_b32 v{T}, 3, v{L}")
        a(f"s_lshl_b32 s{S_T0}, s{S_WAVE}, 9")
        a(f"s_add_u32 s{S_T0}, s{S_T0}, {STATS_OFF}")
        a(f"v_add_u32 v{V_CST}, s{S_T0}, v{T}")
        a(f"s_xor_b32 s{S_T1}, s{S_WAVE}, 2")
        a(f"s_lshl_b32 s{S_T0}, s{S_T1}, 9")
        a(f"s_add_u32 s{S_T0}, s{S_T0}, {STATS_OFF}")
        a(f"v_add_u32 v{V_CSR}, s{S_T0}, v{T}")
        a(f"s_lshl_b32 s{S_T0}, s{S_WAVE}, 13")
        a(f"s_add_u32 s{S_T0}, s{S_T0}, {SCR_OFF}")
        a(f"v_add_u32 v{V_CW}, s{S_T0}, v{V_L16}")
        a(f"s_lshl_b32 s{S_T0}, s{S_T1}, 13")
        a(f"s_add_u32 s{S_T0}, s{S_T0}, {SCR_OFF}")
        a(f"v_add_u32 v{V_CR}, s{S_T0}, v{V_L16}")
        a(f"v_and_b32 v{T}, 31, v{L}")
        a(f"v_lshrrev_b32 v{T+1}, 4, v{T}")
        a(f"v_lshlrev_b32 v{T+1}, 12, v{T+1}")
        a(f"v_and_b32 v{T+2}, 15, v{T}")
        a(f"v_lshl_add_u32 v{T+1}, v{T+2}, 4, v{T+1}")
        a(f"v_lshrrev_b32 v{T+2}, 5, v{L}")
        a(f"v_lshl_add_u32 v{T+1}, v{T+2}, 8, v{T+1}")
        a(f"s_lshl_b32 s{S_T0}, s{S_IDX}, 14")
        a(f"s_lshl_b32 s{S_T1}, s{S_QB}, 13")
        a(f"s_add_u32 s{S_T0}, s{S_T0}, s{S_T1}")
        a(f"s_lshl_b32 s{S_T1}, s{S_KS}, 11")
        a(f"s_add_u32 s{S_T0}, s{S_T0}, s{S_T1}")
        a(f"s_add_u32 s{S_T0}, s{S_T0}, {WS_O}")
        a(f"v_add_u32 v{V_OST}, s{S_T0}, v{T+1}")

    def early_schedule(self):
        return {1: 0, 3: 1, 5: 2} if self.early == 3 else ({2: 0, 5: 1} if self.early == 2 else ({} if self.early == 0 else {3: 0}))

    def q_mfmas(self, n):
        a = self.a
        A0 = 48 * (n & 1)
        out = []
        for s in range(4):
            for qb in range(2):
                src_c = vr(V_S+16*qb,16) if not (n == 0 and s == 0) else "0"
                out.append(f"v_mfma_f32_32x32x16_bf16 {vr(V_S+16*qb,16)}, {ar(A0+4*s,4)}, {ar(A0+16+8*s+4*qb,4)}, {src_c}")
        return out

    def q_step(self, n):
        a = self.a
        base = QSLOT[n % 3]
        A0 = 48 * (n & 1)
        a.c(f"---- Q step {n}")
        self.bar(f"q{n}")
        self.stamp(f"qb{n}")
        reads = []
        for s in range(4):
            reads.append(f"ds_read_b64_tr_b16 {ar(A0+4*s,2)}, v{V_QA} offset:{base+s*4096}")
            reads.append(f"ds_read_b64_tr_b16 {ar(A0+4*s+2,2)}, v{V_QA} offset:{base+s*4096+1024}")
            for qb in range(2):
                reads.append(f"ds_read_b128 {ar(A0+16+8*s+4*qb,4)}, v{V_QB+s} offset:{base+qb*4096}")
        mf = self.q_mfmas(n - 1) if n >= 1 else []
        es = self.early_schedule()
        dma = self.unit_ops(es[n], "c") if n in es else []
        ri = 0
        for k in range(8):
            for _ in range(2):
                a(reads[ri]); ri += 1
            if mf:
                a(mf[k])
            if dma and k % 2 == 1:
                self.issue(a, [dma[k // 2]], f"u{es[n]}")
        a("s_waitcnt lgkmcnt(0)")
        if n == 8:
            for m in self.q_mfmas(8):
                a(m)

    def qx_step(self):
        a = self.a
        T = V_T
        a.c("---- QX")
        if self.early == 0:
            a("s_waitcnt vmcnt(0)")
        self.bar("x1")
        a(f"s_lshl_b32 s{S_T0}, s{S_WAVE}, 11")
        a(f"s_add_u32 s{S_T0}, s{S_T0}, {QX_OFF}")
        a(f"v_add_u32 v{T}, s{S_T0}, v{V_L16}")
        a(f"s_lshl_b32 s{S_T0}, s{S_QB}, 13")
        a(f"s_add_u32 s{S_T0}, s{S_T0}, {QX_OFF}")
        a(f"v_add_u32 v{T+1}, s{S_T0}, v{V_L16}")
        a("s_nop 7")
        E = V_O + 16
        for qb in range(2):
            for half in range(2):
                for d in range(4):
                    src = V_S + 16 * qb + 8 * half + 2 * d
                    a(f"v_cvt_pk_bf16_f32 v{E+4*(2*qb+half)+d}, v{src}, v{src+1}")
        for qb in range(2):
            for half in range(2):
                a(f"ds_write_b128 v{T}, {vr(E+4*(2*qb+half),4)} offset:{qb*8192+half*1024}")
        a("s_waitcnt lgkmcnt(0)")
        self.bar("x2")
        for s in range(8):
            a(f"ds_read_b128 {ar(A_Q+4*s,4)}, v{T+1} offset:{s*1024}")
        a("s_waitcnt lgkmcnt(0)")

    def set_regs(self, which, want):
        a = self.a
        cur = self.kset if which == "K" else self.vset
        if cur == want:
            return
        d = (want - cur) * 65536
        base, n = (V_KA, 8) if which == "K" else (V_VA, 4)
        for k in range(n):
            if d > 0:
                a(f"v_add_u32 v{base+k}, {d:#x}, v{base+k}")
            else:
                a(f"v_subrev_u32 v{base+k}, {-d:#x}, v{base+k}")
        if which == "K":
            self.kset = want
        else:
            self.vset = want

    @staticmethod
    def pbuf(j):
        return V_P if (j & 1) == 0 else V_P2

    def softmax_valu(self, j, lo=0, hi=16):
        E = V_S + 16 * (j & 1)
        P = self.pbuf(j)
        fm = {k: f"v_fma_f32 v{E+k}, v{E+k}, s{S_C}, -v{V_MC}" for k in range(lo, hi)}
        ex = {k: f"v_exp_f32 v{E+k}, v{E+k}" for k in range(lo, hi)}
        D = min(3, hi - lo)
        seq = [fm[k] for k in range(lo, lo + D)]

        def consume(kk):
            out = []
            if j == 0 and kk == 0:
                out.append(f"v_mov_b32 v{V_L}, v{E+0}")
            else:
                out.append(f"v_add_f32 v{V_L}, v{V_L}, v{E+kk}")
            if kk & 1:
                out.append(f"v_cvt_pk_bf16_f32 v{P+kk//2}, v{E+kk-1}, v{E+kk}")
            return out
        for k in range(lo, hi):
            seq.append(ex[k])
            if k + D < hi:
                seq.append(fm[k + D])
            elif k > lo:
                pass
            if k > lo:
                seq += consume(k - 1)
        seq.append("s_nop 0")
        seq += consume(hi - 1)
        return seq

    def max_chain(self, i):
        Sc = V_S + 16 * (i & 1)
        TM = V_TMAX
        mx = [f"v_max3_f32 v{TM}, v{Sc}, v{Sc+1}, v{Sc+2}", f"v_max3_f32 v{V_T}, v{Sc+3}, v{Sc+4}, v{Sc+5}"]
        mx += [f"v_max3_f32 v{TM}, v{TM}, v{Sc+6}, v{Sc+7}", f"v_max3_f32 v{V_T}, v{V_T}, v{Sc+8}, v{Sc+9}"]
        mx += [f"v_max3_f32 v{TM}, v{TM}, v{Sc+10}, v{Sc+11}", f"v_max3_f32 v{V_T}, v{V_T}, v{Sc+12}, v{Sc+13}"]
        mx += [f"v_max3_f32 v{TM}, v{TM}, v{Sc+14}, v{Sc+15}", f"v_max_f32 v{TM}, v{TM}, v{V_T}"]
        mx += [f"v_mov_b32 v{V_T}, v{TM}", "s_nop 1", f"v_permlane32_swap_b32 v{TM}, v{V_T}", "s_nop 1",
               f"v_max_f32 v{TM}, v{TM}, v{V_T}", f"v_mul_f32 v{TM}, s{S_C}, v{TM}"]
        return mx

    def pstore_base(self, a, sreg):
        a(f"s_lshl_b32 s{sreg}, s{S_B}, 2")
        a(f"s_add_u32 s{sreg}, s{sreg}, s{S_HH}")
        a(f"s_lshl_b32 s{sreg}, s{sreg}, 3")
        a(f"s_add_u32 s{sreg}, s{sreg}, s{S_J}")
        a(f"s_mul_i32 s{sreg}, s{sreg}, {PSTRIDE}")
        a(f"s_mul_i32 s{S_T2}, s{S_WAVE}, 5120")
        a(f"s_add_u32 s{sreg}, s{sreg}, s{S_T2}")
        a(f"s_add_u32 s{sreg}, s{sreg}, {WS_P}")

    def k_reads(self, i):
        ku = phys(kunit(i)) * UNIT
        self.set_regs("K", ku // 65536)
        return [f"ds_read_b128 {ar(A_K+4*s,4)}, v{V_KA+s} offset:{ku % 65536}" for s in range(8)]

    def att_step(self, i):
        a = self.a
        assert self.early == 0
        N1 = self.opts.get("n1", 4)
        a.c(f"---- attention step {i}")
        has_s = i <= 15
        has_pv = i >= 1
        if has_pv:
            vu = phys(vunit(i - 1)) * UNIT
            self.set_regs("V", vu // 65536)
            vimm = vu % 65536
        if self.dpoll and self.opts.get('dpoll') == 1 and 1 <= i <= 5:
            T = V_T
            p = i - 1
            self.pstore_base(a, S_T0)
            a(f"v_mov_b32 v{T+4}, -1")
            a(f"v_mov_b32 v{T+5}, -1")
            a(f"v_mov_b32 v{T+6}, -1")
            a(f"v_mov_b32 v{T+7}, -1")
            if p == 4:
                a(f"s_add_u32 s{S_T0}, s{S_T0}, 4096")
            a(f"buffer_store_dwordx4 {vr(T+4,4)}, v{V_L16}, {sr(SRD_WS,4)}, s{S_T0} offen offset:{(p%4)*1024} sc1")
        if i == 7 and self.dpoll and self.opts.get('dpoll') == 1:
            a("s_waitcnt vmcnt(0)")
        if i == 12 and self.touch:
            T = V_T
            lab = a.newlabel("L_wt")
            a(f"s_mul_i32 s{S_T0}, s{S_J}, 589824")
            a(f"s_mul_i32 s{S_T1}, s{S_SLOT}, {144*128}")
            a(f"s_add_u32 s{S_T0}, s{S_T0}, s{S_T1}")
            a(f"v_lshlrev_b32 v{T}, 7, v0")
            a(f"v_add_u32 v{T}, s{S_T0}, v{T}")
            a(f"v_cmp_gt_u32 vcc, 144, v0")
            a(f"s_and_saveexec_b64 {sr(S_SAVE,2)}, vcc")
            a(f"s_cbranch_execz {lab}")
            a(f"global_load_dword v{V_QB+3}, v{T}, {sr(S_WO,2)} {self.waux}")
            a.label(lab)
            a(f"s_mov_b64 exec, {sr(S_SAVE,2)}")
        if i == 0 or i == 15:
            kr0 = self.k_reads(i)
        self.stamp(f"aw{i}")
        self.bar(f"a{i}")
        self.stamp(f"ab{i}")
        if i == 16:
            return self.last_step(vimm)
        Sc = V_S + 16 * (i & 1)
        if i == 0 or i == 15:
            for r in kr0:
                a(r)
        if i == 0:
            a(f"s_mov_b32 s{S_PEND}, 0")
        vreads = []
        if has_pv:
            for s2 in range(2):
                for g in range(4):
                    for x in range(2):
                        vreads.append(f"ds_read_b64_tr_b16 {ar(A_V+16*s2+4*g+2*x,2)}, v{V_VA+g} offset:{vimm+s2*4096+x*2048}")
        valu = self.softmax_valu(i - 1, N1, 16) if has_pv else []
        per = (len(valu) + 7) // 8
        vi = 0
        if i == 15:
            for _ in range(12):
                a(valu[vi]); vi += 1
            per = (len(valu) - vi + 7) // 8
        for s in range(8):
            if i == 0 or i == 15:
                a(f"s_waitcnt lgkmcnt({7-s})")
            srcc = "0" if s == 0 else vr(Sc,16)
            a(f"v_mfma_f32_32x32x16_bf16 {vr(Sc,16)}, {ar(A_K+4*s,4)}, {ar(A_Q+4*s,4)}, {srcc}")
            if i != 15:
                for r in vreads[2*s:2*s+2]:
                    a(r)
            for _ in range(per):
                if vi < len(valu):
                    a(valu[vi]); vi += 1
        assert vi >= len(valu)
        kr = self.k_reads(i + 1) if i + 1 <= 14 else []
        mx = self.max_chain(i)
        P1 = self.softmax_valu(i, 0, N1 if i < 15 else 16)
        lab = a.newlabel("L_nors")

        def check():
            if i == 0:
                a(f"v_mov_b32 v{V_MC}, v{V_TMAX}")
                return
            a(f"v_sub_f32 v{V_T}, v{V_TMAX}, v{V_MC}")
            a(f"v_cmp_lt_f32 vcc, s{S_THR}, v{V_T}")
            a(f"s_cbranch_vccz {lab}")
            a(f"v_max_f32 v{V_T}, v{V_TMAX}, v{V_MC}")
            a(f"v_sub_f32 v{V_T+1}, v{V_MC}, v{V_T}")
            a(f"v_exp_f32 v{V_T+1}, v{V_T+1}")
            a(f"v_mov_b32 v{V_MC}, v{V_T}")
            a(f"s_mov_b32 s{S_PEND}, 1")
            a(f"v_mul_f32 v{V_L}, v{V_L}, v{V_T+1}")
            a.label(lab)

        if i == 15:
            P = self.pbuf(14)
            mfs = [f"v_mfma_f32_32x32x16_bf16 {vr(V_O+16*g,16)}, {ar(A_V+16*s2+4*g,4)}, {vr(P+4*s2,4)}, {vr(V_O+16*g,16)}"
                   for s2 in range(2) for g in range(4)]
            a("s_nop 7"); a("s_nop 3")
            for s_ in mx:
                a(s_)
            check()
            self.bar("a15v")
            for r in vreads:
                a(r)
            pi = 0
            for _ in range(14):
                a(P1[pi]); pi += 1
            n = (len(P1) - pi + 7) // 8
            for k in range(8):
                a(f"s_waitcnt lgkmcnt({min(15, 2*(7-k))})")
                a(mfs[k])
                for _ in range(n):
                    if pi < len(P1):
                        a(P1[pi]); pi += 1
            assert pi >= len(P1)
            lab2 = a.newlabel("L_nopend")
            a(f"s_cmp_eq_u32 s{S_PEND}, 0")
            a(f"s_cbranch_scc1 {lab2}")
            a("s_nop 7"); a("s_nop 7")
            for k in range(64):
                a(f"v_mul_f32 v{V_O+k}, v{V_O+k}, v{V_T+1}")
            a(f"s_mov_b32 s{S_PEND}, 0")
            a("s_nop 1")
            a.label(lab2)
        elif has_pv:
            P = self.pbuf(i - 1)
            mfs = []
            for s2 in range(2):
                for g in range(4):
                    srcc = "0" if (i == 1 and s2 == 0) else vr(V_O+16*g,16)
                    mfs.append(f"v_mfma_f32_32x32x16_bf16 {vr(V_O+16*g,16)}, {ar(A_V+16*s2+4*g,4)}, {vr(P+4*s2,4)}, {srcc}")
            a("s_waitcnt lgkmcnt(0)")
            a(mfs[0])
            for r in kr[0:3]:
                a(r)
            a(mfs[1])
            for r in kr[3:6]:
                a(r)
            a(mfs[2])
            for r in kr[6:8]:
                a(r)
            if not kr:
                a("s_nop 6")
            for s_ in mx[0:5]:
                a(s_)
            a(mfs[3])
            for s_ in mx[5:10]:
                a(s_)
            a(mfs[4])
            for s_ in mx[10:]:
                a(s_)
            a(mfs[5])
            check()
            n = (len(P1) + 2) // 3 if i < 15 else 6
            pi = 0
            for _ in range(n):
                if pi < len(P1):
                    a(P1[pi]); pi += 1
            a(mfs[6])
            for _ in range(n):
                if pi < len(P1):
                    a(P1[pi]); pi += 1
            a(mfs[7])
            while pi < len(P1):
                a(P1[pi]); pi += 1
            lab2 = a.newlabel("L_nopend")
            a(f"s_cmp_eq_u32 s{S_PEND}, 0")
            a(f"s_cbranch_scc1 {lab2}")
            a("s_nop 7"); a("s_nop 7")
            for k in range(64):
                a(f"v_mul_f32 v{V_O+k}, v{V_O+k}, v{V_T+1}")
            a(f"s_mov_b32 s{S_PEND}, 0")
            a("s_nop 1")
            a.label(lab2)
        else:
            for r in kr:
                a(r)
            a("s_nop 3")
            for s_ in mx:
                a(s_)
            check()
            for s_ in P1:
                a(s_)
        if i == 14:
            a(f"v_mov_b32 v{V_T}, {FAST_OFF}")
            a(f"ds_read_b64 {vr(V_T+2,2)}, v{V_T}")
            a("s_waitcnt lgkmcnt(0)")
            a(f"v_readfirstlane_b32 s{S_FAST}, v{V_T+2}")
            a(f"v_readfirstlane_b32 s{S_FAST2}, v{V_T+3}")
        if i == 15:
            T = V_T
            a(f"v_mov_b32 v{T+3}, v{V_L}")
            a(f"v_mov_b32 v{T+2}, v{V_MC}")
            a("s_nop 0")
            a(f"v_permlane32_swap_b32 v{V_L}, v{T+3}")
            a("s_nop 1")
            a(f"v_add_f32 v{V_L}, v{V_L}, v{T+3}")
            a(f"v_mov_b32 v{T+3}, v{V_L}")
            a(f"ds_write_b64 v{V_CST}, {vr(T+2,2)}")
        a("s_waitcnt lgkmcnt(0)")

    def last_step(self, vimm):
        a = self.a
        T = V_T
        a(f"ds_read_b64 {vr(T+2,2)}, v{V_CSR}")
        order = [2, 3, 0, 1]
        for s2 in range(2):
            for g in order:
                for x in range(2):
                    a(f"ds_read_b64_tr_b16 {ar(A_V+16*s2+4*g+2*x,2)}, v{V_VA+g} offset:{vimm+s2*4096+x*2048}")
        a("s_waitcnt lgkmcnt(15)")
        a(f"v_max_f32 v{T+4}, v{V_MC}, v{T+2}")
        a(f"v_sub_f32 v{T+6}, v{V_MC}, v{T+4}")
        a(f"v_sub_f32 v{T+8}, v{T+2}, v{T+4}")
        a(f"v_exp_f32 v{T+6}, v{T+6}")
        a(f"v_exp_f32 v{T+8}, v{T+8}")
        a("s_nop 0")
        a(f"v_mul_f32 v{T+5}, v{T+6}, v{V_L}")
        a(f"v_fma_f32 v{T+5}, v{T+8}, v{T+3}, v{T+5}")
        a(f"v_rcp_f32 v{T+5}, v{T+5}")
        a("s_nop 0")
        a(f"v_mul_f32 v{T+6}, v{T+6}, v{T+5}")
        a(f"v_mul_f32 v{T+8}, v{T+8}, v{T+5}")
        a(f"v_mov_b32 v{T+7}, v{T+6}")
        a(f"v_mov_b32 v{T+9}, v{T+8}")
        k = 0
        for s2 in range(2):
            for g in order:
                a(f"s_waitcnt lgkmcnt({min(15, 2*(7-k))})")
                a(f"v_mfma_f32_32x32x16_bf16 {vr(V_O+16*g,16)}, {ar(A_V+16*s2+4*g,4)}, {vr(self.pbuf(15)+4*s2,4)}, {vr(V_O+16*g,16)}")
                k += 1

    def combine(self):
        a = self.a
        T = V_T
        E = V_S
        a.c("---- combine the two key halves, publish O")
        L = V_LANE
        a(f"v_lshrrev_b32 v{T+4}, 4, v{L}")
        a(f"v_lshrrev_b32 v{T+5}, 1, v{T+4}")
        a(f"v_lshlrev_b32 v{T+5}, 4, v{T+5}")
        a(f"v_and_b32 v{T+10}, 1, v{T+4}")
        a(f"v_lshl_add_u32 v{T+5}, v{T+10}, 2, v{T+5}")
        a(f"v_and_b32 v{T+10}, 15, v{L}")
        a(f"v_lshrrev_b32 v{T+10}, 2, v{T+10}")
        a(f"v_add_u32 v{T+5}, v{T+5}, v{T+10}")
        a(f"v_mul_u32_u24 v{T+5}, 288, v{T+5}")
        a(f"v_and_b32 v{T+10}, 3, v{L}")
        a(f"v_lshl_add_u32 v{V_QA}, v{T+10}, 3, v{T+5}")
        a(f"v_add_u32 v{V_QA+1}, 0x10000, v{V_QA}")
        a(f"v_add_u32 v{V_QA+2}, 0x20000, v{V_QA}")
        for u in range(8):
            a(f"ds_write_b128 v{V_CW}, {vr(V_O+32+4*u,4)} offset:{u*1024}")
        for k in range(16):
            a(f"v_pk_mul_f32 {vr(V_O+2*k,2)}, {vr(V_O+2*k,2)}, {vr(T+6,2)}")
        a("s_waitcnt lgkmcnt(0)")
        self.bar("c2")
        self.stamp("c2")
        for u in range(8):
            a(f"ds_read_b128 {vr(V_O+32+4*u,4)}, v{V_CR} offset:{u*1024}")
        slow = a.newlabel("L_oslow"); join = a.newlabel("L_ojoin")

        def tail(aux, track):
            for u in range(8):
                a(f"s_waitcnt lgkmcnt({7-u})")
                for k in (2 * u, 2 * u + 1):
                    a(f"v_pk_fma_f32 {vr(V_O+2*k,2)}, {vr(V_O+32+2*k,2)}, {vr(T+8,2)}, {vr(V_O+2*k,2)}")
                for k in (2 * u, 2 * u + 1):
                    a(f"v_cvt_pk_bf16_f32 v{E+k}, v{V_O+2*k}, v{V_O+2*k+1}")
                if u & 1:
                    g, uu = (u >> 2), (u >> 1) & 1
                    ins = f"buffer_store_dwordx4 {vr(E+8*g+4*uu,4)}, v{V_OST}, {sr(SRD_WS,4)}, 0 offen offset:{g*1024+uu*512} {aux}"
                    if track:
                        a.vmop(ins, "ostore")
                    else:
                        a(ins)
        if self.fast:
            a(f"s_cmp_eq_u32 s{S_FAST}, 0")
            a(f"s_cbranch_scc1 {slow}")
            tail("", False)
            a(f"s_branch {join}")
            a.label(slow)
            tail("sc1", True)
            a.label(join)
        else:
            tail("sc1", True)
        self.bar("c3")
        self.stamp("ost")
        a(f"s_and_b32 s{S_T0}, s{S_IDX}, 0xfc")
        a(f"s_lshl_b32 s{S_T0}, s{S_T0}, 14")
        a(f"s_add_u32 s{S_T0}, s{S_T0}, s{S_W4K}")
        a(f"s_add_u32 s{S_T0}, s{S_T0}, {WS_O}")
        a(f"s_lshl_b32 s{S_T1}, s{S_HH}, 14")
        a(f"s_add_u32 s{S_T1}, s{S_T1}, s{S_T0}")
        a("s_waitcnt vmcnt(0)")
        self.stamp("ostack")
        self.bar("e1")
        self.stamp("e1")

    def oproj(self):
        a = self.a
        T = V_T
        WOA = V_QA
        a.c("---- O projection")
        for tp in range(4):
            a.vmop(f"buffer_load_dwordx4 {ar(A_OB+4*tp,4)}, v{V_L16}, {sr(SRD_WS,4)}, s{S_T1} offen offset:{tp*1024} sc1", f"ob{tp}")
        RING = 10
        AHEAD = 7
        seq = [(nb, t) for t in range(4) for nb in range(9)] + [(nb, t) for nb in range(9) for t in range(4, 16)]
        NOWN = 36

        def reads(k):
            nb, t = seq[k]
            out = []
            for x in range(2):
                off = wo_lds(t) + nb * 32 + x * 2304
                rs, imm = off // 65536, off % 65536
                out.append(f"ds_read_b64_tr_b16 {ar(A_W+4*(k%RING)+2*x,2)}, v{WOA+rs} offset:{imm}")
            return out
        issued = 0

        def issue_upto(k, limit):
            nonlocal issued
            while issued <= min(k, limit):
                for s_ in reads(issued):
                    a(s_)
                issued += 1
        issue_upto(AHEAD - 1, NOWN - 1)
        a(f"s_lshl_b32 s{S_T3}, s{S_B}, 2")
        a(f"s_add_u32 s{S_T3}, s{S_T3}, s{S_HH}")
        a(f"s_lshl_b32 s{S_T3}, s{S_T3}, 3")
        a(f"s_add_u32 s{S_T3}, s{S_T3}, s{S_J}")
        a(f"s_mul_i32 s{S_T3}, s{S_T3}, {PSTRIDE}")
        a(f"s_mul_i32 s{S_T2}, s{S_WAVE}, 5120")
        a(f"s_add_u32 s{S_T3}, s{S_T3}, s{S_T2}")
        a(f"s_add_u32 s{S_T3}, s{S_T3}, {WS_P}")
        a(f"v_mov_b32 v{V_E+18}, 0")
        a(f"v_mov_b32 v{V_E+19}, 0")
        seen_t = set()
        covered = -1
        NA = self.opts.get("na", 14)
        for k, (nb, t) in enumerate(seq):
            if k == NOWN:
                issue_upto(k + AHEAD - 1, len(seq) - 1)
            if k == NA:
                self.stamp("own")
                self.bar("e2")
                self.stamp("ex1")
                for i in range(1, 4):
                    a(f"s_add_u32 s{S_T1}, s{S_HH}, {i}")
                    a(f"s_and_b32 s{S_T1}, s{S_T1}, 3")
                    a(f"s_lshl_b32 s{S_T1}, s{S_T1}, 14")
                    a(f"s_add_u32 s{S_T1}, s{S_T1}, s{S_T0}")
                    for tp in range(4):
                        tt = 4 * i + tp
                        a.vmop(f"buffer_load_dwordx4 {ar(A_OB+4*tt,4)}, v{V_L16}, {sr(SRD_WS,4)}, s{S_T1} offen offset:{tp*1024} sc1", f"ob{tt}")
            if t not in seen_t:
                a.wait_tag(f"ob{t}")
                seen_t.add(t)
            if k == NOWN + 12:
                self.stamp("op16")
            G = self.opts.get("wgrp", 4)
            if k % G == 0:
                last = min(k + G - 1, issued - 1)
                outstanding_after = issued - 1 - last
                a(f"s_waitcnt lgkmcnt({min(2*outstanding_after, 15)})")
                covered = last
            elif k > covered:
                outstanding_after = issued - 1 - k
                a(f"s_waitcnt lgkmcnt({min(2*outstanding_after, 15)})")
                covered = k
            srcc = "0" if k < 9 else vr(V_ACC+4*nb,4)
            a(f"v_mfma_f32_16x16x32_bf16 {vr(V_ACC+4*nb,4)}, {ar(A_W+4*(k%RING),4)}, {ar(A_OB+4*t,4)}, {srcc}")
            lim = NOWN - 1 if k < NA else len(seq) - 1
            if k >= NA and k < NOWN:
                lim = len(seq) - 1
            issue_upto(k + AHEAD, lim)
            if k >= NOWN and t == 12 and nb >= 1:
                pb = nb - 1
                p, h = pb // 2, pb % 2
                a(f"v_cvt_pk_bf16_f32 v{V_E+4*p+2*h}, v{V_ACC+4*pb}, v{V_ACC+4*pb+1}")
                a(f"v_cvt_pk_bf16_f32 v{V_E+4*p+2*h+1}, v{V_ACC+4*pb+2}, v{V_ACC+4*pb+3}")
                if self.dpoll:
                    a(f"v_min_u32 v{V_E+4*p+2*h}, -2, v{V_E+4*p+2*h}")
                    a(f"v_min_u32 v{V_E+4*p+2*h+1}, -2, v{V_E+4*p+2*h+1}")
                if h == 1:
                    a.vmop(f"buffer_store_dwordx4 {vr(V_E+4*p,4)}, v{V_L16}, {sr(SRD_WS,4)}, s{S_T3} offen offset:{p*1024} sc1", "pstore")
        a("s_nop 7")
        a(f"v_cvt_pk_bf16_f32 v{V_E+16}, v{V_ACC+32}, v{V_ACC+33}")
        a(f"v_cvt_pk_bf16_f32 v{V_E+17}, v{V_ACC+34}, v{V_ACC+35}")
        if self.dpoll:
            a(f"v_min_u32 v{V_E+16}, -2, v{V_E+16}")
            a(f"v_min_u32 v{V_E+17}, -2, v{V_E+17}")
        a(f"s_add_u32 s{S_T3}, s{S_T3}, 4096")
        a.vmop(f"buffer_store_dwordx4 {vr(V_E+16,4)}, v{V_L16}, {sr(SRD_WS,4)}, s{S_T3} offen sc1", "pstore")
        self.stamp("oproj")

    def final(self, endlab="L_end"):
        a = self.a
        T = V_T
        R = V_S
        acc = V_O
        a.c("---- exchange 2 + final reduce")
        a(f"s_mul_i32 s{S_T0}, s{S_J}, 160")
        a(f"v_add_u32 v{T}, s{S_T0}, v0")
        a(f"v_lshlrev_b32 v{T+1}, 4, v{T}")
        a(f"v_mul_u32_u24 v{T+2}, 3277, v{T}")
        a(f"v_lshrrev_b32 v{T+2}, 20, v{T+2}")
        a(f"v_mul_u32_u24 v{T+3}, 320, v{T+2}")
        a(f"v_sub_u32 v{T+3}, v{T}, v{T+3}")
        a(f"v_lshrrev_b32 v{T+4}, 6, v{T+3}")
        a(f"v_and_b32 v{T+5}, 63, v{T}")
        a(f"v_and_b32 v{T+6}, 15, v{T+5}")
        a(f"v_lshl_add_u32 v{T+6}, v{T+2}, 4, v{T+6}")
        a(f"v_mul_u32_u24 v{T+6}, 1152, v{T+6}")
        a(f"v_lshrrev_b32 v{T+7}, 4, v{T+5}")
        a(f"v_lshlrev_b32 v{T+7}, 3, v{T+7}")
        a(f"v_lshl_add_u32 v{T+7}, v{T+4}, 6, v{T+7}")
        a(f"v_add_u32 v{T+6}, v{T+6}, v{T+7}")
        a(f"s_lshl_b32 s{S_T0}, s{S_B}, 2")
        a(f"s_add_u32 s{S_T0}, s{S_T0}, s{S_HH}")
        a(f"s_mul_i32 s{S_T0}, s{S_T0}, {8*PSTRIDE}")
        a(f"s_add_u32 s{S_T0}, s{S_T0}, {WS_P}")

        def loads():
            a(f"s_mov_b32 s{S_T1}, s{S_T0}")
            for jj in range(8):
                a(f"buffer_load_dwordx4 {vr(R+4*jj,4)}, v{T+1}, {sr(SRD_WS,4)}, s{S_T1} offen sc1")
                if jj < 7:
                    a(f"s_add_u32 s{S_T1}, s{S_T1}, {PSTRIDE}")
        have = a.newlabel("L_have")
        if self.dpoll:
            slow = a.newlabel("L_f2slow")
            a(f"s_cmp_eq_u32 s{S_FAST2}, 0")
            a(f"s_cbranch_scc1 {slow}")
            idle = a.newlabel("L_f2idle")
            a(f"v_cmp_gt_u32 vcc, 160, v0")
            a(f"s_and_saveexec_b64 {sr(S_SAVE,2)}, vcc")
            a(f"s_cbranch_execz {idle}")
            loads()
            a("s_waitcnt vmcnt(0)")
            a(f"s_mov_b64 exec, {sr(S_SAVE,2)}")
            self.bar("f1")
            a.nbar_skip = True
            a(f"v_cmp_gt_u32 vcc, 160, v0")
            a(f"s_and_b64 exec, exec, vcc")
            a(f"s_mov_b32 s{S_SPIN}, 0")
            lp = a.newlabel("L_dp")
            a.label(lp)
            a(f"v_max3_u32 v{T+8}, v{R}, v{R+1}, v{R+2}")
            for k in range(3, 31, 2):
                a(f"v_max3_u32 v{T+8}, v{T+8}, v{R+k}, v{R+k+1}")
            a(f"v_max_u32 v{T+8}, v{T+8}, v{R+31}")
            a(f"v_cmp_eq_u32 vcc, -1, v{T+8}")
            a(f"s_cbranch_vccz {have}")
            a(f"s_add_u32 s{S_SPIN}, s{S_SPIN}, 1")
            a(f"s_cmp_ge_u32 s{S_SPIN}, 0x4000")
            a(f"s_cbranch_scc1 {have}")
            loads()
            a("s_waitcnt vmcnt(0)")
            a(f"s_branch {lp}")
            a.label(idle)
            a(f"s_mov_b64 exec, {sr(S_SAVE,2)}")
            a("s_waitcnt vmcnt(0)")
            a("s_barrier")
            a(f"s_branch {endlab}")
            a.label(slow)
            a("s_waitcnt vmcnt(0)")
            a("s_barrier")
            a("s_barrier")
        else:
            a("s_waitcnt vmcnt(0)")
            self.stamp("pack")
            self.bar("f1")
            self.stamp("f1")
            self.bar("f2")
        self.stamp("ex2")
        a(f"v_cmp_gt_u32 vcc, 160, v0")
        a(f"s_and_saveexec_b64 {sr(S_SAVE,2)}, vcc")
        a(f"s_cbranch_execz {endlab}")
        loads()
        if self.dpoll:
            a("s_waitcnt vmcnt(0)")
        a.label(have)
        a(f"s_mul_i32 s{S_T0}, s{S_B}, 73728")
        a(f"s_mul_i32 s{S_T1}, s{S_HH}, 288")
        a(f"s_add_u32 s{S_T0}, s{S_T0}, s{S_T1}")
        a(f"s_mov_b32 s{S_T1}, 0xffff0000")
        for jj in range(8):
            if not self.dpoll:
                a(f"s_waitcnt vmcnt({7-jj})")
            for d in range(4):
                src = R + 4 * jj + d
                if jj == 0:
                    a(f"v_lshlrev_b32 v{acc+2*d}, 16, v{src}")
                    a(f"v_and_b32 v{acc+2*d+1}, s{S_T1}, v{src}")
                else:
                    tt = T + 8 + 2 * (d & 1)
                    a(f"v_lshlrev_b32 v{tt}, 16, v{src}")
                    a(f"v_and_b32 v{tt+1}, s{S_T1}, v{src}")
                    a(f"v_pk_add_f32 {vr(acc+2*d,2)}, {vr(acc+2*d,2)}, {vr(tt,2)}")
        for d in range(4):
            a(f"v_cvt_pk_bf16_f32 v{acc+8+d}, v{acc+2*d}, v{acc+2*d+1}")
        a(f"buffer_store_dwordx2 {vr(acc+8,2)}, v{T+6}, {sr(SRD_OUT,4)}, s{S_T0} offen")
        a(f"v_cmp_gt_u32 vcc, 4, v{T+4}")
        a(f"s_and_b64 exec, exec, vcc")
        a(f"s_cbranch_execz {endlab}")
        a(f"buffer_store_dwordx2 {vr(acc+10,2)}, v{T+6}, {sr(SRD_OUT,4)}, s{S_T0} offen offset:32")

    def write_stamps(self, a, who, T):
        self.stamp("end", who)
        a("s_mov_b64 exec, -1")
        a("s_waitcnt lgkmcnt(0)")
        if self.ts == "probe":
            if who == "l":
                return
            k = self.stampnames["c"].index(self.opts["probe"])
            e = self.stampnames["c"].index("end")
            a(f"s_sub_u32 s{S_T0}, s{S_TS+2*k}, s{S_TS}")
            a(f"s_mul_i32 s{S_T0}, s{S_T0}, {self.opts.get('mult',1)}")
            a(f"s_add_u32 s{S_T0}, s{S_T0}, s{S_TS+2*e}")
            lab = a.newlabel("L_spin")
            a.label(lab)
            a(f"s_memrealtime s[98:99]")
            a("s_waitcnt lgkmcnt(0)")
            a(f"s_sub_u32 s{S_T1}, s98, s{S_T0}")
            a(f"s_cmp_lt_i32 s{S_T1}, 0")
            a(f"s_cbranch_scc1 {lab}")
            return
        if self.ts == "dbg":
            if who == "l":
                return
            lab = a.newlabel("L_nots")
            a(f"s_cmp_lg_u32 s{S_WAVE}, 0")
            a(f"s_cbranch_scc1 {lab}")
            a(f"s_mov_b32 s{SRD_DBG}, s{S_DBG}")
            a(f"s_mov_b32 s{SRD_DBG+1}, s{S_DBG+1}")
            a(f"s_mov_b32 s{SRD_DBG+2}, 256")
            a(f"s_mov_b32 s{SRD_DBG+3}, 0x20000")
            a("s_mov_b64 exec, 1")
            for k, st in enumerate(self.dbgsel):
                if k == 0:
                    a(f"s_not_b32 s{S_T0}, s{S_TS+2*st}")
                    a(f"v_mov_b32 v{T+1}, s{S_T0}")
                else:
                    a(f"v_mov_b32 v{T+1}, s{S_TS+2*st}")
                a(f"v_mov_b32 v{T}, {32+4*k}")
                a(f"buffer_atomic_umax v{T+1}, v{T}, {sr(SRD_DBG,4)}, 0 offen sc1")
                a("s_nop 1")
            a.label(lab)
            return
        a(f"s_mul_i32 s{S_T0}, s2, {NW}")
        a(f"s_add_u32 s{S_T0}, s{S_T0}, s{S_WAVE}")
        a(f"s_lshl_b32 s{S_T0}, s{S_T0}, 6")
        a(f"s_add_u32 s{S_T0}, s{S_T0}, {WS_TS}")
        a(f"v_mov_b32 v{T}, s{S_T0}")
        a("s_mov_b64 exec, 1")
        for k in range(self.nts[who]):
            a(f"v_mov_b32 v{T+1}, s{S_TS+2*k}")
            a(f"buffer_store_dword v{T+1}, v{T}, {sr(SRD_WS,4)}, 0 offen offset:{4*k}")
            a("s_nop 1")

    def l_poll(self, srd, vaddr, nl, want, cmp="ge"):
        a = self.l
        T = L_T
        lab = a.newlabel("L_poll")
        done = a.newlabel("L_pdone")
        a(f"s_mov_b64 exec, {(1<<nl)-1:#x}")
        a(f"s_mov_b32 s{S_SPIN}, 0")
        a.label(lab)
        a(f"buffer_load_dword v{T+2}, v{vaddr}, {sr(srd,4)}, 0 offen sc1")
        a("s_waitcnt vmcnt(0)")
        if cmp == "bit":
            a(f"v_and_b32 v{T+2}, 1, v{T+2}")
        a(f"v_cmp_le_u32 vcc, {want}, v{T+2}")
        a(f"s_add_u32 s{S_SPIN}, s{S_SPIN}, 1")
        a("s_nop 2")
        a("s_cmp_eq_u64 vcc, exec")
        a(f"s_cbranch_scc1 {done}")
        a(f"s_cmp_lt_u32 s{S_SPIN}, 0x8000")
        a(f"s_cbranch_scc1 {lab}")
        a.label(done)
        a("s_mov_b64 exec, -1")

    def l_signal(self, vflag, fastable=False):
        a = self.l
        T = L_T
        a(f"s_or_b32 s{S_T0}, s{S_XCC}, 1")
        a(f"v_mov_b32 v{T+1}, s{S_T0}")
        a("s_mov_b64 exec, 1")
        if fastable and self.fast:
            slow = a.newlabel("L_fs"); join = a.newlabel("L_fj")
            a(f"s_cmp_eq_u32 s{S_FAST}, 0")
            a(f"s_cbranch_scc1 {slow}")
            a(f"buffer_store_dword v{T+1}, v{vflag}, {sr(SRD_WS,4)}, 0 offen")
            a(f"s_branch {join}")
            a.label(slow)
            a(f"buffer_store_dword v{T+1}, v{vflag}, {sr(SRD_WS,4)}, 0 offen sc1")
            a.label(join)
        else:
            a(f"buffer_store_dword v{T+1}, v{vflag}, {sr(SRD_WS,4)}, 0 offen sc1")
        a("s_mov_b64 exec, -1")

    def loader(self, cls=0):
        a = self.l
        T = L_T
        L = V_LANE
        npre = self.opts.get("npre", 5) if cls == 1 else 0
        a.label(f"L_loader{cls}")
        self.stampnames["l"] = []
        if self.ts:
            self.nts["l"] = 1 if "start" in self.stampset else 0
            if "start" in self.stampset:
                self.stampnames["l"].append("start")
        if self.opts.get("prio", 0):
            a(f"s_setprio {self.opts.get('prio')}")
        self.dma_voffsets(a, T, L_KOFF, L_VOFF, L_WQOFF, L_XOFF)
        a("s_waitcnt lgkmcnt(0)")
        self.srds(a)
        for u in range(npre):
            self.issue(a, self.unit_ops(u, "l"), f"u{u}")
        self.issue(a, self.q_item_ops(0), "q0")
        pre8 = self.opts.get("pre8", 0) if cls == 0 else 0
        self.half_done = 0
        for h in range(pre8):
            u = h // 2
            ops = self.unit_ops(u, "l")
            if h % 2 == 0:
                self.issue(a, ops[:8], f"u{u}")
            else:
                self.issue(a, self.unit_tail(u), f"u{u}")
        a(f"s_getreg_b32 s{S_XCC}, hwreg(HW_REG_XCC_ID)")
        a(f"s_and_b32 s{S_XCC}, s{S_XCC}, 0xff")
        a(f"s_add_u32 s{S_XCC}, s{S_XCC}, 1")
        a(f"s_lshl_b32 s{S_XCC}, s{S_XCC}, 8")
        self.issue(a, self.q_item_ops(1), "q1")
        if self.opts.get("p0", 0):
            a.barrier("p0")
        self.stamp("ldma0", "l")
        a(f"s_mul_i32 s{S_T0}, s{S_J}, 589824")
        a(f"s_mul_i32 s{S_T1}, s{S_HH}, 288")
        a(f"s_add_u32 s{S_T0}, s{S_T0}, s{S_T1}")
        a(f"s_add_u32 s{SRD_WO}, s{S_WO}, s{S_T0}")
        a(f"s_addc_u32 s{SRD_WO+1}, s{S_WO+1}, 0")
        a(f"s_sub_u32 s{SRD_WO+2}, 4718592, s{S_T0}")
        a(f"s_mov_b32 s{SRD_WO+3}, 0x20000")
        a(f"s_mov_b32 s{SRD_DBG}, s{S_DBG}")
        a(f"s_mov_b32 s{SRD_DBG+1}, s{S_DBG+1}")
        a(f"s_mov_b32 s{SRD_DBG+2}, 256")
        a(f"s_mov_b32 s{SRD_DBG+3}, 0x20000")
        for u in range(9):
            a(f"v_add_u32 v{T}, {64*u}, v{L}")
            a(f"v_mul_u32_u24 v{T+1}, 3641, v{T}")
            a(f"v_lshrrev_b32 v{T+1}, 16, v{T+1}")
            a(f"v_mul_u32_u24 v{T+2}, 18, v{T+1}")
            a(f"v_sub_u32 v{T+2}, v{T}, v{T+2}")
            a(f"v_mul_u32_u24 v{T+1}, 1152, v{T+1}")
            a(f"v_lshl_add_u32 v{T+1}, v{T+2}, 4, v{T+1}")
            a(f"v_subrev_u32 v{L_WOOFF+u}, {1024*(u%4)}, v{T+1}")
        a(f"s_lshl_b32 s{S_T0}, s{S_IDX}, 7")
        a(f"v_mov_b32 v{T+4}, s{S_T0}")
        a(f"v_add_u32 v{T+5}, {WS_FLAG2}, v{T+4}")
        a(f"s_and_b32 s{S_T0}, s{S_IDX}, 0xfc")
        a(f"v_add_u32 v{T+6}, s{S_T0}, v{L}")
        a(f"v_lshlrev_b32 v{T+6}, 7, v{T+6}")
        a(f"s_lshl_b32 s{S_T0}, s{S_B}, 5")
        a(f"s_add_u32 s{S_T0}, s{S_T0}, s{S_HH}")
        a(f"v_lshlrev_b32 v{T+7}, 2, v{L}")
        a(f"v_add_u32 v{T+7}, s{S_T0}, v{T+7}")
        a(f"v_lshlrev_b32 v{T+7}, 7, v{T+7}")
        a(f"v_add_u32 v{T+7}, {WS_FLAG2}, v{T+7}")
        a(f"s_lshl_b32 s{S_T0}, s{S_B}, 2")
        a(f"v_mov_b32 v{T+8}, s{S_T0}")
        nxt = npre
        pending_half = None
        if cls == 0 and pre8:
            nxt = pre8 // 2
            if pre8 % 2:
                pending_half = nxt
                nxt += 1
        for n in range(9):
            a.wait_tag(f"q{n}")
            self.stamp(f"lq{n}", "l")
            a.barrier(f"q{n}")
            if n + 2 <= 8:
                self.issue(a, self.q_item_ops(n + 2), f"q{n+2}")
            if n == 6:
                if pending_half is not None:
                    self.issue(a, self.unit_tail(pending_half), f"u{pending_half}")
                first = self.opts.get("first", 2) + (pre8 + 1) // 2 - (1 if pre8 % 2 else 0) if cls == 0 else 0
                us = list(range(nxt, min(4, max(first, npre + 2 if npre else 0)) + 1))
                self.issue_units(a, us); nxt += len(us)
            if cls == 1 and n == 7:
                while nxt <= min(5, npre + 2):
                    self.issue(a, self.unit_ops(nxt, "l"), f"u{nxt}"); nxt += 1
            if cls == 1 and n == 8:
                while nxt <= min(7, npre + 2):
                    self.issue(a, self.unit_ops(nxt, "l"), f"u{nxt}"); nxt += 1
        a.barrier("x1")
        a.barrier("x2")
        wo_next = 0
        for i in range(17):
            target = 2 * i + 1 if i <= 13 else {14: 28, 15: 29, 16: 31}[i]
            a.wait_tag(f"u{target}")
            self.stamp(f"law{i}", "l")
            a.barrier(f"a{i}")
            lim = min(31, 2 * i + 1 + self.LA, 2 * i + 9 if i >= 1 else 9)
            us = list(range(nxt, lim + 1))
            self.issue_units(a, us); nxt += len(us)
            if i == 6:
                a.vmop(f"buffer_load_dword v{L_RDY}, v{T+8}, {sr(SRD_DBG,4)}, 0 offen sc1", "rdy")
            if i == 8:
                a.wait_tag("rdy")
                a(f"v_readfirstlane_b32 s{S_RDYOK}, v{L_RDY}")
                lab = a.newlabel("L_tag")
                a("s_nop 3")
                a(f"s_cmp_eq_u32 s{S_RDYOK}, 0")
                a(f"s_cbranch_scc1 {lab}")
                a(f"v_mov_b32 v{T+1}, s{S_XCC}")
                a("s_mov_b64 exec, 1")
                a(f"buffer_store_dword v{T+1}, v{T+4}, {sr(SRD_WS,4)}, 0 offen sc1")
                a("s_mov_b64 exec, -1")
                a.label(lab)
            if i == 11:
                a.vmop(f"buffer_load_dword v{L_RDY+1}, v{T+6}, {sr(SRD_WS,4)}, 0 offen sc1", "xcc")
                if self.dpoll:
                    a(f"v_subrev_u32 v{T+9}, {WS_FLAG2}, v{T+7}")
                    a.vmop(f"buffer_load_dword v{L_RDY+2}, v{T+9}, {sr(SRD_WS,4)}, 0 offen sc1", "xcc")
            if i == 13:
                a.wait_tag("xcc")
                a(f"v_and_b32 v{L_RDY+1}, 0xffffff00, v{L_RDY+1}")
                a(f"v_cmp_eq_u32 vcc, s{S_XCC}, v{L_RDY+1}")
                a("s_nop 1")
                a(f"s_and_b32 s{S_T0}, vcc_lo, 0xf")
                a(f"s_cmp_eq_u32 s{S_T0}, 0xf")
                a(f"s_cselect_b32 s{S_FAST}, 1, 0")
                a(f"s_cmp_lg_u32 s{S_RDYOK}, 0")
                a(f"s_cselect_b32 s{S_FAST}, s{S_FAST}, 0")
                if not self.fast:
                    a(f"s_mov_b32 s{S_FAST}, 0")
                if self.dpoll:
                    a(f"v_cmp_ne_u32 vcc, 0, v{L_RDY+2}")
                    a("s_nop 1")
                    a(f"s_and_b32 s{S_T0}, vcc_lo, 0xff")
                    a(f"s_cmp_eq_u32 s{S_T0}, 0xff")
                    a(f"s_cselect_b32 s{S_LFAST2}, 1, 0")
                    a(f"s_cmp_lg_u32 s{S_RDYOK}, 0")
                    a(f"s_cselect_b32 s{S_LFAST2}, s{S_LFAST2}, 0")
                else:
                    a(f"s_mov_b32 s{S_LFAST2}, 0")
                a(f"v_mov_b32 v{T+10}, s{S_FAST}")
                a(f"v_mov_b32 v{T+11}, s{S_LFAST2}")
                a(f"v_mov_b32 v{T+2}, {FAST_OFF}")
                a(f"ds_write_b64 v{T+2}, {vr(T+10,2)}")
                a("s_waitcnt lgkmcnt(0)")
            avail = {14: 2, 15: 4, 16: 7}.get(i, -1)
            if nxt > 31:
                while wo_next <= avail:
                    self.issue(a, self.wo_kstep_ops(wo_next), f"wo{wo_next}"); wo_next += 1
            if i == 15:
                a.wait_tag("u30")
                a.barrier("a15v")
        a.barrier("c2")
        while wo_next <= 11:
            self.issue(a, self.wo_kstep_ops(wo_next), f"wo{wo_next}"); wo_next += 1
        rok = a.newlabel("L_rok")
        a(f"s_cmp_lg_u32 s{S_RDYOK}, 0")
        a(f"s_cbranch_scc1 {rok}")
        self.l_poll(SRD_DBG, T + 8, 1, 1, cmp="ge")
        a.label(rok)
        a.barrier("c3")
        while wo_next <= 15:
            self.issue(a, self.wo_kstep_ops(wo_next), f"wo{wo_next}"); wo_next += 1
        a.wait_tag("wo11")
        self.stamp("lwo", "l")
        a.barrier("e1")
        self.l_signal(T + 4, fastable=True)
        self.l_poll(SRD_WS, T + 6, 4, 1, cmp="bit")
        a.barrier("e2")
        a.barrier("f1")
        self.l_signal(T + 5)
        if self.dpoll:
            lab = a.newlabel("L_lend")
            a(f"s_cmp_lg_u32 s{S_LFAST2}, 0")
            a(f"s_cbranch_scc1 {lab}")
            self.l_poll(SRD_WS, T + 7, 8, 1, cmp="bit")
            a("s_barrier")
            a.label(lab)
        else:
            self.l_poll(SRD_WS, T + 7, 8, 1, cmp="bit")
            a.barrier("f2")
        if self.ts:
            self.write_stamps(a, "l", T)
        a("s_endpgm")

    def build(self):
        a = self.a
        self.prologue()
        self.stamp("pro")
        for n in range(9):
            self.q_step(n)
            self.stamp(f"q{n}")
        self.stamp("qend")
        self.qx_step()
        self.stamp("qx")
        for i in range(17):
            self.att_step(i)
            self.stamp(f"a{i}")
        self.stamp("att")
        self.combine()
        self.oproj()
        self.stamp("ex2")
        if self.ts:
            self.final("L_fin")
            a.label("L_fin")
            self.write_stamps(a, "c", V_T)
        else:
            self.final()
        a.label("L_end")
        a("s_endpgm")
        self.loader(0)
        assert self.a.bars == self.l.bars, (self.a.bars, self.l.bars)
        ltext = self.l.text()
        if self.opts.get("stag", 0):
            self.l = Asm("m")
            self.loader(1)
            assert self.a.bars == self.l.bars
            ltext = (f"    s_cmp_ge_u32 s{S_HH}, 2\n    s_cbranch_scc1 L_loader1\n" + ltext + self.l.text())
        self.ltext = ltext
        hdr = [
            "; Fused GQA block for gfx950: Q projection + attention + output projection in one launch.",
            "; Kernarg (64 bytes, pointers only, base s[0:1]): x@0 k_cache@8 v_cache@16 wq@24 wo@32 out@40 debug@48 ws@56",
            "; One workgroup per (batch, q head): workgroup id w -> head group j = w & 7 (4 heads), slot = w >> 3,",
            ";   batch = slot >> 2, head = 4 j + (slot & 3).  Waves 0-3 compute, wave 4 streams all operands into LDS.",
            "; Phases: Q^T = wq^T x^T (9 chunks of 64 k) -> S^T = K Q^T / online softmax / O^T += V^T P^T over 16 tiles of 64 keys",
            ";   -> normalised O (bf16) handed to the 4 workgroups of the head group through the workspace",
            ";   -> each projects 64 x 144 outputs over K = 512 -> bf16 partials -> 8 workgroups reduce them into out.",
            "; Hand-offs use flag words in the workspace; they are cleared in every launch (ready word in d_debug).",
            f"; @launch grid=(256,1,1) block=({64*NW},1,1) lds={LDS_BYTES}",
            '.amdgcn_target "amdgcn-amd-amdhsa--gfx950"',
            ".text",
            f".globl {KNAME}",
            ".p2align 8",
            f".type {KNAME},@function",
            f"{KNAME}:",
        ]
        ftr = [
            "L_codeend:",
            "    s_endpgm",
            '.section .rodata,"a"',
            ".p2align 6",
            f".amdhsa_kernel {KNAME}",
            "  .amdhsa_next_free_vgpr 256",
            "  .amdhsa_next_free_sgpr 102",
            f"  .amdhsa_accum_offset {ACC_OFF}",
            "  .amdhsa_group_segment_fixed_size 0",
            "  .amdhsa_kernarg_size 64",
            "  .amdhsa_user_sgpr_count 2",
            "  .amdhsa_user_sgpr_kernarg_segment_ptr 1",
            "  .amdhsa_system_sgpr_workgroup_id_x 1",
            ".end_amdhsa_kernel",
        ]
        body = a.text().replace("    @@LOADER@@\n", self.ltext)
        return "\n".join(hdr) + "\n" + body + "\n".join(ftr) + "\n"


if __name__ == "__main__":
    import argparse
    p = argparse.ArgumentParser()
    p.add_argument("-o", default="standalone__gqa_block_cached__near_ridge.s")
    p.add_argument("--ts", default=False)
    p.add_argument("--kvaux", default="nt")
    p.add_argument("--stamps", default=None)
    p.add_argument("--notouch", action="store_true")
    p.add_argument("--swap", action="store_true")
    p.add_argument("--la", type=int, default=5)
    p.add_argument("--early", type=int, default=0)
    p.add_argument("--nofast", action="store_true")
    p.add_argument("--opt", action="append", default=[])
    p.add_argument("--probe", default=None)
    p.add_argument("--mult", type=int, default=1)
    args = p.parse_args()
    if args.probe:
        args.ts = "probe"
        args.stamps = "start," + args.probe + ",end"
    g = Gen(ts=args.ts, opts=dict({"probe": args.probe, "mult": args.mult}, **{kv.split("=")[0]: int(kv.split("=")[1]) for kv in args.opt}), kvaux=args.kvaux, stampset=args.stamps.split(",") if args.stamps else None,
            touch=not args.notouch, LA=args.la, swap=args.swap, early=args.early, fast=not args.nofast)
    open(args.o, "w").write(g.build())
    print("written", args.o, len(g.a.L) + len(g.l.L), "lines", g.stampnames)
```
